```python
import torch

def _softmax(x, axis=-1):
    return torch.softmax(x, dim=axis)
def _gelu(x):
    return torch.nn.functional.gelu(x, approximate="tanh")
def _silu(x):
    return torch.nn.functional.silu(x)
def _sigmoid(x):
    return torch.sigmoid(x)
def _layernorm(x, axis=-1, eps=1e-5):
    m = x.mean(dim=axis, keepdim=True)
    v = x.var(dim=axis, keepdim=True, unbiased=False)
    return (x - m) / torch.sqrt(v + eps)
def _scatter_add(tgt, idx, src, axis=0):
    return tgt.clone().index_add_(axis, idx, src)
def _segment_sum(src, seg, n):
    out = torch.zeros((n,) + src.shape[1:], dtype=src.dtype)
    return out.index_add_(0, seg, src)
def _pad(x, pw):
    flat = tuple(v for pair in reversed(pw) for v in pair)
    return torch.nn.functional.pad(x, flat)

kernel_name = 'sequential_preLN__sliding_block__glu_gated_bilinear__prompt'

def setup_inputs():

    _w = (lambda a: (lambda t: t.to(torch.bfloat16) if t.is_floating_point() else t)(torch.as_tensor(a)))
    def _A_setup():
        B, S, D = 1, 2048, 640
        return {
            "x": _w((lambda *s: torch.randn(*s, dtype=torch.bfloat16) * 0.05)(B, S, D)),
            "wqkv": _w((lambda *s: torch.randn(*s, dtype=torch.bfloat16) * 0.05)(D, 3 * D)),
            "wo": _w((lambda *s: torch.randn(*s, dtype=torch.bfloat16) * 0.05)(D, D)),
        }
    _A_in = _A_setup()

    def _B_setup():
        B, S, D, F = 1, 2048, 640, 1728
        return {
            "x": _w((lambda *s: torch.randn(*s, dtype=torch.bfloat16) * 0.05)(B, S, D)),
            "w_gate": _w((lambda *s: torch.randn(*s, dtype=torch.bfloat16) * 0.8)(D, F) * (D ** -0.5)),
            "w_up": _w((lambda *s: torch.randn(*s, dtype=torch.bfloat16) * 0.8)(D, F) * (D ** -0.5)),
            "w_down": _w((lambda *s: torch.randn(*s, dtype=torch.bfloat16) * 0.8)(F, D) * (F ** -0.5)),
        }
    _B_in = _B_setup()

    return {
        "A_x": _A_in["x"],
        "A_wqkv": _A_in["wqkv"],
        "A_wo": _A_in["wo"],
        "B_x": _B_in["x"],
        "B_w_gate": _B_in["w_gate"],
        "B_w_up": _B_in["w_up"],
        "B_w_down": _B_in["w_down"],
    }

def reference(A_x, A_wqkv, A_wo, B_x, B_w_gate, B_w_up, B_w_down):
    def _A_ref(x, wqkv, wo):
        B, S, D = x.shape
        H = 32; Dh = D // H; W = 256
        qkv = (lambda x, *d: x.permute(*d))((x @ wqkv).reshape(B, S, 3, H, Dh), 2, 0, 3, 1, 4)
        q, k, v = qkv[0], qkv[1], qkv[2]
        scores = torch.einsum("bhqd,bhkd->bhqk", q, k) * (Dh ** -0.5)
        idx = torch.arange(S)
        mask = (idx[:, None] - idx[None, :] >= 0) & (idx[:, None] - idx[None, :] < W)
        scores = torch.where(mask[None, None], scores, -1e9)
        p = _softmax(scores, axis=-1)
        o = torch.einsum("bhqk,bhkd->bhqd", p, v)
        return (lambda x, *d: x.permute(*d))(o, 0, 2, 1, 3).reshape(B, S, D) @ wo

    def _B_ref(x, w_gate, w_up, w_down):
        g = torch.einsum("bsd,df->bsf", x, w_gate)
        u = torch.einsum("bsd,df->bsf", x, w_up)
        h = g * u
        return torch.einsum("bsf,fd->bsd", h, w_down)

    x = A_x
    h = x + _A_ref(_layernorm(x, axis=-1), A_wqkv, A_wo)
    h2 = h + _B_ref(_layernorm(h, axis=-1), B_w_gate, B_w_up, B_w_down)
    return h2
```

```python
def v(n, c=1):
    return f"v{n}" if c == 1 else f"v[{n}:{n+c-1}]"
def a(n, c=1):
    return f"a{n}" if c == 1 else f"a[{n}:{n+c-1}]"
def s(n, c=1):
    return f"s{n}" if c == 1 else f"s[{n}:{n+c-1}]"
def r(n, c=1):
    if n < 256:
        assert n + c <= 256, (n, c)
        return v(n, c)
    return a(n - 256, c)

class Asm:
    def __init__(self):
        self.L = []
    def __call__(self, t):
        for line in t.split('\n'):
            line = line.strip()
            if line:
                self.L.append('  ' + line)
    def label(self, n):
        self.L.append(n + ':')
    def raw(self, t):
        self.L.append(t)
    def text(self):
        return '\n'.join(self.L) + '\n'

def kernel_header(A, name):
    A.raw('.text')
    A.raw(f'.globl {name}')
    A.raw('.p2align 8')
    A.raw(f'.type {name},@function')
    A.label(name)

def kernel_desc(A, name, nvgpr, nsgpr=102, accum=None, wgy=False):
    if accum is None:
        accum = min(256, (nvgpr + 3) // 4 * 4)
    A.raw('.section .rodata,"a"')
    A.raw('.p2align 6')
    A.raw(f'.amdhsa_kernel {name}')
    A.raw(f'  .amdhsa_next_free_vgpr {nvgpr}')
    A.raw(f'  .amdhsa_next_free_sgpr {nsgpr}')
    A.raw(f'  .amdhsa_accum_offset {accum}')
    A.raw('  .amdhsa_group_segment_fixed_size 0')
    A.raw('  .amdhsa_kernarg_size 80')
    A.raw('  .amdhsa_user_sgpr_count 2')
    A.raw('  .amdhsa_user_sgpr_kernarg_segment_ptr 1')
    A.raw('  .amdhsa_system_sgpr_workgroup_id_x 1')
    if wgy:
        A.raw('  .amdhsa_system_sgpr_workgroup_id_y 1')
    A.raw('  .amdhsa_float_denorm_mode_32 3')
    A.raw('.end_amdhsa_kernel')
    A.raw('.text')

def srd(A, d, base, nbytes):
    A(f's_mov_b32 s{d}, s{base}')
    A(f's_and_b32 s{d+1}, s{base+1}, 0xffff')
    A(f's_mov_b32 s{d+2}, {nbytes}')
    A(f's_mov_b32 s{d+3}, 0x00020000')
```

```python
from asmlib import *
from sched import Sched

KN = 'sequential_preLN__sliding_block__glu_gated_bilinear__prompt'
KA_X, KA_WQKV, KA_WO, KA_BX, KA_WG, KA_WU, KA_WD, KA_OUT, KA_DBG, KA_WS = 0, 8, 16, 24, 32, 40, 48, 56, 64, 72
QKV_OFF = 0;          QKV_SZ = 240*2048*16
OF_OFF  = 0x800000;   OF_SZ = 128*20*1024
HF_OFF  = 0xB00000;   HF_SZ = 64*40*1024
ST_OFF  = 0xE00000;   ST_SZ = 2048*8*8
CS_OFF  = 0xE40000;   CS_SZ = 5*3456*4
HP_OFF  = 0x1000000;  HP_SZ = 128*54*1024
WGU_OFF = 0x1800000; WGU_SZ = 108*40*1024
WDF_OFF = 0x1D00000; WDF_SZ = 8*54*5*1024
WOF_OFF = 0x2000000; WOF_SZ = 8*20*5*1024
S_, D_, F_ = 2048, 640, 1728

def srd_off(S, d, base, off, nbytes):
    if off:
        S(f's_add_u32 s{d}, s{base}, {off}')
        S(f's_addc_u32 s{d+1}, s{base+1}, 0')
        S(f's_and_b32 s{d+1}, s{d+1}, 0xffff')
    else:
        S(f's_mov_b32 s{d}, s{base}')
        S(f's_and_b32 s{d+1}, s{base+1}, 0xffff')
    S(f's_mov_b32 s{d+2}, {nbytes}')
    S(f's_mov_b32 s{d+3}, 0x00020000')

class LdsAddr:
    def __init__(self, S, regs):
        self.S = S; self.regs = regs
    def finish(self):
        for k in range(1, len(self.regs)):
            self.S(f'v_add_u32 v{self.regs[k]}, {65536*k}, v{self.regs[0]}')
    def at(self, c):
        k = c >> 16
        return f'v{self.regs[k]} offset:{c & 0xffff}' if (c & 0xffff) else f'v{self.regs[k]}'

def bf16_round(S, dst, src):
    S(f'v_cvt_pk_bf16_f32 v{dst}, v{src}, v{src}')
    S(f'v_lshlrev_b32 v{dst}, 16, v{dst}')

def interleave(S, mfmas, fillers, start=0):
    n = len(mfmas); m = len(fillers); k = 0
    for i, mf in enumerate(mfmas):
        S(mf)
        upto = (m * (i + 1) + n - 1) // n
        while k < min(upto, m):
            f = fillers[k]; k += 1
            if callable(f): f()
            elif isinstance(f, tuple): S(f[0], tag=f[1])
            else: S(f)
    while k < m:
        f = fillers[k]; k += 1
        if callable(f): f()
        elif isinstance(f, tuple): S(f[0], tag=f[1])
        else: S(f)


def prologue_guard(S, nwg):
    S(f's_cmp_ge_u32 s2, {nwg}')
    S('s_cbranch_scc1 L_exit_%s' % S.name)

def stamp(S, idx):
    if not getattr(S, 'stamps', False): return
    S('s_memtime s[90:91]')
    S('s_waitcnt lgkmcnt(0)')
    S(f's_mov_b32 s{92+idx}, s90')

def stamp_flush(S, n, wave_sgpr, slot_base, vtmp=(1,2), kern_idx=0):
    if not getattr(S, 'stamps', False): return
    S('s_load_dwordx2 s[84:85], s[0:1], 72')
    S('s_waitcnt lgkmcnt(0)')
    S(f's_add_u32 s84, s84, {0x8000000 + kern_idx*0x100000}')
    S('s_addc_u32 s85, s85, 0')
    S('s_and_b32 s85, s85, 0xffff')
    S('s_mov_b32 s86, 0x100000')
    S('s_mov_b32 s87, 0x00020000')
    S(f's_lshl_b32 s88, s2, 3')
    S(f's_add_u32 s88, s88, s{wave_sgpr}')
    S(f's_lshl_b32 s88, s88, 6')
    a_, b_ = vtmp
    S(f'v_mov_b32 v{a_}, s88')
    for i in range(n):
        S(f'v_mov_b32 v{b_}, s{92+i}')
        S(f'buffer_store_dword v{b_}, v{a_}, s[84:87], 0 offen offset:{4*i}')
        S('s_waitcnt vmcnt(0)')
```

```python
from common import *

NS = 4
ACT_BASE = 0
W_BASE = 65536
X_BASE = 131072
LDS_A = 131072 + 2048
NST = 10
QSCALE = 20 ** -0.5 * 1.4426950408889634

def f32bits(x):
    import struct
    return struct.unpack('<I', struct.pack('<f', x))[0]

def gen(A, name='phA_kernel', stamps=False):
    S = Sched(A); S.name = name; S.stamps = stamps
    kernel_header(A, name)
    S(f's_load_dwordx2 s[4:5], s[0:1], {KA_X}')
    S(f's_load_dwordx2 s[6:7], s[0:1], {KA_WQKV}')
    S(f's_load_dwordx2 s[8:9], s[0:1], {KA_WS}')
    prologue_guard(S, 256)
    S('s_and_b32 s13, s2, 7'); S('s_lshr_b32 s14, s2, 3')
    S('s_lshr_b32 s12, s13, 1'); S('s_lshl_b32 s12, s12, 2'); S('s_lshr_b32 s15, s14, 3'); S('s_add_u32 s12, s12, s15')
    S('s_cmp_ge_u32 s12, 15'); S(f's_cbranch_scc1 L_exit_{name}')
    S('v_lshrrev_b32 v1, 6, v0')
    S('s_and_b32 s11, s13, 1'); S('s_lshl_b32 s11, s11, 3'); S('s_and_b32 s15, s14, 7'); S('s_add_u32 s11, s11, s15')
    S('v_readfirstlane_b32 s10, v1')
    S('v_and_b32 v0, 63, v0')
    stamp(S, 0)
    S('s_cmp_ge_u32 s10, 4')
    S(f's_cbranch_scc1 L_prod_{name}')
    consumer(S, name)
    S.label(f'L_prod_{name}')
    S.hist = []; S.lds = []; S.vm = []; S.smem_pending = [('s', i) for i in range(4, 10)]
    producer(S, name)
    S.label(f'L_exit_{name}')
    S('s_endpgm')
    kernel_desc(A, name, 184, 102)

def dma_stage(t, pw4k, vA, vW, sx, sw):
    slot = t % NS
    out = []
    for ii in range(4):
        out.append([f's_add_u32 m0, s{pw4k}, {ACT_BASE + slot*16384 + ii*1024}',
                    f's_mov_b32 s18, {ii*10240 + t*128}',
                    f'buffer_load_dwordx4 v{vA[ii&1]}, s[{sx}:{sx+3}], s18 offen lds'])
        out.append([f's_add_u32 m0, s{pw4k}, {W_BASE + slot*16384 + ii*1024}',
                    f's_mov_b32 s18, {(t*64 + 4*ii)*3840}',
                    f'buffer_load_dwordx4 v{vW[ii>>1]}, s[{sw}:{sw+3}], s18 offen lds'])
    return out

def producer(S, name):
    vA = [2, 3]; vW = [4, 5]; t0, t1, t2 = 6, 7, 8
    S('s_sub_u32 s19, s10, 4')
    S('s_lshl_b32 s28, s19, 12')
    S(f'v_lshrrev_b32 v{t0}, 3, v0')
    S(f'v_mul_u32_u24 v{t0}, 1280, v{t0}')
    S(f'v_lshrrev_b32 v{t1}, 4, v0')
    S(f'v_and_b32 v{t2}, 7, v0')
    S(f'v_xor_b32 v{t2}, v{t2}, v{t1}')
    S('s_lshl_b32 s16, s11, 2'); S('s_add_u32 s16, s16, s19'); S(f's_mul_i32 s16, s16, {32*1280}')
    S(f'v_add_u32 v{t0}, s16, v{t0}')
    S(f'v_lshl_add_u32 v{vA[0]}, v{t2}, 4, v{t0}')
    S(f'v_xor_b32 v{vA[1]}, 64, v{vA[0]}')
    S(f's_mul_i32 s16, s19, {16*3840}'); S('s_lshl_b32 s17, s12, 8'); S('s_add_u32 s16, s16, s17')
    S(f'v_mul_u32_u24 v{t0}, 3840, v{t1}')
    S(f'v_add_u32 v{t0}, s16, v{t0}')
    S(f'v_and_b32 v{t2}, 15, v0')
    S(f'v_lshlrev_b32 v{t1}, 1, v{t1}')
    S(f'v_xor_b32 v{t2}, v{t2}, v{t1}')
    S(f'v_lshl_add_u32 v{vW[0]}, v{t2}, 4, v{t0}')
    S(f'v_xor_b32 v{vW[1]}, 128, v{vW[0]}')
    srd(S, 20, 4, 2048*1280)
    srd(S, 24, 6, 640*3840)
    def issue(t):
        for g in dma_stage(t, 28, vA, vW, 20, 24):
            for x in g: S(x, tag=t)
    issue(0)
    stamp(S, 1)
    issue(1)
    S.wait_tag(0)
    stamp(S, 2)
    S('s_barrier')
    issue(2); issue(3)
    for t in range(NST):
        if t + 1 < NST: S.wait_tag(t + 1)
        S('s_barrier')
        if t + NS < NST: issue(t + NS)
    stamp(S, 3)
    S('s_barrier')
    stamp_flush(S, 4, 10, 0)
    S('s_endpgm')

def consumer(S, name):
    vG = 1; vT = 2
    aB = [[3, 4], [5, 6]]
    aW = [7, 8, 9, 10]
    T = 11
    ACC = 24
    GR = 88
    RS = 96
    CSA = 104
    OPA = 112
    OPB = 144
    ONES = 176
    acc = lambda i, j: ACC + (i*4 + j)*4
    opa = lambda b, i: OPA + b*16 + i*4
    opb = lambda b, j: OPB + b*16 + j*4
    S('s_lshr_b32 s14, s10, 1')
    S('s_and_b32 s15, s10, 1')
    S(f'v_lshrrev_b32 v{vG}, 4, v0')
    S(f'v_and_b32 v{vT}, 15, v0')
    S(f'v_lshrrev_b32 v{T}, 1, v{vT}')
    S(f'v_xor_b32 v{T}, v{T}, v{vG}')
    S(f'v_lshlrev_b32 v{T}, 4, v{T}')
    S(f'v_lshl_add_u32 v{T}, v{vT}, 7, v{T}')
    S('s_lshl_b32 s16, s14, 2'); S('s_lshl_b32 s17, s15, 1')
    S('s_add_u32 s18, s16, s17')
    S('s_xor_b32 s19, s18, 2')
    S('s_lshl_b32 s16, s18, 11'); S('s_lshl_b32 s17, s19, 11')
    S(f'v_add_u32 v{aB[0][0]}, s16, v{T}'); S(f'v_add_u32 v{aB[0][1]}, s17, v{T}')
    S(f'v_xor_b32 v{aB[1][0]}, 64, v{aB[0][0]}'); S(f'v_xor_b32 v{aB[1][1]}, 64, v{aB[0][1]}')
    S(f'v_and_b32 v{T}, 3, v0')
    S(f'v_lshrrev_b32 v{T+1}, 2, v0'); S(f'v_and_b32 v{T+1}, 3, v{T+1}')
    S(f'v_lshl_add_u32 v{T+2}, v{vG}, 3, v{T+1}')
    S(f'v_lshlrev_b32 v{T+2}, 8, v{T+2}')
    S(f'v_add_u32 v{T+2}, {W_BASE}, v{T+2}')
    S(f'v_and_b32 v{T+3}, 1, v{vG}'); S(f'v_lshlrev_b32 v{T+3}, 3, v{T+3}')
    S(f'v_lshl_or_b32 v{T+3}, v{T+1}, 1, v{T+3}')
    S(f'v_xor_b32 v{T+3}, v{T+3}, v{T}')
    S(f'v_lshrrev_b32 v{T+4}, 1, v{T}')
    S(f'v_lshl_add_u32 v{T+2}, v{T+4}, 3, v{T+2}')
    S('s_lshl_b32 s20, s15, 1'); S('s_add_u32 s20, s20, s14'); S('s_xor_b32 s21, s20, 1')
    for z in range(2):
        S(f's_lshl_b32 s16, s{20+z}, 2')
        S(f'v_xor_b32 v{T+5}, s16, v{T+3}')
        S(f'v_lshl_add_u32 v{aW[2*z]}, v{T+5}, 4, v{T+2}')
        S(f'v_xor_b32 v{aW[2*z+1]}, 8, v{aW[2*z]}')
    for k in range(4): S(f'v_mov_b32 v{ONES+k}, 0x3f803f80')
    def reads(sig):
        t, s_ = sig >> 1, sig & 1
        slot = t % NS; b = sig & 1
        L = []
        for q in range(4):
            L.append(f'ds_read_b128 {v(opb(b,q),4)}, v{aB[s_][q>>1]} offset:{slot*16384 + (q&1)*2048}')
            for p in range(2):
                L.append(f'ds_read_b64_tr_b16 {v(opa(b,q)+2*p,2)}, v{aW[q]} offset:{slot*16384 + s_*8192 + p*1024}')
        return L
    stamp(S, 1)
    S('s_barrier')
    stamp(S, 2)
    for x in reads(0): S(x)
    for sig in range(2*NST):
        b = sig & 1
        mf = []
        def M(d, aa, bb):
            c_ = v(d,4) if sig else '0'
            mf.append(f'v_mfma_f32_16x16x32_bf16 {v(d,4)}, {v(aa,4)}, {v(bb,4)}, {c_}')
        for i in range(4):
            for j in range(4):
                M(acc(i,j), opa(b,i), opb(b,j))
            if i < 2:
                M(GR+4*i, opb(b,i), opb(b,i))
                M(RS+4*i, ONES, opb(b,i))
                M(CSA+4*i, opa(b,i), ONES)
        if b == 1:
            S.wait(lgkm=0)
            S('s_barrier')
        fl = reads(sig + 1) if sig + 1 < 2*NST else []
        S(mf[0])
        n = len(fl); k = 0
        for m in mf[1:]:
            if k < n: S(fl[k]); k += 1
            S(m)
        assert k == n
    stamp(S, 3)
    CSo = X_BASE + 1024
    S(f'v_and_b32 v{T}, 3, v0')
    S(f'v_cmp_eq_u32 s[30:31], 1, v{T}'); S(f'v_cmp_eq_u32 s[32:33], 2, v{T}'); S(f'v_cmp_eq_u32 s[34:35], 3, v{T}')
    S(f's_mov_b32 s26, 0x{f32bits(1/640):08x}'); S(f's_mov_b32 s27, 0x{f32bits(1e-5):08x}')
    S(f's_cmp_lt_u32 s12, 5'); S(f's_cselect_b32 s36, 0x{f32bits(QSCALE):08x}, 1.0')
    for j in range(2):
        q = T + 5 + 2*j + 1; m = T + 5 + 2*j
        S(f'v_cndmask_b32 v{q}, v{GR+4*j}, v{GR+4*j+1}, s[30:31]')
        S(f'v_mul_f32 v{m}, s26, v{RS+4*j}')
        S(f'v_cndmask_b32 v{q}, v{q}, v{GR+4*j+2}, s[32:33]')
        S(f'v_cndmask_b32 v{q}, v{q}, v{GR+4*j+3}, s[34:35]')
    for j in range(2):
        q = T + 5 + 2*j + 1; m = T + 5 + 2*j
        S(f'v_mul_f32 v{q}, s26, v{q}')
        S(f'v_fma_f32 v{q}, -v{m}, v{m}, v{q}')
        S(f'v_max_f32 v{q}, 0, v{q}')
        bf16_round(S, q, q)
        S(f'v_add_f32 v{q}, s27, v{q}')
        bf16_round(S, q, q)
        S(f'v_sqrt_f32 v{q}, v{q}')
        bf16_round(S, m, m)
        bf16_round(S, q, q)
        S(f'v_rcp_f32 v{q}, v{q}')
        S(f'v_mul_f32 v{q}, s36, v{q}')
    S(f'v_lshlrev_b32 v{T+1}, 3, v{vT}')
    S('s_lshl_b32 s16, s18, 7'); S('s_lshl_b32 s17, s19, 7')
    S(f's_add_u32 s16, s16, {X_BASE}'); S(f's_add_u32 s17, s17, {X_BASE}')
    S(f'v_add_u32 v{T+2}, s16, v{T+1}'); S(f'v_add_u32 v{T+3}, s17, v{T+1}')
    S('s_mov_b32 s38, 0x00F0000F'); S('s_mov_b32 s39, 0xF0000F00')
    S('s_mov_b64 exec, s[38:39]')
    for j in range(2):
        S(f'ds_write_b64 v{T+2}, {v(T+5+2*j,2)} offset:{j*128}')
    S('s_mov_b64 exec, -1')
    S(f'v_lshlrev_b32 v{T+10}, 4, v{vG}')
    S('s_lshl_b32 s16, s20, 7'); S('s_lshl_b32 s17, s21, 7')
    S(f's_add_u32 s16, s16, {CSo}'); S(f's_add_u32 s17, s17, {CSo}')
    S(f'v_add_u32 v{T+11}, s17, v{T+10}'); S(f'v_add_u32 v{T+10}, s16, v{T+10}')
    S('s_mov_b32 s38, 0x00010001'); S('s_mov_b32 s39, 0x00010001')
    S('s_mov_b64 exec, s[38:39]')
    for e in range(2):
        S(f'ds_write_b128 v{T+10}, {v(CSA+4*e,4)} offset:{e*64}')
    S('s_mov_b64 exec, -1')
    srd_off(S, 40, 8, QKV_OFF, QKV_SZ)
    VO = OPB
    for z in range(2):
        S(f's_lshl_b32 s16, s12, 2'); S(f's_add_u32 s16, s16, s{20+z}'); S('s_lshl_b32 s16, s16, 2')
        S(f'v_add_u32 v{T}, s16, v{vG}')
        S(f'v_lshlrev_b32 v{T}, 15, v{T}')
        S(f'v_lshl_add_u32 v{T}, v{vT}, 4, v{T}')
        for hf in range(2):
            S(f's_lshl_b32 s16, s11, 3'); S(f's_add_u32 s16, s16, s{18+hf}'); S('s_lshl_b32 s16, s16, 8')
            S(f'v_add_u32 v{VO+2*z+hf}, s16, v{T}')
    S.wait(lgkm=0)
    S('s_barrier')
    stamp(S, 4)
    ST = OPA
    CS2 = OPA + 8
    for j in range(4):
        S(f'ds_read_b64 {v(ST+2*j,2)}, v{T+2+(j>>1)} offset:{(j&1)*128}')
    for e in range(2):
        S(f'ds_read_b128 {v(CS2+4*e,4)}, v{T+11} offset:{e*64}')
    OUT = OPA + 16
    n = 0
    for z in range(2):
        for j in range(4):
            o = OUT + 4*(n & 3); n += 1
            for e in range(2):
                i = 2*z + e
                cs = (CSA + 4*e) if z == 0 else (CS2 + 4*e)
                a_ = acc(i, j)
                for h in range(2):
                    S(f'v_pk_fma_f32 {v(a_+2*h,2)}, {v(cs+2*h,2)}, {v(ST+2*j,2)}, {v(a_+2*h,2)} op_sel:[0,0,0] op_sel_hi:[1,0,1] neg_lo:[0,1,0] neg_hi:[0,1,0]')
                for h in range(2):
                    S(f'v_pk_mul_f32 {v(a_+2*h,2)}, {v(a_+2*h,2)}, {v(ST+2*j,2)} op_sel:[0,1] op_sel_hi:[1,1]')
                for h in range(2):
                    S(f'v_cvt_pk_bf16_f32 v{o+2*e+h}, v{a_+2*h}, v{a_+2*h+1}')
            S(f'buffer_store_dwordx4 {v(o,4)}, v{VO+2*z+(j>>1)}, s[40:43], 0 offen offset:{(j&1)*256}')
    stamp(S, 5)
    stamp_flush(S, 6, 10, 0)
    S('s_endpgm')

if __name__ == '__main__':
    A = Asm()
    A.raw(f'; @launch kernel=phA_kernel grid=(256,1,1) block=(512,1,1) lds={LDS_A}')
    A.raw('.amdgcn_target "amdgcn-amd-amdhsa--gfx950"')
    gen(A)
    open('a.s','w').write(A.text())
```

```python
from common import *

KP0 = 0; PSTR = 6208
VP0 = 31232
AUX = 62464
LDS_B = AUX + 6656
NEG = 0xF149F2CA

def gen(A, name='phB_kernel', stamps=False, nthreads=256):
    S = Sched(A); S.name = name; S.stamps = stamps
    kernel_header(A, name)
    S(f's_load_dwordx2 s[8:9], s[0:1], {KA_WS}')
    prologue_guard(S, 256)
    S('v_lshrrev_b32 v1, 6, v0')
    S('s_and_b32 s13, s2, 7'); S('s_lshr_b32 s14, s2, 3')
    S('v_readfirstlane_b32 s10, v1')
    S('v_and_b32 v0, 63, v0')
    S('s_lshr_b32 s12, s14, 4'); S('s_lshl_b32 s13, s13, 1'); S('s_add_u32 s12, s12, s13')
    S('s_and_b32 s11, s14, 15')
    stamp(S, 0)
    attention(S, name)
    S.label(f'L_exit_{name}')
    S('s_endpgm')
    kernel_desc(A, name, 256, 102)

def attention(S, name):
    S('s_and_b32 s14, s10, 1'); S('s_lshr_b32 s15, s10, 1')
    Sb = 0 + 16
    B0 = 160; B8 = 176
    OA = 192
    Q = 208
    KO = 220
    VO = 232
    aKm, aKt, aV = 2, 3, 4
    oM, oT = 5, 6
    T = 7
    vM = 248; vL = 249
    sc = lambda j, r=0: Sb + 16*j + r
    S('s_waitcnt lgkmcnt(0)')
    srd_off(S, 20, 8, QKV_OFF, QKV_SZ)
    S(f'v_lshlrev_b32 v{T}, 4, v0')
    S('s_mul_i32 s16, s12, 5')
    S('s_lshl_b32 s17, s11, 7'); S('s_sub_u32 s17, s17, 256'); S('s_lshl_b32 s17, s17, 4')
    def dma(ty, tag):
        for n in range(8):
            S(f's_lshl_b32 s18, s10, 3'); S(f's_add_u32 s18, s18, {n}'); S('s_min_u32 s18, s18, 29')
            S('s_mul_i32 s19, s18, 43'); S('s_lshr_b32 s19, s19, 8')
            S('s_mul_i32 s26, s19, 6'); S('s_sub_u32 s26, s18, s26')
            S('s_lshl_b32 s26, s26, 10')
            S(f's_mul_i32 s27, s19, {PSTR}'); S('s_add_u32 s27, s27, s26')
            S(f's_add_u32 m0, s27, {KP0 if ty == 1 else VP0}')
            S('s_add_u32 s19, s19, s16'); S(f's_add_u32 s19, s19, {80*ty}'); S('s_lshl_b32 s19, s19, 15')
            S('s_add_u32 s19, s19, s26'); S('s_add_u32 s19, s19, s17')
            S(f'buffer_load_dwordx4 v{T}, s[20:23], s19 offen lds', tag=tag)
    dma(1, 'K')
    S(f'v_and_b32 v{T+1}, 31, v0')
    S(f'v_lshrrev_b32 v{T+2}, 5, v0')
    S('s_mul_i32 s18, s14, 3'); S('s_add_u32 s18, s18, s16')
    S(f'v_add_u32 v{T+3}, s18, v{T+2}')
    S(f'v_lshlrev_b32 v{T+3}, 15, v{T+3}')
    S('s_lshl_b32 s19, s11, 1'); S('s_add_u32 s19, s19, s15'); S('s_lshl_b32 s19, s19, 10')
    S(f'v_lshl_add_u32 v{T+4}, v{T+1}, 4, s19')
    S(f'v_add_u32 v{T+3}, v{T+3}, v{T+4}')
    for b in range(2):
        S(f'buffer_load_dwordx4 {v(Q+6*b,4)}, v{T+3}, s[20:23], 0 offen offset:{512*b}', tag='Q')
    S('s_add_u32 s18, s16, 2'); S('s_lshr_b32 s35, s18, 1'); S('s_and_b32 s35, s35, 1'); S('s_xor_b32 s35, s35, s14')
    S('s_lshl_b32 s27, s18, 15'); S('s_lshl_b32 s28, s35, 3'); S('s_add_u32 s27, s27, s28')
    S(f'v_add_u32 v{T+4}, s27, v{T+4}')
    for b in range(2):
        S(f'buffer_load_dwordx2 {v(Q+6*b+4,2)}, v{T+4}, s[20:23], 0 offen offset:{512*b}', tag='Q')
    dma(2, 'V')
    S('s_mul_i32 s18, s10, 100')
    S(f'v_add_u32 v{T+5}, s18, v0')
    S('s_lshl_b32 s19, s11, 7'); S('s_sub_u32 s19, 256, s19')
    S(f'v_mov_b32 v{KO}, 0x3f80'); S(f'v_mov_b32 v{KO+1}, 0'); S(f'v_mov_b32 v{KO+3}, 0')
    S(f'v_mov_b32 v{T+3}, 0xf149')
    for k in range(2):
        S(f'v_cmp_gt_i32 vcc, s19, v{T+5}')
        S(f'v_cndmask_b32 v{KO+2}, 0, v{T+3}, vcc')
        S(f'v_lshlrev_b32 v{T+4}, 4, v{T+5}')
        if k == 1:
            S('s_mov_b32 exec_lo, -1'); S('s_mov_b32 exec_hi, 0xf') if False else None
            S('s_mov_b64 exec, 0xfffffffff') if False else None
            S('s_mov_b32 s30, -1'); S('s_mov_b32 s31, 0xf'); S('s_mov_b64 exec, s[30:31]')
        S(f'ds_write_b128 v{T+4}, {v(KO,4)} offset:{AUX}')
        if k == 0: S(f'v_add_u32 v{T+5}, 64, v{T+5}')
    S('s_mov_b64 exec, -1')
    S('s_mul_i32 s18, s14, 3')
    S(f'v_add_u32 v{T+3}, s18, v{T+2}'); S(f'v_mul_u32_u24 v{T+3}, {PSTR}, v{T+3}')
    S('s_lshl_b32 s19, s15, 10')
    S(f'v_lshl_add_u32 v{T+4}, v{T+1}, 4, s19')
    S(f'v_add_u32 v{aKm}, v{T+3}, v{T+4}')
    if KP0: S(f'v_add_u32 v{aKm}, {KP0}, v{aKm}')
    S('s_lshl_b32 s28, s35, 3'); S(f's_add_u32 s28, s28, {KP0 + 2*PSTR}')
    S(f'v_mov_b32 v{T+3}, s28'); S(f'v_mov_b32 v{T+5}, {AUX+8}')
    S(f'v_cmp_eq_u32 vcc, 0, v{T+2}')
    S(f'v_cndmask_b32 v{T+3}, v{T+5}, v{T+3}, vcc')
    S(f'v_add_u32 v{aKt}, v{T+3}, v{T+4}')
    S(f'v_and_b32 v{T+3}, 3, v0')
    S(f'v_lshrrev_b32 v{T+4}, 2, v0'); S(f'v_and_b32 v{T+4}, 3, v{T+4}')
    S(f'v_lshl_add_u32 v{T+4}, v{T+2}, 2, v{T+4}')
    S(f'v_lshlrev_b32 v{T+4}, 4, v{T+4}')
    S(f'v_add_u32 v{T+4}, s19, v{T+4}')
    S(f'v_lshrrev_b32 v{T+5}, 1, v{T+3}'); S('s_mul_i32 s18, s14, 3'); S(f'v_add_u32 v{T+5}, s18, v{T+5}')
    S(f'v_add_u32 v{T+6}, s16, v{T+5}'); S(f'v_lshrrev_b32 v{T+6}, 1, v{T+6}'); S(f'v_xor_b32 v{T+6}, v{T+6}, v{T+3}')
    S(f'v_and_b32 v{T+6}, 1, v{T+6}')
    S(f'v_mul_u32_u24 v{T+5}, {PSTR}, v{T+5}'); S(f'v_lshl_add_u32 v{T+5}, v{T+6}, 3, v{T+5}')
    S(f'v_add_u32 v{T+5}, {VP0}, v{T+5}')
    S(f's_lshl_b32 s28, s35, 3'); S(f's_add_u32 s28, s28, {VP0 + 2*PSTR}')
    S('s_lshl_b32 s29, s14, 7'); S(f's_sub_u32 s29, {AUX+192}, s29')
    S(f'v_mov_b32 v{T+6}, s29'); S(f'v_mov_b32 v{T+7}, s28')
    S(f'v_cmp_eq_u32 vcc, 0, v{T+3}'); S(f'v_cndmask_b32 v{T+6}, v{T+6}, v{T+7}, vcc')
    S(f'v_bfe_u32 v{T+7}, v0, 4, 1'); S(f'v_cmp_eq_u32 vcc, 0, v{T+7}')
    S(f'v_cndmask_b32 v{T+5}, v{T+6}, v{T+5}, vcc')
    S(f'v_add_u32 v{aV}, v{T+5}, v{T+4}')
    S(f'v_lshlrev_b32 v{T+3}, 2, v{T+2}'); S(f'v_sub_u32 v{T+3}, v{T+1}, v{T+3}')
    S(f'v_mov_b32 v{T+4}, 0x{NEG:08x}')
    for r in range(16):
        c_ = (r & 3) + 8*(r >> 2)
        S(f'v_cmp_gt_i32 vcc, {c_}, v{T+3}')
        S(f'v_cndmask_b32 v{B0+r}, v{T+4}, 0, vcc')
        S(f'v_cndmask_b32 v{B8+r}, 0, v{T+4}, vcc')
    srd_off(S, 24, 8, OF_OFF, OF_SZ)
    S('s_lshl_b32 s18, s11, 1'); S('s_add_u32 s18, s18, s15'); S('s_lshl_b32 s18, s18, 2')
    S(f'v_lshrrev_b32 v{T+3}, 4, v{T+1}'); S(f'v_add_u32 v{T+3}, s18, v{T+3}')
    S(f'v_mul_u32_u24 v{T+3}, {20*1024}, v{T+3}')
    S(f'v_and_b32 v{T+4}, 15, v0'); S(f'v_lshl_add_u32 v{T+3}, v{T+4}, 4, v{T+3}')
    S('s_lshl_b32 s18, s12, 10'); S('s_lshl_b32 s19, s14, 9'); S('s_add_u32 s18, s18, s19')
    S(f'v_lshl_add_u32 v{oM}, v{T+2}, 8, v{T+3}'); S(f'v_add_u32 v{oM}, s18, v{oM}')
    S('s_lshr_b32 s18, s12, 2'); S('s_add_u32 s18, s18, 16'); S('s_lshl_b32 s18, s18, 10')
    S('s_and_b32 s19, s12, 3'); S('s_lshl_b32 s19, s19, 8'); S('s_add_u32 s18, s18, s19')
    S('s_lshl_b32 s19, s14, 3'); S('s_add_u32 s18, s18, s19')
    S(f'v_add_u32 v{oT}, s18, v{T+3}')
    S(f'v_mov_b32 v{T+4}, 0x40000000'); S(f'v_cmp_eq_u32 vcc, 0, v{T+2}')
    S(f'v_cndmask_b32 v{oT}, v{T+4}, v{oT}, vcc')
    S.wait_tag('Q')
    S(f'v_mov_b32 v{T+4}, 0x3f80')
    for b in range(2):
        S(f'v_cndmask_b32 v{Q+6*b+4}, v{T+4}, v{Q+6*b+4}, vcc')
        S(f'v_cndmask_b32 v{Q+6*b+5}, 0, v{Q+6*b+5}, vcc')
    S.wait_tag('K')
    S.wait(lgkm=0)
    stamp(S, 1)
    S('s_barrier')
    stamp(S, 2)
    def kreads(b, j):
        buf = j & 1
        off = (32*b + 32*j)*16
        return [f'ds_read_b128 {v(KO+6*buf,4)}, v{aKm} offset:{off}',
                f'ds_read_b64 {v(KO+6*buf+4,2)}, v{aKt} offset:{off}']
    def vreads(b, j, sg):
        buf = (2*j + sg) & 3
        off = (32*b + 32*j + 16*sg)*16
        return [f'ds_read_b64_tr_b16 {v(VO+4*buf+2*p,2)}, v{aV} offset:{off + 128*p}' for p in range(2)]
    for b in range(2):
        for x in kreads(b, 0): S(x)
        def maxops(j):
            L = []
            for k in range(8):
                if j == 0 and k == 0:
                    L.append(f'v_max_f32 v{vM}, v{sc(0,0)}, v{sc(0,1)}')
                else:
                    L.append(f'v_max3_f32 v{vM if k%2==0 else vL}, v{sc(j,2*k)}, v{sc(j,2*k+1)}, v{vM if k%2==0 else vL}' if not (j == 0 and k == 1)
                             else f'v_max_f32 v{vL}, v{sc(0,2)}, v{sc(0,3)}')
            return L
        for j in range(9):
            buf = j & 1
            cin = v(B0,16) if j == 0 else (v(B8,16) if j == 8 else '0')
            if j + 1 < 9:
                nxt = kreads(b, j + 1)
            else: nxt = []
            S(f'v_mfma_f32_32x32x16_bf16 {v(sc(j),16)}, {v(KO+6*buf,4)}, {v(Q+6*b,4)}, {cin}')
            for x in nxt: S(x)
            mo = maxops(j - 2) if j >= 2 else []
            for x in mo[:4]: S(x)
            S(f'v_mfma_f32_32x32x8_bf16 {v(sc(j),16)}, {v(KO+6*buf+4,2)}, {v(Q+6*b+4,2)}, {v(sc(j),16)}')
            for x in mo[4:]: S(x)
        if b == 0:
            S.wait_tag('V');
            S('s_barrier')
        for x in vreads(b, 0, 0): S(x)
        for x in vreads(b, 0, 1): S(x)
        for x in maxops(7): S(x)
        for x in maxops(8): S(x)
        S(f'v_max_f32 v{vM}, v{vM}, v{vL}')
        S(f'v_mov_b32 v{vL}, v{vM}')
        S(f'v_permlane32_swap_b32 v{vM}, v{vL}')
        S(f'v_max_f32 v{vM}, v{vM}, v{vL}')
        if b == 0: stamp(S, 3)
        for j in range(9):
            mf = []
            for sg in range(2):
                cin = '0' if (j == 0 and sg == 0) else v(OA,16)
                mf.append(f'v_mfma_f32_32x32x16_bf16 {v(OA,16)}, {v(VO+4*((2*j+sg)&3),4)}, {v(sc(j,4*sg),4)}, {cin}')
            for sg in range(2):
                for r in range(8*sg, 8*sg + 8):
                    S(f'v_sub_f32 v{sc(j,r)}, v{sc(j,r)}, v{vM}')
                for r in range(8*sg, 8*sg + 8):
                    S(f'v_exp_f32 v{sc(j,r)}, v{sc(j,r)}')
                for k in range(4):
                    S(f'v_cvt_pk_bf16_f32 v{sc(j,4*sg+k)}, v{sc(j,8*sg+2*k)}, v{sc(j,8*sg+2*k+1)}')
                S(mf[sg])
                nj, nsg = (j, sg + 2 - 2) if False else ((2*j + sg + 2) >> 1, (2*j + sg + 2) & 1)
                if nj < 9:
                    for x in vreads(b, nj, nsg): S(x)
        S(f'v_rcp_f32 v{vL}, v{OA+12}')
        for r in range(12):
            S(f'v_mul_f32 v{OA+r}, v{OA+r}, v{vL}')
        for k in range(6):
            S(f'v_cvt_pk_bf16_f32 v{KO+k}, v{OA+2*k}, v{OA+2*k+1}')
        S(f'buffer_store_dwordx4 {v(KO,4)}, v{oM}, s[24:27], {"0" if b == 0 else "s34"} offen') if b == 0 else None
        if b == 0:
            S(f'buffer_store_dwordx2 {v(KO+4,2)}, v{oT}, s[24:27], 0 offen')
            S(f's_mov_b32 s34, {2*20*1024}')
            stamp(S, 4)
        else:
            S(f'buffer_store_dwordx4 {v(KO,4)}, v{oM}, s[24:27], s34 offen')
            S(f'buffer_store_dwordx2 {v(KO+4,2)}, v{oT}, s[24:27], s34 offen')
    stamp(S, 5)
    stamp_flush(S, 6, 10, 0, vtmp=(7, 8), kern_idx=1)

if __name__ == '__main__':
    A = Asm()
    A.raw(f'; @launch kernel=phB_kernel grid=(256,1,1) block=(256,1,1) lds={LDS_B}')
    A.raw('.amdgcn_target "amdgcn-amd-amdhsa--gfx950"')
    gen(A)
    open('b.s','w').write(A.text())
```

```python
from common import *

LDS_CE = 61440
DEP = 4

def gen(A, name='phC_kernel', mode='C', stamps=False):
    S = Sched(A); S.name = name; S.stamps = stamps
    kernel_header(A, name)
    S(f's_load_dwordx2 s[8:9], s[0:1], {KA_WS}')
    if mode == 'C': S(f's_load_dwordx2 s[4:5], s[0:1], {KA_X}')
    else: S(f's_load_dwordx2 s[4:5], s[0:1], {KA_OUT}')
    prologue_guard(S, 256)
    S('v_lshrrev_b32 v1, 6, v0')
    S('s_and_b32 s13, s2, 7'); S('s_lshr_b32 s14, s2, 3')
    S('v_readfirstlane_b32 s10, v1')
    S('v_and_b32 v0, 63, v0')
    S('s_and_b32 s11, s13, 3'); S('s_lshl_b32 s11, s11, 3'); S('s_and_b32 s15, s14, 7'); S('s_add_u32 s11, s11, s15')
    S('s_lshr_b32 s12, s13, 2'); S('s_lshl_b32 s12, s12, 2'); S('s_lshr_b32 s15, s14, 3'); S('s_add_u32 s12, s12, s15')
    stamp(S, 0)
    body(S, mode)
    S.label(f'L_exit_{name}')
    S('s_endpgm')
    kernel_desc(A, name, 256, 102)

def body(S, mode):
    C_ = mode == 'C'
    NSTEP = 20 if C_ else 54
    nst = 5 if C_ else 14
    vA0, vA1 = 1, 2
    vB = [3, 4, 5, 6]; vBz = [7, 8, 9, 10]
    vX = [11, 12, 13]; vR = 14
    vRes, vHF, vSt = 15, 16, 17
    T = 18
    ACC = 28
    RING = 108
    RES = RING
    acc = lambda nb, i: ACC + (nb*4 + i)*4
    opa = lambda d, nb: RING + d*36 + nb*4
    opb = lambda d, i: RING + d*36 + 20 + i*4
    S(f'v_lshlrev_b32 v{T}, 4, v0')
    S(f's_mul_i32 s16, s12, {NSTEP*5*1024}')
    S(f'v_add_u32 v{vA0}, s16, v{T}'); S(f'v_add_u32 v{vA1}, 4096, v{vA0}')
    for i in range(4):
        S(f's_add_u32 s16, s10, {i}'); S('s_and_b32 s16, s16, 3')
        S('s_lshl_b32 s17, s11, 2'); S('s_add_u32 s16, s16, s17'); S(f's_mul_i32 s16, s16, {NSTEP*1024}')
        S(f'v_add_u32 v{vB[i]}, s16, v{T}')
    if not C_:
        S('s_cmp_ge_u32 s10, 2'); S('s_cselect_b32 s16, 0x40000000, 0')
        for i in range(4): S(f'v_add_u32 v{vBz[i]}, s16, v{vB[i]}')
        S('s_mul_i32 s18, s10, 14'); S('s_cmp_eq_u32 s10, 3'); S('s_cselect_b32 s18, 41, s18')
    else:
        S('s_lshl_b32 s18, s10, 2')
    S('s_waitcnt lgkmcnt(0)')
    if C_:
        srd_off(S, 20, 8, WOF_OFF, WOF_SZ); srd_off(S, 24, 8, OF_OFF, OF_SZ)
    else:
        srd_off(S, 20, 8, WDF_OFF, WDF_SZ); srd_off(S, 24, 8, HP_OFF, HP_SZ)
    def loads(i):
        d = i % DEP
        if C_ and i == 4: S('s_add_u32 s19, s10, 16')
        else: S(f's_add_u32 s19, s18, {i}')
        S('s_mul_i32 s30, s19, 5120'); S('s_lshl_b32 s31, s19, 10')
        vb = vBz if (not C_ and i == nst - 1) else vB
        L = []
        for q in range(5):
            if q < 4: L.append(f'buffer_load_dwordx4 {v(opb(d,q),4)}, v{vb[q]}, s[24:27], s31 offen')
            L.append(f'buffer_load_dwordx4 {v(opa(d,q),4)}, v{vA0 if q < 4 else vA1}, s[20:23], s30 offen' + (f' offset:{q*1024}' if 0 < q < 4 else ''))
        for x in L: S(x)
    for i in range(min(DEP, nst)): loads(i)
    stamp(S, 1)
    S(f'v_and_b32 v{T+1}, 15, v0')
    S(f'v_lshrrev_b32 v{T+2}, 4, v0')
    for q in range(1, 4):
        S(f's_add_u32 s16, s10, {q}'); S('s_and_b32 s16, s16, 3'); S('s_mul_i32 s16, s16, 15'); S(f's_add_u32 s16, s16, {(q-1)*5}')
        S('s_lshl_b32 s16, s16, 10'); S(f'v_add_u32 v{vX[q-1]}, s16, v{T}')
    S(f's_mul_i32 s16, s10, {15*1024}'); S(f'v_add_u32 v{vR}, s16, v{T}')
    S('s_lshl_b32 s16, s11, 6'); S('s_lshl_b32 s17, s10, 4'); S('s_add_u32 s16, s16, s17')
    S(f'v_add_u32 v{T+3}, s16, v{T+1}')
    S(f'v_mul_u32_u24 v{vRes}, 1280, v{T+3}'); S('s_mul_i32 s17, s12, 160')
    S(f'v_lshl_add_u32 v{vRes}, v{T+2}, 3, v{vRes}'); S(f'v_add_u32 v{vRes}, s17, v{vRes}')
    S(f'v_lshrrev_b32 v{T+4}, 5, v{T+3}'); S(f'v_mul_u32_u24 v{T+4}, {40*1024}, v{T+4}')
    S(f'v_and_b32 v{T+5}, 31, v{T+3}'); S(f'v_lshl_add_u32 v{T+4}, v{T+5}, 4, v{T+4}')
    S(f'v_lshrrev_b32 v{T+5}, 1, v{T+2}'); S(f'v_lshl_add_u32 v{T+4}, v{T+5}, 9, v{T+4}')
    S(f'v_and_b32 v{T+5}, 1, v{T+2}'); S(f'v_lshl_add_u32 v{T+4}, v{T+5}, 3, v{T+4}')
    S(f's_mul_i32 s17, s12, {5*1024}'); S(f'v_add_u32 v{vHF}, s17, v{T+4}')
    if C_:
        S(f'v_lshlrev_b32 v{vSt}, 6, v{T+3}'); S('s_lshl_b32 s17, s12, 3'); S(f'v_add_u32 v{vSt}, s17, v{vSt}')
        S(f'v_mov_b32 v{T+4}, 0x40000000'); S(f'v_cmp_eq_u32 vcc, 0, v{T+2}'); S(f'v_cndmask_b32 v{vSt}, v{T+4}, v{vSt}, vcc')
        srd(S, 32, 4, 2048*1280)
        srd_off(S, 36, 8, HF_OFF, HF_SZ)
        srd_off(S, 40, 8, ST_OFF, ST_SZ)
    else:
        srd(S, 32, 4, 2048*1280)
        srd_off(S, 36, 8, HF_OFF, HF_SZ)
    RS = T + 2 if False else None
    RESR = 18
    for i in range(nst):
        d = i % DEP
        first = True
        k = 0
        for nb in range(5):
            for q in range(4):
                S(f'v_mfma_f32_16x16x32_bf16 {v(acc(nb,q),4)}, {v(opa(d,nb),4)}, {v(opb(d,q),4)}, {v(acc(nb,q),4) if i else "0"}')
        if i + DEP < nst: loads(i + DEP)
        if i == nst - DEP if nst > DEP else i == 0:
            pass
        if i == max(0, nst - 1 - DEP) + 0:
            for nb in range(5):
                if C_: S(f'buffer_load_dwordx2 {v(RESR+2*nb,2)}, v{vRes}, s[32:35], 0 offen offset:{32*nb}')
                else:
                    S(f's_mov_b32 s30, {1024*nb}')
                    S(f'buffer_load_dwordx2 {v(RESR+2*nb,2)}, v{vHF}, s[36:39], s30 offen')
    stamp(S, 2)
    for q in range(1, 4):
        for nb in range(5):
            S(f'ds_write_b128 v{vX[q-1]}, {v(acc(nb,q),4)} offset:{nb*1024}')
    S.wait(lgkm=0)
    S('s_barrier')
    RD = RING
    for q in range(3):
        for nb in range(5):
            S(f'ds_read_b128 {v(RD+(q*5+nb)*4,4)}, v{vR} offset:{(q*5+nb)*1024}')
    for q in range(3):
        for nb in range(5):
            for h in range(2):
                S(f'v_pk_add_f32 {v(acc(nb,0)+2*h,2)}, {v(acc(nb,0)+2*h,2)}, {v(RD+(q*5+nb)*4+2*h,2)}')
    stamp(S, 3)
    U = RD + 60
    PK = RD
    sum_, ssq = U + 8, U + 9
    for nb in range(5):
        a_ = acc(nb, 0)
        S(f'v_cvt_pk_bf16_f32 v{U}, v{a_}, v{a_+1}'); S(f'v_cvt_pk_bf16_f32 v{U+1}, v{a_+2}, v{a_+3}')
        for k in range(2):
            S(f'v_lshlrev_b32 v{a_+2*k}, 16, v{U+k}'); S(f'v_and_b32 v{a_+2*k+1}, 0xffff0000, v{U+k}')
            S(f'v_lshlrev_b32 v{U+2+2*k}, 16, v{RESR+2*nb+k}'); S(f'v_and_b32 v{U+3+2*k}, 0xffff0000, v{RESR+2*nb+k}')
        for h in range(2):
            S(f'v_pk_add_f32 {v(a_+2*h,2)}, {v(a_+2*h,2)}, {v(U+2+2*h,2)}')
        S(f'v_cvt_pk_bf16_f32 v{PK+2*nb}, v{a_}, v{a_+1}'); S(f'v_cvt_pk_bf16_f32 v{PK+2*nb+1}, v{a_+2}, v{a_+3}')
        if C_:
            S(f's_mov_b32 s30, {1024*nb}')
            S(f'buffer_store_dwordx2 {v(PK+2*nb,2)}, v{vHF}, s[36:39], s30 offen')
            for k in range(2):
                S(f'v_lshlrev_b32 v{a_+2*k}, 16, v{PK+2*nb+k}'); S(f'v_and_b32 v{a_+2*k+1}, 0xffff0000, v{PK+2*nb+k}')
            for k in range(4):
                if nb == 0 and k == 0:
                    S(f'v_mov_b32 v{sum_}, v{a_}'); S(f'v_mul_f32 v{ssq}, v{a_}, v{a_}')
                else:
                    S(f'v_add_f32 v{sum_}, v{sum_}, v{a_+k}'); S(f'v_fmac_f32 v{ssq}, v{a_+k}, v{a_+k}')
        else:
            S(f'buffer_store_dwordx2 {v(PK+2*nb,2)}, v{vRes}, s[32:35], 0 offen offset:{32*nb}')
    if C_:
        for x in (sum_, ssq):
            S(f'v_mov_b32 v{U}, v{x}'); S(f'v_permlane32_swap_b32 v{x}, v{U}'); S(f'v_add_f32 v{x}, v{x}, v{U}')
            S(f'v_mov_b32 v{U}, v{x}'); S(f'v_permlane16_swap_b32 v{x}, v{U}'); S(f'v_add_f32 v{x}, v{x}, v{U}')
        S(f'buffer_store_dwordx2 {v(sum_,2)}, v{vSt}, s[40:43], 0 offen')
    stamp(S, 4)
    stamp_flush(S, 5, 10, 0, vtmp=(1, 2), kern_idx=2 if C_ else 4)

if __name__ == '__main__':
    for mode in 'CE':
        A = Asm()
        A.raw(f'; @launch kernel=ph{mode}_kernel grid=(256,1,1) block=(256,1,1) lds={LDS_CE}')
        A.raw('.amdgcn_target "amdgcn-amd-amdhsa--gfx950"')
        gen(A, name=f'ph{mode}_kernel', mode=mode)
        open(f't/{mode}.s','w').write(A.text())
```

```python
from common import *
from phaseA import f32bits

NS = 4
STG = 28*1024
CSL = NS*STG
LDS_D = CSL + 1024
NST = 10
NB = 12

def gen(A, name='phD_kernel', stamps=False):
    S = Sched(A); S.name = name; S.stamps = stamps
    kernel_header(A, name)
    S(f's_load_dwordx2 s[8:9], s[0:1], {KA_WS}')
    prologue_guard(S, 256)
    S('v_lshrrev_b32 v1, 6, v0')
    S('s_and_b32 s13, s2, 7'); S('s_lshr_b32 s14, s2, 3')
    S('v_readfirstlane_b32 s10, v1')
    S('v_and_b32 v0, 63, v0')
    S('s_and_b32 s11, s13, 1'); S('s_lshl_b32 s11, s11, 3'); S('s_and_b32 s15, s14, 7'); S('s_add_u32 s11, s11, s15')
    S('s_lshr_b32 s12, s13, 1'); S('s_lshl_b32 s12, s12, 2'); S('s_lshr_b32 s15, s14, 3'); S('s_add_u32 s12, s12, s15')
    S('s_mul_i32 s12, s12, 27'); S('s_lshr_b32 s12, s12, 2')
    stamp(S, 0)
    S('s_cmp_ge_u32 s10, 4')
    S(f's_cbranch_scc1 L_prod_{name}')
    consumer(S, name)
    S.label(f'L_prod_{name}')
    S.hist = []; S.lds = []; S.vm = []; S.smem_pending = [('s', 8), ('s', 9)]
    producer(S, name)
    S.label(f'L_exit_{name}')
    S('s_endpgm')
    kernel_desc(A, name, 256, 102)

def producer(S, name):
    S('s_sub_u32 s19, s10, 4')
    S('v_lshlrev_b32 v2, 4, v0')
    S('s_mul_i32 s16, s12, 40'); S('s_add_u32 s16, s16, s19'); S('s_lshl_b32 s16, s16, 10')
    S(f's_mul_i32 s28, s19, {7*1024}')
    srd_off(S, 20, 8, WGU_OFF, WGU_SZ)
    def issue(t):
        slot = t % NS
        for f in range(7):
            S(f's_add_u32 m0, s28, {slot*STG + f*1024}', tag=t)
            S(f's_add_u32 s18, s16, {(f*40 + 4*t)*1024}', tag=t)
            S(f'buffer_load_dwordx4 v2, s[20:23], s18 offen lds', tag=t)
    issue(0); issue(1)
    srd_off(S, 24, 8, CS_OFF, CS_SZ)
    S('s_lshl_b32 s17, s19, 6'); S('v_add_u32 v3, s17, v0')
    S('v_lshrrev_b32 v4, 5, v3'); S('v_bfe_u32 v5, v3, 4, 1'); S('v_and_b32 v6, 15, v3')
    S('v_add_u32 v4, s12, v4'); S('v_lshl_add_u32 v6, v4, 4, v6')
    S('v_mul_u32_u24 v5, 1728, v5'); S('v_add_u32 v6, v6, v5'); S('v_lshlrev_b32 v6, 2, v6')
    S('v_mov_b32 v7, 0x40000000'); S('v_cmp_gt_u32 vcc, 224, v3'); S('v_cndmask_b32 v6, v7, v6, vcc')
    for p in range(5):
        S(f's_mov_b32 s18, {p*3456*4}')
        S(f'buffer_load_dword v{8+p}, v6, s[24:27], s18 offen', tag='cs')
    S.wait_tag(0)
    S('s_barrier')
    issue(2); issue(3)
    S('v_add_f32 v8, v8, v9'); S('v_add_f32 v10, v10, v11'); S('v_add_f32 v8, v8, v12'); S('v_add_f32 v8, v8, v10')
    S('v_lshlrev_b32 v3, 2, v3')
    S(f'v_add_u32 v3, {CSL}, v3')
    S('ds_write_b32 v3, v8')
    S.wait(lgkm=0)
    for t in range(NST):
        if t + 1 < NST: S.wait_tag(t + 1)
        S('s_barrier')
        if t + NS < NST: issue(t + NS)
    stamp(S, 1)
    stamp_flush(S, 2, 10, 0, kern_idx=3)
    S('s_endpgm')

def consumer(S, name):
    aW, vB, vSt, vO, vCs = 1, 2, 3, 4, 5
    T = 6
    ACC = 16
    OPA = 128
    RING = 184
    STR = 232
    acc = lambda f: ACC + 16*f
    opa = lambda b, f: OPA + b*28 + f*4
    opb = lambda ks: RING + (ks % NB)*4
    S(f'v_lshlrev_b32 v{T}, 4, v0')
    S('s_lshl_b32 s16, s11, 2'); S('s_add_u32 s16, s16, s10')
    S(f's_mul_i32 s17, s16, {40*1024}')
    S(f'v_add_u32 v{vB}, s17, v{T}')
    S('s_waitcnt lgkmcnt(0)')
    srd_off(S, 20, 8, HF_OFF, HF_SZ)
    def bload(ks):
        S(f's_mov_b32 s18, {ks*1024}')
        S(f'buffer_load_dwordx4 {v(opb(ks),4)}, v{vB}, s[20:23], s18 offen')
    for ks in range(NB): bload(ks)
    S(f'v_and_b32 v{T+1}, 31, v0'); S(f'v_lshrrev_b32 v{T+2}, 5, v0')
    S('s_lshl_b32 s17, s16, 5'); S(f'v_add_u32 v{T+3}, s17, v{T+1}')
    S(f'v_lshlrev_b32 v{vSt}, 6, v{T+3}'); S(f'v_lshl_add_u32 v{vSt}, v{T+2}, 5, v{vSt}')
    srd_off(S, 24, 8, ST_OFF, ST_SZ)
    S(f'buffer_load_dwordx4 {v(STR,4)}, v{vSt}, s[24:27], 0 offen')
    S(f'buffer_load_dwordx4 {v(STR+4,4)}, v{vSt}, s[24:27], 0 offen offset:16')
    S(f'v_bfe_u32 v{T+3}, v0, 4, 1'); S(f'v_lshlrev_b32 v{T+3}, 9, v{T+3}')
    S(f'v_lshl_add_u32 v{T+3}, v{T+2}, 8, v{T+3}'); S(f'v_and_b32 v{T+4}, 15, v0')
    S(f'v_lshl_add_u32 v{aW}, v{T+4}, 4, v{T+3}')
    S(f'v_add_u32 v{aW+0}, 0, v{aW}')
    aW2 = 240
    S(f'v_add_u32 v{aW2}, 65536, v{aW}')
    S(f'v_lshrrev_b32 v{T+3}, 4, v{T+1}'); S('s_lshl_b32 s17, s16, 1'); S(f'v_add_u32 v{T+3}, s17, v{T+3}')
    S(f'v_mul_u32_u24 v{T+3}, {54*1024}, v{T+3}')
    S(f'v_lshl_add_u32 v{T+3}, v{T+2}, 8, v{T+3}'); S(f'v_lshl_add_u32 v{vO}, v{T+4}, 4, v{T+3}')
    S(f'v_lshlrev_b32 v{vCs}, 4, v{T+2}'); S(f'v_add_u32 v{vCs}, {CSL}, v{vCs}')
    srd_off(S, 28, 8, HP_OFF, HP_SZ)
    def areads(ks):
        t, kk = ks >> 2, ks & 3
        slot = t % NS; b = ks & 1
        L = []
        for f in range(7):
            off = slot*STG + (kk*7 + f)*1024
            L.append(f'ds_read_b128 {v(opa(b,f),4)}, v{aW if off < 65536 else aW2} offset:{off & 0xffff}')
        return L
    stamp(S, 1)
    S('s_barrier')
    stamp(S, 2)
    for x in areads(0): S(x)
    for ks in range(40):
        b = ks & 1
        if (ks & 3) == 3:
            S.wait(lgkm=0)
            S('s_barrier')
        fl = areads(ks + 1) if ks + 1 < 40 else []
        for f in range(7):
            S(f'v_mfma_f32_32x32x16_bf16 {v(acc(f),16)}, {v(opa(b,f),4)}, {v(opb(ks),4)}, {v(acc(f),16) if ks else "0"}')
            if fl: S(fl[f])
            if f == 6 and ks + NB < 40: bload(ks + NB)
    stamp(S, 3)
    m, q = T, T + 1
    S(f'v_add_f32 v{m}, v{STR}, v{STR+2}'); S(f'v_add_f32 v{q}, v{STR+1}, v{STR+3}')
    S(f'v_add_f32 v{T+2}, v{STR+4}, v{STR+6}'); S(f'v_add_f32 v{T+3}, v{STR+5}, v{STR+7}')
    S(f'v_add_f32 v{m}, v{m}, v{T+2}'); S(f'v_add_f32 v{q}, v{q}, v{T+3}')
    for x in (m, q):
        S(f'v_mov_b32 v{T+2}, v{x}'); S(f'v_permlane32_swap_b32 v{x}, v{T+2}'); S(f'v_add_f32 v{x}, v{x}, v{T+2}')
    S(f's_mov_b32 s26, 0x{f32bits(1/640):08x}'); S(f's_mov_b32 s27, 0x{f32bits(1e-5):08x}')
    S(f'v_mul_f32 v{m}, s26, v{m}'); S(f'v_mul_f32 v{q}, s26, v{q}')
    S(f'v_fma_f32 v{q}, -v{m}, v{m}, v{q}'); S(f'v_max_f32 v{q}, 0, v{q}')
    bf16_round(S, q, q); S(f'v_add_f32 v{q}, s27, v{q}'); bf16_round(S, q, q)
    S(f'v_sqrt_f32 v{q}, v{q}'); bf16_round(S, m, m); bf16_round(S, q, q)
    S(f'v_rcp_f32 v{q}, v{q}')
    S(f'v_mul_f32 v{q}, v{q}, v{q}')
    CSR = OPA
    def csreads(f):
        c_ = CSR + 16*(f & 1)
        return [f'ds_read_b128 {v(c_+4*k,4)}, v{vCs} offset:{f*128 + (k>>1)*64 + (k&1)*32}' for k in range(4)]
    for x in csreads(0): S(x)
    OUT = RING
    for f in range(7):
        if f + 1 < 7:
            for x in csreads(f + 1): S(x)
        c_ = CSR + 16*(f & 1); a_ = acc(f); o = OUT + 4*(f & 3)
        for k in range(8):
            S(f'v_pk_fma_f32 {v(a_+2*k,2)}, {v(c_+2*k,2)}, {v(m,2)}, {v(a_+2*k,2)} op_sel:[0,0,0] op_sel_hi:[1,0,1] neg_lo:[0,1,0] neg_hi:[0,1,0]')
        for k in range(4):
            S(f'v_pk_mul_f32 {v(a_+2*k,2)}, {v(a_+2*k,2)}, {v(a_+8+2*k,2)}')
        for k in range(4):
            S(f'v_pk_mul_f32 {v(a_+2*k,2)}, {v(a_+2*k,2)}, {v(m,2)} op_sel:[0,1] op_sel_hi:[1,1]')
        for k in range(4):
            S(f'v_cvt_pk_bf16_f32 v{o+k}, v{a_+2*k}, v{a_+2*k+1}')
        S(f's_add_u32 s16, s12, {f}'); S('s_lshr_b32 s17, s16, 1'); S('s_lshl_b32 s17, s17, 10')
        S('s_and_b32 s16, s16, 1'); S('s_lshl_b32 s16, s16, 9'); S('s_add_u32 s16, s16, s17')
        S(f'buffer_store_dwordx4 {v(o,4)}, v{vO}, s[28:31], s16 offen')
    stamp(S, 4)
    stamp_flush(S, 5, 10, 0, vtmp=(1, 2), kern_idx=3)
    S('s_endpgm')

if __name__ == '__main__':
    A = Asm()
    A.raw(f'; @launch kernel=phD_kernel grid=(256,1,1) block=(512,1,1) lds={LDS_D}')
    A.raw('.amdgcn_target "amdgcn-amd-amdhsa--gfx950"')
    gen(A)
    open('d.s','w').write(A.text())
```

```python
from common import *

LDS_R = 4*16384

def div5(S, d, src, tmp):
    S(f's_mul_i32 s{d}, s{src}, 52429'); S(f's_lshr_b32 s{d}, s{d}, 18')
    S(f's_mul_i32 s{tmp}, s{d}, 5'); S(f's_sub_u32 s{tmp}, s{src}, s{tmp}')

def gen(A, name='phR_kernel', stamps=False):
    S = Sched(A); S.name = name; S.stamps = stamps
    kernel_header(A, name)
    S(f's_load_dwordx2 s[8:9], s[0:1], {KA_WS}')
    prologue_guard(S, 256)
    S('v_lshrrev_b32 v1, 6, v0')
    S('v_readfirstlane_b32 s10, v1')
    S('v_and_b32 v0, 63, v0')
    stamp(S, 0)
    repack(S, name, 10, 0)
    stamp_flush(S, 1, 10, 0, kern_idx=5)
    S.label(f'L_exit_{name}')
    S('s_endpgm')
    kernel_desc(A, name, 128, 102)

def repack(S, name, sw, lds_base, T=1):
    S(f's_lshl_b32 s11, s{sw}, 8'); S('s_add_u32 s11, s11, s2')
    S(f's_lshl_b32 s12, s{sw}, 14')
    if lds_base: S(f's_add_u32 s12, s12, {lds_base}')
    S('s_cmp_ge_u32 s11, 640'); S(f's_cbranch_scc1 L_rdone_{name}')
    S('s_cmp_ge_u32 s11, 270'); S(f's_cbranch_scc1 L_rdo_{name}')
    S('s_cmp_ge_u32 s11, 135'); S('s_cselect_b32 s13, 1, 0')
    S('s_mul_i32 s14, s13, 135'); S('s_sub_u32 s14, s11, s14')
    div5(S, 15, 14, 16)
    S('s_lshl_b32 s17, s13, 3'); S(f's_add_u32 s17, s17, {KA_WG}')
    S('s_load_dwordx2 s[4:5], s[0:1], s17')
    vA = [T, T+1]; t = T + 2
    S(f'v_lshrrev_b32 v{t}, 3, v0')
    S(f'v_and_b32 v{t+1}, 2, v{t}'); S(f'v_and_b32 v{t+2}, 7, v0'); S(f'v_xor_b32 v{t+1}, v{t+1}, v{t+2}')
    S(f'v_mul_u32_u24 v{t}, 3456, v{t}')
    S(f'v_lshl_add_u32 v{vA[0]}, v{t+1}, 4, v{t}')
    S('s_lshl_b32 s18, s15, 7'); S(f'v_add_u32 v{vA[0]}, s18, v{vA[0]}')
    S(f'v_xor_b32 v{vA[1]}, 64, v{vA[0]}')
    S('s_waitcnt lgkmcnt(0)')
    srd(S, 20, 4, 640*3456)
    S(f's_mul_i32 s19, s16, {128*3456}')
    for i in range(16):
        S(f's_add_u32 m0, s12, {i*1024}')
        S(f's_add_u32 s18, s19, {8*i*3456}')
        S(f'buffer_load_dwordx4 v{vA[i&1]}, s[20:23], s18 offen lds', tag='p')
    aT = T + 2
    t = T + 6
    S(f'v_lshrrev_b32 v{t}, 4, v0')
    S(f'v_lshrrev_b32 v{t+1}, 2, v0'); S(f'v_and_b32 v{t+1}, 3, v{t+1}')
    S(f'v_and_b32 v{t+2}, 3, v0')
    S(f'v_lshl_add_u32 v{t+3}, v{t}, 3, v{t+1}'); S(f'v_lshlrev_b32 v{t+3}, 7, v{t+3}')
    S(f'v_and_b32 v{t+4}, 1, v{t}'); S(f'v_lshlrev_b32 v{t+4}, 2, v{t+4}')
    S(f'v_and_b32 v{t+5}, 2, v{t+1}'); S(f'v_or_b32 v{t+4}, v{t+4}, v{t+5}')
    S(f'v_lshrrev_b32 v{t+5}, 1, v{t+2}'); S(f'v_xor_b32 v{t+4}, v{t+4}, v{t+5}')
    S(f'v_lshl_add_u32 v{t+3}, v{t+4}, 4, v{t+3}')
    S(f'v_and_b32 v{t+5}, 1, v{t+2}'); S(f'v_lshl_add_u32 v{t+3}, v{t+5}, 3, v{t+3}')
    S(f'v_add_u32 v{aT}, s12, v{t+3}')
    for f in range(1, 4): S(f'v_xor_b32 v{aT+f}, {f<<5}, v{aT}')
    vS = T + 6
    S(f'v_lshrrev_b32 v{t+1}, 1, v{t}'); S(f'v_lshlrev_b32 v{t+1}, 10, v{t+1}')
    S(f'v_and_b32 v{t+2}, 1, v{t}'); S(f'v_lshl_add_u32 v{t+1}, v{t+2}, 8, v{t+1}')
    S(f'v_and_b32 v{t+2}, 15, v0'); S(f'v_lshl_add_u32 v{t+1}, v{t+2}, 4, v{t+1}')
    S(f'v_lshlrev_b32 v{t+3}, 4, v{t}'); S(f'v_mov_b32 v{t+4}, 0x40000000')
    S(f'v_cmp_eq_u32 vcc, 0, v{t+2}'); S(f'v_cndmask_b32 v{t+3}, v{t+4}, v{t+3}, vcc')
    S(f'v_mov_b32 v{vS}, v{t+1}'); vC = vS + 1; S(f'v_mov_b32 v{vC}, v{t+3}')
    srd_off(S, 24, 8, WGU_OFF, WGU_SZ)
    srd_off(S, 28, 8, CS_OFF, CS_SZ)
    S('s_mul_i32 s18, s15, 160'); S('s_lshl_b32 s19, s16, 3'); S('s_add_u32 s18, s18, s19'); S('s_lshl_b32 s18, s18, 10')
    S('s_lshl_b32 s19, s13, 9'); S('s_add_u32 s33, s18, s19')
    ON = T + 9 + ((T + 9) & 1); FR = ON + 4; AC = FR + 16*4
    for k in range(4): S(f'v_mov_b32 v{ON+k}, 0x3f803f80')
    S.wait_tag('p')
    for kap in range(4):
        for f in range(4):
            fr = FR + 4*((4*kap + f) & 15)
            for p in range(2):
                S(f'ds_read_b64_tr_b16 {v(fr+2*p,2)}, v{aT+f} offset:{kap*4096 + p*512}')
    for kap in range(4):
        for f in range(4):
            fr = FR + 4*((4*kap + f) & 15)
            S(f's_add_u32 s18, s33, {(f*40 + 2*kap)*1024}')
            S(f'buffer_store_dwordx4 {v(fr,4)}, v{vS}, s[24:27], s18 offen')
            S(f'v_mfma_f32_16x16x32_bf16 {v(AC+4*f,4)}, {v(fr,4)}, {v(ON,4)}, {v(AC+4*f,4) if kap else "0"}')
    S('s_mul_i32 s18, s16, 3456'); S('s_mul_i32 s19, s13, 1728'); S('s_add_u32 s18, s18, s19')
    S('s_lshl_b32 s19, s15, 6'); S('s_add_u32 s18, s18, s19'); S('s_lshl_b32 s18, s18, 2')
    for f in range(4):
        S(f'buffer_store_dwordx4 {v(AC+4*f,4)}, v{vC}, s[28:31], s18 offen offset:{64*f}')
    S(f's_branch L_rdone_{name}')
    S.label(f'L_rdo_{name}')
    S.hist = []; S.lds = []; S.vm = []
    S('s_cmp_ge_u32 s11, 540'); S('s_cselect_b32 s13, 1, 0')
    S('s_mul_i32 s14, s13, 270'); S('s_add_u32 s14, s14, 270'); S('s_sub_u32 s14, s11, s14')
    div5(S, 15, 14, 16)
    S(f's_cmp_eq_u32 s13, 1'); S(f's_cselect_b32 s17, {KA_WO}, {KA_WD}') if False else None
    S(f's_mov_b32 s17, {KA_WD}'); S('s_cmp_eq_u32 s13, 1'); S(f's_cselect_b32 s17, {KA_WO}, s17')
    S('s_load_dwordx2 s[4:5], s[0:1], s17')
    S('s_lshl_b32 s34, s15, 5'); S('s_mov_b32 s35, 16'); S('s_mov_b32 s36, 4'); S('s_mov_b32 s37, 8')
    S('s_cmp_eq_u32 s13, 0'); S(f's_cbranch_scc1 L_rrow_{name}')
    S('s_mul_i32 s34, s15, 40'); S('s_mov_b32 s35, 24')
    S('s_cmp_lt_u32 s15, 16'); S(f's_cbranch_scc1 L_rrow_{name}')
    S('s_sub_u32 s34, s15, 16'); S('s_mul_i32 s34, s34, 160'); S('s_add_u32 s34, s34, 16')
    S('s_mov_b32 s35, 80'); S('s_mov_b32 s36, 40'); S('s_mov_b32 s37, 4')
    S.label(f'L_rrow_{name}')
    vA = [T, T+1]; t = T + 2
    S(f'v_lshrrev_b32 v{t}, 4, v0')
    S(f'v_lshlrev_b32 v{t+1}, 1, v{t}'); S(f'v_and_b32 v{t+2}, 15, v0'); S(f'v_xor_b32 v{t+1}, v{t+1}, v{t+2}')
    S(f'v_mul_u32_u24 v{t}, 1280, v{t}')
    S(f'v_lshl_add_u32 v{vA[0]}, v{t+1}, 4, v{t}')
    S('s_lshl_b32 s18, s16, 8'); S(f'v_add_u32 v{vA[0]}, s18, v{vA[0]}')
    S(f'v_xor_b32 v{vA[1]}, 128, v{vA[0]}')
    for k in (34, 35, 36, 37): S(f's_mul_i32 s{k}, s{k}, 1280')
    S('s_waitcnt lgkmcnt(0)')
    S('s_cmp_eq_u32 s13, 1'); S(f's_cselect_b32 s18, {640*1280}, {1728*1280}') if False else None
    S(f's_mov_b32 s18, {1728*1280}'); S('s_cmp_eq_u32 s13, 1'); S(f's_cselect_b32 s18, {640*1280}, s18')
    S('s_mov_b32 s20, s4'); S('s_and_b32 s21, s5, 0xffff'); S('s_mov_b32 s22, s18'); S('s_mov_b32 s23, 0x00020000')
    for i in range(8):
        S('s_mov_b32 s18, s34')
        if i >> 2: S('s_add_u32 s18, s18, s35')
        if (i >> 1) & 1: S('s_add_u32 s18, s18, s36')
        if i & 1: S('s_add_u32 s18, s18, s37')
        S(f's_add_u32 m0, s12, {i*1024}')
        S(f'buffer_load_dwordx4 v{vA[(i>>1)&1]}, s[20:23], s18 offen lds', tag='p')
    aT = T + 2; t = T + 10
    S(f'v_lshrrev_b32 v{t}, 4, v0')
    S(f'v_lshrrev_b32 v{t+1}, 2, v0'); S(f'v_and_b32 v{t+1}, 3, v{t+1}')
    S(f'v_and_b32 v{t+2}, 3, v0')
    S(f'v_lshl_add_u32 v{t+3}, v{t}, 3, v{t+1}'); S(f'v_lshlrev_b32 v{t+3}, 8, v{t+3}')
    S(f'v_and_b32 v{t+4}, 1, v{t}'); S(f'v_lshlrev_b32 v{t+4}, 3, v{t+4}')
    S(f'v_lshl_or_b32 v{t+4}, v{t+1}, 1, v{t+4}')
    S(f'v_lshrrev_b32 v{t+5}, 1, v{t+2}'); S(f'v_xor_b32 v{t+4}, v{t+4}, v{t+5}')
    S(f'v_lshl_add_u32 v{t+3}, v{t+4}, 4, v{t+3}')
    S(f'v_and_b32 v{t+5}, 1, v{t+2}'); S(f'v_lshl_add_u32 v{t+3}, v{t+5}, 3, v{t+3}')
    S(f'v_add_u32 v{aT}, s12, v{t+3}')
    for f in range(1, 8): S(f'v_xor_b32 v{aT+f}, {f<<5}, v{aT}')
    vS = t
    S(f'v_lshlrev_b32 v{vS}, 4, v0')
    S(f's_mov_b32 s18, {WDF_OFF}'); S('s_cmp_eq_u32 s13, 1'); S(f's_cselect_b32 s18, {WOF_OFF}, s18')
    S('s_add_u32 s24, s8, s18'); S('s_addc_u32 s25, s9, 0'); S('s_and_b32 s25, s25, 0xffff')
    S(f's_mov_b32 s26, {WDF_SZ}'); S('s_cmp_eq_u32 s13, 1'); S(f's_cselect_b32 s26, {WOF_SZ}, s26'); S('s_mov_b32 s27, 0x00020000')
    S('s_mov_b32 s33, 54'); S('s_cmp_eq_u32 s13, 1'); S('s_cselect_b32 s33, 20, s33')
    FR = T + 18 + ((T + 18) & 1)
    S.wait_tag('p')
    for f in range(8):
        for p in range(2):
            S(f'ds_read_b64_tr_b16 {v(FR+4*f+2*p,2)}, v{aT+f} offset:{p*1024}')
    for f in range(8):
        S(f's_lshl_b32 s34, s16, 3'); S(f's_add_u32 s34, s34, {f}')
        div5(S, 35, 34, 36)
        S('s_mul_i32 s35, s35, s33'); S('s_add_u32 s35, s35, s15'); S('s_mul_i32 s35, s35, 5'); S('s_add_u32 s35, s35, s36')
        S('s_lshl_b32 s35, s35, 10')
        S(f'buffer_store_dwordx4 {v(FR+4*f,4)}, v{vS}, s[24:27], s35 offen')
    S.label(f'L_rdone_{name}')

if __name__ == '__main__':
    A = Asm()
    A.raw(f'; @launch kernel=phR_kernel grid=(256,1,1) block=(256,1,1) lds={LDS_R}')
    A.raw('.amdgcn_target "amdgcn-amd-amdhsa--gfx950"')
    gen(A)
    open('r.s','w').write(A.text())
```

```python
import re, os
SMOD = os.environ.get('SMOD', '')

RE_REG = re.compile(r'^(-?|abs\()?([vas])(\d+)\)?$')
RE_RNG = re.compile(r'^(-?)([vas])\[(\d+):(\d+)\]$')

def regs_of(op):
    op = op.strip()
    if op.startswith('-'): op = op[1:]
    if op.startswith('abs(') and op.endswith(')'): op = op[4:-1]
    if op.startswith('|') and op.endswith('|'): op = op[1:-1]
    m = re.match(r'^([vas])(\d+)$', op)
    if m:
        k, n = m.group(1), int(m.group(2))
        if k == 'a': return [('v', 256 + n)]
        return [(k, n)]
    m = re.match(r'^([vas])\[(\d+):(\d+)\]$', op)
    if m:
        k, lo, hi = m.group(1), int(m.group(2)), int(m.group(3))
        if k == 'a': return [('v', 256 + i) for i in range(lo, hi + 1)]
        return [(k, i) for i in range(lo, hi + 1)]
    if op == 'vcc': return [('x', 'vcc')]
    if op == 'exec': return [('x', 'exec')]
    if op == 'm0': return [('x', 'm0')]
    return []

TRANS = ('v_exp_f32', 'v_log_f32', 'v_rcp_f32', 'v_rsq_f32', 'v_sqrt_f32', 'v_sin_f32', 'v_cos_f32', 'v_rcp_iflag_f32')

class I:
    __slots__ = ('text', 'op', 'kind', 'w', 'r', 'passes', 'srcc', 'tag', 'ab')
    def __init__(self, text):
        self.text = text
        self.tag = None
        t = text.split(';')[0].strip()
        parts = t.split(None, 1)
        self.op = op = parts[0]
        ops = []
        if len(parts) > 1:
            raw = [x.strip() for x in parts[1].split(',')]
            for i, x in enumerate(raw):
                ops.append(x.split()[0] if x else x)
        self.w, self.r, self.passes, self.srcc, self.ab = [], [], 0, [], []
        R = regs_of
        if op.startswith('v_mfma'):
            self.kind = 'mfma'
            self.w = R(ops[0]); self.ab = R(ops[1]) + R(ops[2]); self.srcc = R(ops[3])
            self.r = self.ab + self.srcc
            self.passes = 8 if '32x32' in op else 4
        elif op.startswith('ds_read') or op.startswith('ds_bpermute') or op.startswith('ds_permute') or op.startswith('ds_swizzle'):
            self.kind = 'dsr'
            self.w = R(ops[0]); self.r = sum((R(o) for o in ops[1:]), [])
        elif op.startswith('ds_write'):
            self.kind = 'dsw'
            self.r = sum((R(o) for o in ops), [])
        elif op.startswith('buffer_load') or op.startswith('global_load'):
            if ' lds' in t or '_lds_' in op:
                self.kind = 'dma'
                self.r = sum((R(o) for o in ops), []) + [('x', 'm0')]
            else:
                self.kind = 'vld'
                self.w = R(ops[0]); self.r = sum((R(o) for o in ops[1:]), [])
        elif op.startswith('buffer_store') or op.startswith('global_store'):
            self.kind = 'vst'
            self.r = sum((R(o) for o in ops), [])
        elif op.startswith('buffer_atomic') or op.startswith('global_atomic'):
            self.kind = 'vat'
            self.r = sum((R(o) for o in ops), [])
            if ' sc0' in t: self.w = R(ops[0])
        elif op in ('buffer_inv', 'buffer_wbl2'):
            self.kind = 'vst'
        elif op.startswith('s_load') or op.startswith('s_memtime') or op.startswith('s_memrealtime') or op.startswith('s_buffer_load'):
            self.kind = 'smem'
            self.w = R(ops[0]); self.r = sum((R(o) for o in ops[1:]), [])
        elif op in ('s_waitcnt', 's_nop', 's_barrier', 's_endpgm', 's_setprio', 's_sleep'):
            self.kind = op
        elif op.startswith('s_cbranch') or op == 's_branch':
            self.kind = 'branch'
        elif op.startswith('s_cmp') or op.startswith('s_bitcmp'):
            self.kind = 'salu'; self.r = sum((R(o) for o in ops), [])
        elif op.startswith('s_'):
            self.kind = 'salu'
            self.w = R(ops[0]) if ops else []
            self.r = sum((R(o) for o in ops[1:]), [])
            if 'saveexec' in op:
                self.w = self.w + [('x', 'exec')]; self.r = self.r + [('x', 'exec')]
        elif op.startswith('v_'):
            self.kind = 'valu'
            self.w = R(ops[0]); self.r = sum((R(o) for o in ops[1:]), [])
            if op.startswith('v_permlane') and 'swap' in op:
                self.w = R(ops[0]) + R(ops[1]); self.r = R(ops[0]) + R(ops[1])
            if op.startswith('v_fmac') or op.startswith('v_dot2c') or op.startswith('v_pk_fmac') or op.startswith('v_writelane'):
                self.r = self.r + R(ops[0])
            if op.startswith('v_cmpx'):
                self.w = self.w + [('x', 'exec')]
            if op.startswith('v_cndmask') and len(ops) == 3:
                self.r = self.r + [('x', 'vcc')]
            if ('_co_' in op) and len(ops) >= 2:
                self.w = R(ops[0]) + R(ops[1]); self.r = sum((R(o) for o in ops[2:]), [])
            if '_dpp' in op or 'row_' in t or 'quad_perm' in t:
                self.r = self.r + R(ops[0])
        else:
            raise ValueError('unknown instr: ' + text)
    def is_trans(self): return self.op.split('_e32')[0].split('_e64')[0] in TRANS
    def is_dpp(self): return ('_dpp' in self.op) or ('row_' in self.text) or ('quad_perm' in self.text)

class Sched:
    def __init__(self, A):
        self.A = A
        self.hist = []
        self.lds = []
        self.vm = []
        self.smem_pending = []
        self.nnop = 0
    def _emit(self, text, states=1, ins=None):
        self.A.raw('  ' + text)
        for _ in range(states):
            self.hist.append(ins)
            ins = None
        if len(self.hist) > 64: self.hist = self.hist[-40:]
    def nop(self, n):
        while n > 0:
            k = min(n, 16)
            self._emit(f's_nop {k-1}', states=k); self.nnop += k
            n -= k
    def wait(self, vm=None, lgkm=None):
        parts = []
        if vm is not None:
            vm = min(vm, 63)
            if len(self.vm) > vm:
                parts.append(f'vmcnt({vm})'); self.vm = self.vm[len(self.vm) - vm:] if vm > 0 else []
        if lgkm is not None:
            lgkm = min(lgkm, 15)
            if len(self.lds) > lgkm or (lgkm == 0 and self.smem_pending):
                parts.append(f'lgkmcnt({lgkm})'); self.lds = self.lds[len(self.lds) - lgkm:] if lgkm > 0 else []
                if lgkm == 0: self.smem_pending = []
        if parts:
            self._emit('s_waitcnt ' + ' '.join(parts))
    def wait_tag(self, tag):
        idx = -1
        for i, x in enumerate(self.vm):
            if x.tag == tag or (isinstance(tag, (set, list, tuple)) and x.tag in tag): idx = i
        if idx >= 0:
            self.wait(vm=len(self.vm) - 1 - idx)
    def label(self, name):
        self.A.label(name)
    def fence(self):
        self.nop(12)
    def __call__(self, text, tag=None):
        for line in text.split('\n'):
            line = line.strip()
            if line: self.one(line, tag)
    def one(self, text, tag=None):
        if SMOD and text.startswith('buffer_store') and not getattr(self, 'nosmod', False): text = text + ' ' + SMOD
        ins = I(text); ins.tag = tag
        k = ins.kind
        if k == 's_waitcnt':
            m = re.search(r'vmcnt\((\d+)\)', text); vm = int(m.group(1)) if m else None
            m = re.search(r'lgkmcnt\((\d+)\)', text); lg = int(m.group(1)) if m else None
            self._emit(text)
            if vm is not None: self.vm = self.vm[len(self.vm) - vm:] if vm > 0 and len(self.vm) > vm else ([] if vm == 0 else self.vm)
            if lg is not None:
                self.lds = self.lds[len(self.lds) - lg:] if lg > 0 and len(self.lds) > lg else ([] if lg == 0 else self.lds)
                if lg == 0: self.smem_pending = []
            return
        if k == 's_nop':
            n = int(text.split()[1]) + 1
            self._emit(text, states=n); return
        touched = set(ins.r) | set(ins.w)
        need_l = None; need_v = None
        for i, x in enumerate(self.lds):
            if set(x.w) & touched: need_l = len(self.lds) - 1 - i
        for i, x in enumerate(self.vm):
            if set(x.w) & touched: need_v = len(self.vm) - 1 - i
        if self.smem_pending and (set(self.smem_pending) & touched):
            need_l = 0
        if self.smem_pending and need_l is not None: need_l = 0
        if need_l is not None or need_v is not None:
            self.wait(vm=need_v, lgkm=need_l)
        need = 0
        rs, ws = set(ins.r), set(ins.w)
        vr = {x for x in rs if x[0] == 'v'}; vw = {x for x in ws if x[0] == 'v'}
        sr = {x for x in rs if x[0] == 's' or x == ('x', 'vcc')}
        for d, p in enumerate(reversed(self.hist)):
            if p is None: continue
            if d > 20: break
            pw = set(p.w)
            req = 0
            if p.kind == 'mfma':
                big = p.passes == 8
                if k == 'mfma':
                    if pw & set(ins.srcc):
                        same = (p.w == ins.srcc and p.passes == ins.passes)
                        req = max(req, 0 if same else (10 if big else 6))
                    if pw & set(ins.ab): req = max(req, 12 if big else 8)
                    if (pw & ws) and not (p.w == ins.w and p.passes == ins.passes): req = max(req, 10 if big else 6)
                elif k in ('valu', 'dsr', 'dsw', 'vld', 'vst', 'vat', 'dma'):
                    if pw & (vr | vw): req = max(req, 12 if big else 8)
                    if k == 'valu' and (set(p.srcc) & vw): req = max(req, 7 if big else 3)
                    if k in ('dsr', 'vld') and (set(p.srcc) & vw): req = max(req, 7 if big else 3)
            elif p.kind == 'valu':
                pv = {x for x in pw if x[0] == 'v'}
                ps = {x for x in pw if x[0] == 's' or x == ('x', 'vcc')}
                if k == 'mfma' and (pv & rs): req = max(req, 2)
                if k == 'mfma' and ('x', 'exec') in pw: req = max(req, 4)
                if k in ('vld', 'vst', 'vat', 'dma') and (ps & rs): req = max(req, 5)
                if k == 'valu':
                    if ps & sr:
                        req = max(req, 4 if ins.op.startswith(('v_readlane', 'v_writelane')) else 2)
                    if ins.op.startswith(('v_readlane', 'v_readfirstlane')) and (pv & vr): req = max(req, 1)
                    if ins.op.startswith('v_permlane') and (pv & vr): req = max(req, 2)
                    if ins.is_dpp() and (pv & vr): req = max(req, 2)
                    if ins.is_dpp() and ('x', 'exec') in pw: req = max(req, 5)
                    if p.is_trans() and not ins.is_trans() and (pv & vr): req = max(req, 1)
                    if ('x', 'exec') in pw and ins.op.startswith(('v_readlane', 'v_readfirstlane', 'v_writelane', 'v_permlane')): req = max(req, 4)
                if k == 'salu' and (ps & rs): req = max(req, 4)
                if k == 'branch' and ('x', 'vcc') in pw: req = max(req, 5)
            elif p.kind == 'salu':
                if ('x', 'm0') in pw and k == 'dma': req = max(req, 1)
            elif p.kind == 'vst':
                if ('x3' in p.op or 'x4' in p.op) and (set(p.r) & vw) and k in ('valu', 'dsr', 'vld', 'mfma'): req = max(req, 2)
            if req > d: need = max(need, req - d)
        if need: self.nop(need)
        self._emit(text, ins=ins)
        if k in ('dsr', 'dsw'): self.lds.append(ins)
        elif k in ('vld', 'vst', 'vat', 'dma'): self.vm.append(ins)
        elif k == 'smem': self.smem_pending += ins.w; self.lds.append(ins)
```

```python
import sys
sys.path.insert(0, 'gen')
from common import *
import phaseA, phaseB, phaseCE, phaseD, phaseR
def build(path, parts):
    ref = open(f'cdna_kernels/{KN}.s.ref').read().split('\n')
    hdr = []
    for l in ref:
        if l.startswith('; Override launch'): break
        hdr.append(l)
    A = Asm()
    for l in hdr: A.raw(l)
    for (mod, nm, grid, blk, lds, kw) in parts:
        A.raw(f'; @launch kernel={nm} grid=({grid},1,1) block=({blk},1,1) lds={lds}')
    A.raw('.amdgcn_target "amdgcn-amd-amdhsa--gfx950"')
    done = set()
    for (mod, nm, grid, blk, lds, kw) in parts:
        if nm in done: continue
        done.add(nm); mod.gen(A, name=nm, **kw)
    open(path, 'w').write(A.text())
PARTS = [
    (phaseA, 'phA_kernel', 256, 512, phaseA.LDS_A, {}),
    (phaseB, 'phB_kernel', 256, phaseB.THREADS_B, phaseB.LDS_B, {}),
    (phaseCE, 'phC_kernel', 256, phaseCE.threads('C'), phaseCE.lds_bytes('C'), dict(mode='C')),
    (phaseD, 'phD_kernel', 256, 512, phaseD.LDS_D, {}),
    (phaseCE, 'phE_kernel', 256, phaseCE.threads('E'), phaseCE.lds_bytes('E'), dict(mode='E')),
]
if not phaseB.MERGE: PARTS.insert(1, (phaseR, 'phR_kernel', 256, 256, phaseR.LDS_R, {}))
if __name__ == '__main__':
    build(f'cdna_kernels/{KN}.s', PARTS)
```

```python
import sys; sys.path.insert(0,'gen')
from build import *
import phaseN
N = (phaseN, 'phN_kernel', 256, 256, 0, {})
P = PARTS
build('x1.s', P + [N]*6)
build('x2.s', P + [P[5]])
build('x3.s', [P[0]] + P)
build('x4.s', P[:5] + [P[4]] + [P[5]])
build('x5.s', [N] + P)
build('x6.s', P + P)
```

```python
from asmlib import *
from sched import Sched

KN = 'sequential_preLN__sliding_block__glu_gated_bilinear__prompt'
KA_X, KA_WQKV, KA_WO, KA_BX, KA_WG, KA_WU, KA_WD, KA_OUT, KA_DBG, KA_WS = 0, 8, 16, 24, 32, 40, 48, 56, 64, 72
QKV_OFF = 0;          QKV_SZ = 240*2048*16
OF_OFF  = 0x800000;   OF_SZ = 128*20*1024
HF_OFF  = 0xB00000;   HF_SZ = 64*40*1024
ST_OFF  = 0xE00000;   ST_SZ = 2048*8*8
CS_OFF  = 0xE40000;   CS_SZ = 5*3456*4
HP_OFF  = 0x1000000;  HP_SZ = 128*54*1024
WGU_OFF = 0x1800000; WGU_SZ = 108*40*1024
WDF_OFF = 0x1D00000; WDF_SZ = 8*54*5*1024
WOF_OFF = 0x2000000; WOF_SZ = 8*20*5*1024
S_, D_, F_ = 2048, 640, 1728

def srd_off(S, d, base, off, nbytes):
    if off:
        S(f's_add_u32 s{d}, s{base}, {off}')
        S(f's_addc_u32 s{d+1}, s{base+1}, 0')
        S(f's_and_b32 s{d+1}, s{d+1}, 0xffff')
    else:
        S(f's_mov_b32 s{d}, s{base}')
        S(f's_and_b32 s{d+1}, s{base+1}, 0xffff')
    S(f's_mov_b32 s{d+2}, {nbytes}')
    S(f's_mov_b32 s{d+3}, 0x00020000')

class LdsAddr:
    def __init__(self, S, regs):
        self.S = S; self.regs = regs
    def finish(self):
        for k in range(1, len(self.regs)):
            self.S(f'v_add_u32 v{self.regs[k]}, {65536*k}, v{self.regs[0]}')
    def at(self, c):
        k = c >> 16
        return f'v{self.regs[k]} offset:{c & 0xffff}' if (c & 0xffff) else f'v{self.regs[k]}'

def bf16_round(S, dst, src):
    S(f'v_cvt_pk_bf16_f32 v{dst}, v{src}, v{src}')
    S(f'v_lshlrev_b32 v{dst}, 16, v{dst}')

def interleave(S, mfmas, fillers, start=0):
    n = len(mfmas); m = len(fillers); k = 0
    for i, mf in enumerate(mfmas):
        S(mf)
        upto = (m * (i + 1) + n - 1) // n
        while k < min(upto, m):
            f = fillers[k]; k += 1
            if callable(f): f()
            elif isinstance(f, tuple): S(f[0], tag=f[1])
            else: S(f)
    while k < m:
        f = fillers[k]; k += 1
        if callable(f): f()
        elif isinstance(f, tuple): S(f[0], tag=f[1])
        else: S(f)


def prologue_guard(S, nwg):
    S(f's_cmp_ge_u32 s2, {nwg}')
    S('s_cbranch_scc1 L_exit_%s' % S.name)

def stamp(S, idx):
    if not getattr(S, 'stamps', False): return
    S('s_memtime s[90:91]')
    if idx == 0: S('s_memrealtime s[88:89]')
    S('s_waitcnt lgkmcnt(0)')
    S(f's_mov_b32 s{92+idx}, s90')
    if idx == 0: S('s_mov_b32 s99, s88')

def stamp_flush(S, n, wave_sgpr, slot_base, vtmp=(1,2), kern_idx=0):
    if not getattr(S, 'stamps', False): return
    S('s_load_dwordx2 s[84:85], s[0:1], 72')
    S('s_waitcnt vmcnt(0)')
    S('s_memrealtime s[88:89]')
    S('s_memtime s[90:91]')
    S('s_waitcnt lgkmcnt(0)')
    S('s_mov_b32 s100, s88')
    S('s_mov_b32 s101, s90')
    S(f's_add_u32 s84, s84, {0x8000000 + kern_idx*0x100000}')
    S('s_addc_u32 s85, s85, 0')
    S('s_and_b32 s85, s85, 0xffff')
    S('s_mov_b32 s86, 0x100000')
    S('s_mov_b32 s87, 0x00020000')
    S(f's_lshl_b32 s88, s2, 3')
    S(f's_add_u32 s88, s88, s{wave_sgpr}')
    S(f's_lshl_b32 s88, s88, 6')
    a_, b_ = vtmp
    S(f'v_mov_b32 v{a_}, s88')
    for i, sr in [(i, 92+i) for i in range(n)] + [(13, 99), (14, 100), (15, 101)]:
        S(f'v_mov_b32 v{b_}, s{sr}')
        S(f'buffer_store_dword v{b_}, v{a_}, s[84:87], 0 offen offset:{4*i}')
        S('s_waitcnt vmcnt(0)')
```

```python
from common import *
def gen(A, name='phP_kernel', code=True, data=True, text_bytes=81920, which=(0,1,2,3,4,5)):
    S = Sched(A); S.name = name
    kernel_header(A, name)
    prologue_guard(S, 256)
    S('v_lshlrev_b32 v1, 4, v0')
    if code:
        S('s_getpc_b64 s[4:5]')
        S('s_and_b32 s4, s4, 0xffffff00')
        srd(S, 8, 4, text_bytes)
        S('s_lshr_b32 s12, s2, 3'); S('s_lshl_b32 s12, s12, 12')
        S('buffer_load_dwordx4 v[4:7], v1, s[8:11], s12 offen')
    if data:
        k = 0
        L = [(KA_X, 2048*1280), (KA_WQKV, 640*3840), (KA_WO, 640*1280), (KA_WG, 640*3456), (KA_WU, 640*3456), (KA_WD, 1728*1280)]
        for (ka, nbytes) in [L[i] for i in which]:
            S(f's_load_dwordx2 s[4:5], s[0:1], {ka}')
            S('s_waitcnt lgkmcnt(0)')
            srd(S, 16, 4, nbytes)
            per = (nbytes + 256*4096 - 1) // (256*4096)
            for i in range(per):
                S(f's_lshl_b32 s12, s2, 12'); S(f's_add_u32 s12, s12, {i*256*4096}')
                S(f'buffer_load_dwordx4 v[{8+4*(k%16)}:{11+4*(k%16)}], v1, s[16:19], s12 offen'); k += 1
    S('s_waitcnt vmcnt(0)')
    S.label(f'L_exit_{name}')
    S('s_endpgm')
    kernel_desc(A, name, 80, 32)
```

```python
import sys; sys.path.insert(0,'gen')
from build import *
import phaseN, phaseP
N = (phaseN, 'phN_kernel', 256, 256, 0, {})
P = PARTS
build('x1.s', P)
build('x2.s', [(phaseP, 'phP_kernel', 256, 256, 0, dict(code=True, data=False))] + P)
build('x3.s', [(phaseP, 'phP_kernel', 256, 256, 0, dict(code=False, data=True))] + P)
build('x4.s', [(phaseP, 'phP_kernel', 256, 256, 0, dict(code=True, data=True))] + P)
build('x5.s', [N] + P)
build('x6.s', [N, N] + P)
```

```python
from asmlib import *
from sched import Sched

KN = 'sequential_preLN__sliding_block__glu_gated_bilinear__prompt'
KA_X, KA_WQKV, KA_WO, KA_BX, KA_WG, KA_WU, KA_WD, KA_OUT, KA_DBG, KA_WS = 0, 8, 16, 24, 32, 40, 48, 56, 64, 72
QKV_OFF = 0;          QKV_SZ = 240*2048*16
OF_OFF  = 0x800000;   OF_SZ = 128*20*1024
HF_OFF  = 0xB00000;   HF_SZ = 64*40*1024
ST_OFF  = 0xE00000;   ST_SZ = 2048*8*8
CS_OFF  = 0xE40000;   CS_SZ = 5*3456*4
HP_OFF  = 0x1000000;  HP_SZ = 128*54*1024
WGU_OFF = 0x1800000; WGU_SZ = 108*40*1024
WDF_OFF = 0x1D00000; WDF_SZ = 8*54*5*1024
WOF_OFF = 0x2000000; WOF_SZ = 8*20*5*1024
S_, D_, F_ = 2048, 640, 1728

def srd_off(S, d, base, off, nbytes):
    if off:
        S(f's_add_u32 s{d}, s{base}, {off}')
        S(f's_addc_u32 s{d+1}, s{base+1}, 0')
        S(f's_and_b32 s{d+1}, s{d+1}, 0xffff')
    else:
        S(f's_mov_b32 s{d}, s{base}')
        S(f's_and_b32 s{d+1}, s{base+1}, 0xffff')
    S(f's_mov_b32 s{d+2}, {nbytes}')
    S(f's_mov_b32 s{d+3}, 0x00020000')

class LdsAddr:
    def __init__(self, S, regs):
        self.S = S; self.regs = regs
    def finish(self):
        for k in range(1, len(self.regs)):
            self.S(f'v_add_u32 v{self.regs[k]}, {65536*k}, v{self.regs[0]}')
    def at(self, c):
        k = c >> 16
        return f'v{self.regs[k]} offset:{c & 0xffff}' if (c & 0xffff) else f'v{self.regs[k]}'

def bf16_round(S, dst, src):
    S(f'v_cvt_pk_bf16_f32 v{dst}, v{src}, v{src}')
    S(f'v_lshlrev_b32 v{dst}, 16, v{dst}')

def interleave(S, mfmas, fillers, start=0):
    n = len(mfmas); m = len(fillers); k = 0
    for i, mf in enumerate(mfmas):
        S(mf)
        upto = (m * (i + 1) + n - 1) // n
        while k < min(upto, m):
            f = fillers[k]; k += 1
            if callable(f): f()
            elif isinstance(f, tuple): S(f[0], tag=f[1])
            else: S(f)
    while k < m:
        f = fillers[k]; k += 1
        if callable(f): f()
        elif isinstance(f, tuple): S(f[0], tag=f[1])
        else: S(f)


def prologue_guard(S, nwg):
    S(f's_cmp_ge_u32 s2, {nwg}')
    S('s_cbranch_scc1 L_exit_%s' % S.name)

def stamp(S, idx):
    if not getattr(S, 'stamps', False): return
    S('s_memtime s[90:91]')
    if idx == 0: S('s_memrealtime s[88:89]')
    S('s_waitcnt lgkmcnt(0)')
    S(f's_mov_b32 s{92+idx}, s90')
    if idx == 0: S('s_mov_b32 s99, s88')

def stamp_flush(S, n, wave_sgpr, slot_base, vtmp=(1,2), kern_idx=0):
    if not getattr(S, 'stamps', False): return
    S('s_load_dwordx2 s[84:85], s[0:1], 72')
    S('s_memrealtime s[88:89]')
    S('s_memtime s[90:91]')
    S('s_waitcnt lgkmcnt(0)')
    S('s_mov_b32 s100, s88')
    S('s_mov_b32 s101, s90')
    S(f's_add_u32 s84, s84, {0x8000000 + kern_idx*0x100000}')
    S('s_addc_u32 s85, s85, 0')
    S('s_and_b32 s85, s85, 0xffff')
    S('s_mov_b32 s86, 0x100000')
    S('s_mov_b32 s87, 0x00020000')
    S(f's_lshl_b32 s88, s2, 3')
    S(f's_add_u32 s88, s88, s{wave_sgpr}')
    S(f's_lshl_b32 s88, s88, 6')
    B = 64
    S(f'v_mov_b32 v{B+16}, s88')
    src = {i: 92 + i for i in range(n)}; src.update({13: 99, 14: 100, 15: 101})
    for i in range(16):
        S(f'v_mov_b32 v{B+i}, s{src[i]}' if i in src else f'v_mov_b32 v{B+i}, 0')
    S('s_mov_b64 exec, 1')
    for k in range(4):
        S(f'buffer_store_dwordx4 v[{B+4*k}:{B+4*k+3}], v{B+16}, s[84:87], 0 offen offset:{16*k}')
    S('s_mov_b64 exec, -1')
```

```python
import os
from common import *

CFG = {'C': dict(NSTEP=20, SPS=4, NS=5, DB=8), 'E': dict(NSTEP=54, SPS=3, NS=6, DB=6)}
def lds_bytes(mode): c = CFG[mode]; return c['NS']*c['SPS']*5120
def threads(mode): return 256 + 64*CFG[mode]['SPS']

def gen(A, name='phC_kernel', mode='C', stamps=False, rot=int(os.environ.get('ROT','0'))):
    S = Sched(A); S.name = name; S.stamps = stamps
    kernel_header(A, name)
    S(f's_load_dwordx2 s[8:9], s[0:1], {KA_WS}')
    if mode == 'C': S(f's_load_dwordx2 s[4:5], s[0:1], {KA_X}')
    else: S(f's_load_dwordx2 s[4:5], s[0:1], {KA_OUT}')
    prologue_guard(S, 256)
    S('v_lshrrev_b32 v1, 6, v0')
    S('s_and_b32 s13, s2, 7'); S('s_lshr_b32 s14, s2, 3')
    S('v_readfirstlane_b32 s10, v1')
    S('v_and_b32 v0, 63, v0')
    S('s_and_b32 s11, s13, 3'); S('s_lshl_b32 s11, s11, 3'); S('s_and_b32 s15, s14, 7'); S('s_add_u32 s11, s11, s15')
    S('s_lshr_b32 s12, s13, 2'); S('s_lshl_b32 s12, s12, 2'); S('s_lshr_b32 s15, s14, 3'); S('s_add_u32 s12, s12, s15')
    c = CFG[mode]; NST = c['NSTEP'] // c['SPS']
    if rot:
        S('s_and_b32 s16, s12, 3'); S('s_lshl_b32 s16, s16, 1'); S('s_add_u32 s16, s16, s11'); S('s_and_b32 s16, s16, 7')
        S(f's_mul_i32 s16, s16, {NST}'); S('s_lshr_b32 s44, s16, 3')
    else: S('s_mov_b32 s44, 0')
    stamp(S, 0)
    S('s_cmp_ge_u32 s10, 4')
    S(f's_cbranch_scc1 L_prod_{name}')
    consumer(S, mode)
    S.label(f'L_prod_{name}')
    S.hist = []; S.lds = []; S.vm = []; S.smem_pending = [('s', 8), ('s', 9), ('s', 4), ('s', 5)]
    producer(S, mode)
    S.label(f'L_exit_{name}')
    S('s_endpgm')
    kernel_desc(A, name, 128, 102)

def producer(S, mode):
    c = CFG[mode]; NSTEP, SPS, NS = c['NSTEP'], c['SPS'], c['NS']; NST = NSTEP // SPS
    STG = SPS*5120
    S('s_sub_u32 s19, s10, 4')
    S('v_lshlrev_b32 v2, 4, v0')
    S(f's_mul_i32 s16, s12, {NSTEP}'); S('s_add_u32 s16, s16, s19'); S('s_mul_i32 s16, s16, 5120')
    S(f's_mul_i32 s17, s44, {STG}'); S('s_add_u32 s17, s17, s16')
    S(f's_add_u32 s26, s16, {NST*STG}')
    S(f's_mul_i32 s28, s19, 5120')
    S('s_waitcnt lgkmcnt(0)')
    if mode == 'C': srd_off(S, 20, 8, WOF_OFF, WOF_SZ)
    else: srd_off(S, 20, 8, WDF_OFF, WDF_SZ)
    def issue(t):
        slot = t % NS
        S(f's_add_u32 m0, s28, {slot*STG}', tag=t)
        for f in range(4):
            S(f'buffer_load_dwordx4 v2, s[20:23], s17 offen' + (f' offset:{f*1024}' if f else '') + ' lds', tag=t)
        S(f's_add_u32 m0, s28, {slot*STG + 4096}'); S('s_add_u32 s18, s17, 4096')
        S(f'buffer_load_dwordx4 v2, s[20:23], s18 offen lds', tag=t)
        S(f's_add_u32 s17, s17, {STG}'); S('s_cmp_eq_u32 s17, s26'); S('s_cselect_b32 s17, s16, s17')
    npre = min(NS, NST)
    issue(0); issue(1)
    S.wait_tag(0)
    S('s_barrier')
    for t in range(2, npre): issue(t)
    for t in range(NST):
        if t + 1 < NST: S.wait_tag(t + 1)
        S('s_barrier')
        if t + NS < NST: issue(t + NS)
    stamp(S, 1)
    stamp_flush(S, 2, 10, 0, kern_idx=2 if mode == 'C' else 4)
    S('s_endpgm')

def consumer(S, mode):
    C_ = mode == 'C'
    c = CFG[mode]; NSTEP, SPS, NS, DB = c['NSTEP'], c['SPS'], c['NS'], c['DB']; NST = NSTEP // SPS
    STG = SPS*5120
    aW, vB, vRes, vHF, vSt = 1, 2, 3, 4, 5
    T = 6
    RESR = 16
    ACC = 28
    OPA = 48
    RING = 88
    acc = lambda nb: ACC + nb*4
    opa = lambda b, nb: OPA + b*20 + nb*4
    opb = lambda sg: RING + (sg % DB)*4
    S(f'v_lshlrev_b32 v{aW}, 4, v0')
    S('s_lshl_b32 s16, s11, 2'); S('s_add_u32 s16, s16, s10'); S(f's_mul_i32 s16, s16, {NSTEP*1024}')
    S(f'v_add_u32 v{vB}, s16, v{aW}')
    S(f's_mul_i32 s17, s44, {SPS*1024}')
    S('s_waitcnt lgkmcnt(0)')
    if C_: srd_off(S, 24, 8, OF_OFF, OF_SZ)
    else: srd_off(S, 24, 8, HP_OFF, HP_SZ)
    def bload(sg):
        kk = sg % SPS
        S(f'buffer_load_dwordx4 {v(opb(sg),4)}, v{vB}, s[24:27], s17 offen' + (f' offset:{kk*1024}' if kk else ''))
        if kk == SPS - 1:
            S(f's_add_u32 s17, s17, {SPS*1024}'); S(f's_cmp_eq_u32 s17, {NSTEP*1024}'); S('s_cselect_b32 s17, 0, s17')
    for sg in range(min(DB, NSTEP)): bload(sg)
    S(f'v_and_b32 v{T+1}, 15, v0')
    S(f'v_lshrrev_b32 v{T+2}, 4, v0')
    S('s_lshl_b32 s16, s11, 6'); S('s_lshl_b32 s18, s10, 4'); S('s_add_u32 s16, s16, s18')
    S(f'v_add_u32 v{T+3}, s16, v{T+1}')
    S(f'v_mul_u32_u24 v{vRes}, 1280, v{T+3}'); S('s_mul_i32 s18, s12, 160')
    S(f'v_lshl_add_u32 v{vRes}, v{T+2}, 3, v{vRes}'); S(f'v_add_u32 v{vRes}, s18, v{vRes}')
    S(f'v_lshrrev_b32 v{T+4}, 5, v{T+3}'); S(f'v_mul_u32_u24 v{T+4}, {40*1024}, v{T+4}')
    S(f'v_and_b32 v{T+5}, 31, v{T+3}'); S(f'v_lshl_add_u32 v{T+4}, v{T+5}, 4, v{T+4}')
    S(f'v_lshrrev_b32 v{T+5}, 1, v{T+2}'); S(f'v_lshl_add_u32 v{T+4}, v{T+5}, 9, v{T+4}')
    S(f'v_and_b32 v{T+5}, 1, v{T+2}'); S(f'v_lshl_add_u32 v{T+4}, v{T+5}, 3, v{T+4}')
    S(f's_mul_i32 s18, s12, {5*1024}'); S(f'v_add_u32 v{vHF}, s18, v{T+4}')
    if C_:
        S(f'v_lshlrev_b32 v{vSt}, 6, v{T+3}'); S('s_lshl_b32 s18, s12, 3'); S(f'v_add_u32 v{vSt}, s18, v{vSt}')
        S(f'v_mov_b32 v{T+4}, 0x40000000'); S(f'v_cmp_eq_u32 vcc, 0, v{T+2}'); S(f'v_cndmask_b32 v{vSt}, v{T+4}, v{vSt}, vcc')
        srd(S, 32, 4, 2048*1280)
        srd_off(S, 40, 8, ST_OFF, ST_SZ)
    else:
        srd(S, 32, 4, 2048*1280)
    srd_off(S, 36, 8, HF_OFF, HF_SZ)
    def areads(sg):
        t, kk = divmod(sg, SPS)
        off = (t % NS)*STG + kk*5120
        return [f'ds_read_b128 {v(opa(sg&1,nb),4)}, v{aW if off + nb*1024 < 65536 else T+9} offset:{(off + nb*1024) & 0xffff}' for nb in range(5)]
    S(f'v_add_u32 v{T+9}, 65536, v{aW}')
    stamp(S, 1)
    S('s_barrier')
    stamp(S, 2)
    for x in areads(0): S(x)
    for sg in range(NSTEP):
        if sg % SPS == SPS - 1:
            S.wait(lgkm=0)
            S('s_barrier')
        fl = areads(sg + 1) if sg + 1 < NSTEP else []
        for nb in range(5):
            S(f'v_mfma_f32_16x16x32_bf16 {v(acc(nb),4)}, {v(opa(sg&1,nb),4)}, {v(opb(sg),4)}, {v(acc(nb),4) if sg else "0"}')
            if fl: S(fl[nb])
        if sg + DB < NSTEP: bload(sg + DB)
        if sg == NSTEP - 4:
            for nb in range(5):
                if C_: S(f'buffer_load_dwordx2 {v(RESR+2*nb,2)}, v{vRes}, s[32:35], 0 offen offset:{32*nb}')
                else:
                    S(f's_mov_b32 s30, {1024*nb}')
                    S(f'buffer_load_dwordx2 {v(RESR+2*nb,2)}, v{vHF}, s[36:39], s30 offen')
    stamp(S, 3)
    U = OPA
    PK = OPA + 12
    sum_, ssq = U + 8, U + 9
    for nb in range(5):
        a_ = acc(nb)
        S(f'v_cvt_pk_bf16_f32 v{U}, v{a_}, v{a_+1}'); S(f'v_cvt_pk_bf16_f32 v{U+1}, v{a_+2}, v{a_+3}')
        for k in range(2):
            S(f'v_lshlrev_b32 v{a_+2*k}, 16, v{U+k}'); S(f'v_and_b32 v{a_+2*k+1}, 0xffff0000, v{U+k}')
            S(f'v_lshlrev_b32 v{U+2+2*k}, 16, v{RESR+2*nb+k}'); S(f'v_and_b32 v{U+3+2*k}, 0xffff0000, v{RESR+2*nb+k}')
        for h in range(2):
            S(f'v_pk_add_f32 {v(a_+2*h,2)}, {v(a_+2*h,2)}, {v(U+2+2*h,2)}')
        S(f'v_cvt_pk_bf16_f32 v{PK+2*nb}, v{a_}, v{a_+1}'); S(f'v_cvt_pk_bf16_f32 v{PK+2*nb+1}, v{a_+2}, v{a_+3}')
        if C_:
            S(f's_mov_b32 s30, {1024*nb}')
            S(f'buffer_store_dwordx2 {v(PK+2*nb,2)}, v{vHF}, s[36:39], s30 offen')
            for k in range(2):
                S(f'v_lshlrev_b32 v{a_+2*k}, 16, v{PK+2*nb+k}'); S(f'v_and_b32 v{a_+2*k+1}, 0xffff0000, v{PK+2*nb+k}')
            for k in range(4):
                if nb == 0 and k == 0:
                    S(f'v_mov_b32 v{sum_}, v{a_}'); S(f'v_mul_f32 v{ssq}, v{a_}, v{a_}')
                else:
                    S(f'v_add_f32 v{sum_}, v{sum_}, v{a_+k}'); S(f'v_fmac_f32 v{ssq}, v{a_+k}, v{a_+k}')
        else:
            S(f'buffer_store_dwordx2 {v(PK+2*nb,2)}, v{vRes}, s[32:35], 0 offen offset:{32*nb}')
    if C_:
        for x in (sum_, ssq):
            S(f'v_mov_b32 v{U}, v{x}'); S(f'v_permlane32_swap_b32 v{x}, v{U}'); S(f'v_add_f32 v{x}, v{x}, v{U}')
            S(f'v_mov_b32 v{U}, v{x}'); S(f'v_permlane16_swap_b32 v{x}, v{U}'); S(f'v_add_f32 v{x}, v{x}, v{U}')
        S(f'buffer_store_dwordx2 {v(sum_,2)}, v{vSt}, s[40:43], 0 offen')
    stamp(S, 4)
    stamp_flush(S, 5, 10, 0, vtmp=(1, 2), kern_idx=2 if C_ else 4)
    S('s_endpgm')

if __name__ == '__main__':
    for mode in 'CE':
        A = Asm()
        A.raw(f'; @launch kernel=ph{mode}_kernel grid=(256,1,1) block=({threads(mode)},1,1) lds={lds_bytes(mode)}')
        A.raw('.amdgcn_target "amdgcn-amd-amdhsa--gfx950"')
        gen(A, name=f'ph{mode}_kernel', mode=mode)
        open(f't/{mode}.s','w').write(A.text())
```

```python
import os
from common import *
import phaseR

KP0 = 0; PSTR = 6208
VP0 = 31232
AUX = 62464
LDS_B0 = AUX + 6656
MERGE = int(os.environ.get('MERGE', '1'))
LDS_B = LDS_B0 + (3*16384 if MERGE else 0)
THREADS_B = 512 if MERGE else 256
RSMOD = os.environ.get('RSMOD', '')
NEG = 0xF149F2CA

def gen(A, name='phB_kernel', stamps=False, nthreads=256):
    S = Sched(A); S.name = name; S.stamps = stamps
    kernel_header(A, name)
    S(f's_load_dwordx2 s[8:9], s[0:1], {KA_WS}')
    prologue_guard(S, 256)
    S('v_lshrrev_b32 v1, 6, v0')
    S('s_and_b32 s13, s2, 7'); S('s_lshr_b32 s14, s2, 3')
    S('v_readfirstlane_b32 s10, v1')
    S('v_and_b32 v0, 63, v0')
    S('s_lshr_b32 s12, s14, 4'); S('s_lshl_b32 s13, s13, 1'); S('s_add_u32 s12, s12, s13')
    S('s_and_b32 s11, s14, 15')
    stamp(S, 0)
    if MERGE:
        S('s_cmp_ge_u32 s10, 4'); S(f's_cbranch_scc1 L_help_{name}')
    attention(S, name)
    if MERGE:
        S('s_endpgm')
        S.label(f'L_help_{name}')
        S.hist = []; S.lds = []; S.vm = []; S.smem_pending = [('s', 8), ('s', 9)]
        helper(S, name)
    S.label(f'L_exit_{name}')
    S('s_endpgm')
    kernel_desc(A, name, 256, 102)

def kv_dma(S, ty, tag, sw, T):
    for n in range(8):
        S(f's_lshl_b32 s18, s{sw}, 3'); S(f's_add_u32 s18, s18, {n}'); S('s_min_u32 s18, s18, 29')
        S('s_mul_i32 s19, s18, 43'); S('s_lshr_b32 s19, s19, 8')
        S('s_mul_i32 s26, s19, 6'); S('s_sub_u32 s26, s18, s26')
        S('s_lshl_b32 s26, s26, 10')
        S(f's_mul_i32 s27, s19, {PSTR}'); S('s_add_u32 s27, s27, s26')
        S(f's_add_u32 m0, s27, {KP0 if ty == 1 else VP0}')
        S('s_add_u32 s19, s19, s16'); S(f's_add_u32 s19, s19, {80*ty}'); S('s_lshl_b32 s19, s19, 15')
        S('s_add_u32 s19, s19, s26'); S('s_add_u32 s19, s19, s17')
        S(f'buffer_load_dwordx4 v{T}, s[20:23], s19 offen lds', tag=tag)

def helper(S, name):
    S('s_sub_u32 s38, s10, 4')
    S('s_waitcnt lgkmcnt(0)')
    srd_off(S, 20, 8, QKV_OFF, QKV_SZ)
    S('v_lshlrev_b32 v40, 4, v0')
    S('s_mul_i32 s16, s12, 5')
    S('s_lshl_b32 s17, s11, 7'); S('s_sub_u32 s17, s17, 256'); S('s_lshl_b32 s17, s17, 4')
    kv_dma(S, 2, 'V', 38, 40)
    S('s_barrier')
    def after_issue(n):
        S.A.raw(f'  s_waitcnt vmcnt({n})')
        S('s_barrier')
    phaseR.repack(S, name, 38, LDS_B0, T=1, after_issue=after_issue, smod=RSMOD)
    stamp(S, 1)
    stamp_flush(S, 2, 10, 0, kern_idx=1)

def attention(S, name):
    S('s_and_b32 s14, s10, 1'); S('s_lshr_b32 s15, s10, 1')
    Sb = 0 + 16
    B0 = 160; B8 = 176
    OA = 192
    Q = 208
    KO = 220
    VO = 232
    aKm, aKt, aV = 2, 3, 4
    oM, oT = 5, 6
    T = 7
    vM = 248; vL = 249
    sc = lambda j, r=0: Sb + 16*j + r
    S('s_waitcnt lgkmcnt(0)')
    srd_off(S, 20, 8, QKV_OFF, QKV_SZ)
    S(f'v_lshlrev_b32 v{T}, 4, v0')
    S('s_mul_i32 s16, s12, 5')
    S('s_lshl_b32 s17, s11, 7'); S('s_sub_u32 s17, s17, 256'); S('s_lshl_b32 s17, s17, 4')
    def dma(ty, tag): kv_dma(S, ty, tag, 10, T)
    dma(1, 'K')
    S(f'v_and_b32 v{T+1}, 31, v0')
    S(f'v_lshrrev_b32 v{T+2}, 5, v0')
    S('s_mul_i32 s18, s14, 3'); S('s_add_u32 s18, s18, s16')
    S(f'v_add_u32 v{T+3}, s18, v{T+2}')
    S(f'v_lshlrev_b32 v{T+3}, 15, v{T+3}')
    S('s_lshl_b32 s19, s11, 1'); S('s_add_u32 s19, s19, s15'); S('s_lshl_b32 s19, s19, 10')
    S(f'v_lshl_add_u32 v{T+4}, v{T+1}, 4, s19')
    S(f'v_add_u32 v{T+3}, v{T+3}, v{T+4}')
    for b in range(2):
        S(f'buffer_load_dwordx4 {v(Q+6*b,4)}, v{T+3}, s[20:23], 0 offen offset:{512*b}', tag='Q')
    S('s_add_u32 s18, s16, 2'); S('s_lshr_b32 s35, s18, 1'); S('s_and_b32 s35, s35, 1'); S('s_xor_b32 s35, s35, s14')
    S('s_lshl_b32 s27, s18, 15'); S('s_lshl_b32 s28, s35, 3'); S('s_add_u32 s27, s27, s28')
    S(f'v_add_u32 v{T+4}, s27, v{T+4}')
    for b in range(2):
        S(f'buffer_load_dwordx2 {v(Q+6*b+4,2)}, v{T+4}, s[20:23], 0 offen offset:{512*b}', tag='Q')
    if not MERGE: dma(2, 'V')
    S('s_mul_i32 s18, s10, 100')
    S(f'v_add_u32 v{T+5}, s18, v0')
    S('s_lshl_b32 s19, s11, 7'); S('s_sub_u32 s19, 256, s19')
    S(f'v_mov_b32 v{KO}, 0x3f80'); S(f'v_mov_b32 v{KO+1}, 0'); S(f'v_mov_b32 v{KO+3}, 0')
    S(f'v_mov_b32 v{T+3}, 0xf149')
    for k in range(2):
        S(f'v_cmp_gt_i32 vcc, s19, v{T+5}')
        S(f'v_cndmask_b32 v{KO+2}, 0, v{T+3}, vcc')
        S(f'v_lshlrev_b32 v{T+4}, 4, v{T+5}')
        if k == 1:
            S('s_mov_b32 exec_lo, -1'); S('s_mov_b32 exec_hi, 0xf') if False else None
            S('s_mov_b64 exec, 0xfffffffff') if False else None
            S('s_mov_b32 s30, -1'); S('s_mov_b32 s31, 0xf'); S('s_mov_b64 exec, s[30:31]')
        S(f'ds_write_b128 v{T+4}, {v(KO,4)} offset:{AUX}')
        if k == 0: S(f'v_add_u32 v{T+5}, 64, v{T+5}')
    S('s_mov_b64 exec, -1')
    S('s_mul_i32 s18, s14, 3')
    S(f'v_add_u32 v{T+3}, s18, v{T+2}'); S(f'v_mul_u32_u24 v{T+3}, {PSTR}, v{T+3}')
    S('s_lshl_b32 s19, s15, 10')
    S(f'v_lshl_add_u32 v{T+4}, v{T+1}, 4, s19')
    S(f'v_add_u32 v{aKm}, v{T+3}, v{T+4}')
    if KP0: S(f'v_add_u32 v{aKm}, {KP0}, v{aKm}')
    S('s_lshl_b32 s28, s35, 3'); S(f's_add_u32 s28, s28, {KP0 + 2*PSTR}')
    S(f'v_mov_b32 v{T+3}, s28'); S(f'v_mov_b32 v{T+5}, {AUX+8}')
    S(f'v_cmp_eq_u32 vcc, 0, v{T+2}')
    S(f'v_cndmask_b32 v{T+3}, v{T+5}, v{T+3}, vcc')
    S(f'v_add_u32 v{aKt}, v{T+3}, v{T+4}')
    S(f'v_and_b32 v{T+3}, 3, v0')
    S(f'v_lshrrev_b32 v{T+4}, 2, v0'); S(f'v_and_b32 v{T+4}, 3, v{T+4}')
    S(f'v_lshl_add_u32 v{T+4}, v{T+2}, 2, v{T+4}')
    S(f'v_lshlrev_b32 v{T+4}, 4, v{T+4}')
    S(f'v_add_u32 v{T+4}, s19, v{T+4}')
    S(f'v_lshrrev_b32 v{T+5}, 1, v{T+3}'); S('s_mul_i32 s18, s14, 3'); S(f'v_add_u32 v{T+5}, s18, v{T+5}')
    S(f'v_add_u32 v{T+6}, s16, v{T+5}'); S(f'v_lshrrev_b32 v{T+6}, 1, v{T+6}'); S(f'v_xor_b32 v{T+6}, v{T+6}, v{T+3}')
    S(f'v_and_b32 v{T+6}, 1, v{T+6}')
    S(f'v_mul_u32_u24 v{T+5}, {PSTR}, v{T+5}'); S(f'v_lshl_add_u32 v{T+5}, v{T+6}, 3, v{T+5}')
    S(f'v_add_u32 v{T+5}, {VP0}, v{T+5}')
    S(f's_lshl_b32 s28, s35, 3'); S(f's_add_u32 s28, s28, {VP0 + 2*PSTR}')
    S('s_lshl_b32 s29, s14, 7'); S(f's_sub_u32 s29, {AUX+192}, s29')
    S(f'v_mov_b32 v{T+6}, s29'); S(f'v_mov_b32 v{T+7}, s28')
    S(f'v_cmp_eq_u32 vcc, 0, v{T+3}'); S(f'v_cndmask_b32 v{T+6}, v{T+6}, v{T+7}, vcc')
    S(f'v_bfe_u32 v{T+7}, v0, 4, 1'); S(f'v_cmp_eq_u32 vcc, 0, v{T+7}')
    S(f'v_cndmask_b32 v{T+5}, v{T+6}, v{T+5}, vcc')
    S(f'v_add_u32 v{aV}, v{T+5}, v{T+4}')
    S(f'v_lshlrev_b32 v{T+3}, 2, v{T+2}'); S(f'v_sub_u32 v{T+3}, v{T+1}, v{T+3}')
    S(f'v_mov_b32 v{T+4}, 0x{NEG:08x}')
    for r in range(16):
        c_ = (r & 3) + 8*(r >> 2)
        S(f'v_cmp_gt_i32 vcc, {c_}, v{T+3}')
        S(f'v_cndmask_b32 v{B0+r}, v{T+4}, 0, vcc')
        S(f'v_cndmask_b32 v{B8+r}, 0, v{T+4}, vcc')
    srd_off(S, 24, 8, OF_OFF, OF_SZ)
    S('s_lshl_b32 s18, s11, 1'); S('s_add_u32 s18, s18, s15'); S('s_lshl_b32 s18, s18, 2')
    S(f'v_lshrrev_b32 v{T+3}, 4, v{T+1}'); S(f'v_add_u32 v{T+3}, s18, v{T+3}')
    S(f'v_mul_u32_u24 v{T+3}, {20*1024}, v{T+3}')
    S(f'v_and_b32 v{T+4}, 15, v0'); S(f'v_lshl_add_u32 v{T+3}, v{T+4}, 4, v{T+3}')
    S('s_lshl_b32 s18, s12, 10'); S('s_lshl_b32 s19, s14, 9'); S('s_add_u32 s18, s18, s19')
    S(f'v_lshl_add_u32 v{oM}, v{T+2}, 8, v{T+3}'); S(f'v_add_u32 v{oM}, s18, v{oM}')
    S('s_lshr_b32 s18, s12, 2'); S('s_add_u32 s18, s18, 16'); S('s_lshl_b32 s18, s18, 10')
    S('s_and_b32 s19, s12, 3'); S('s_lshl_b32 s19, s19, 8'); S('s_add_u32 s18, s18, s19')
    S('s_lshl_b32 s19, s14, 3'); S('s_add_u32 s18, s18, s19')
    S(f'v_add_u32 v{oT}, s18, v{T+3}')
    S(f'v_mov_b32 v{T+4}, 0x40000000'); S(f'v_cmp_eq_u32 vcc, 0, v{T+2}')
    S(f'v_cndmask_b32 v{oT}, v{T+4}, v{oT}, vcc')
    S.wait_tag('Q')
    S(f'v_mov_b32 v{T+4}, 0x3f80')
    for b in range(2):
        S(f'v_cndmask_b32 v{Q+6*b+4}, v{T+4}, v{Q+6*b+4}, vcc')
        S(f'v_cndmask_b32 v{Q+6*b+5}, 0, v{Q+6*b+5}, vcc')
    S.wait_tag('K')
    S.wait(lgkm=0)
    stamp(S, 1)
    S('s_barrier')
    stamp(S, 2)
    def kreads(b, j):
        buf = j & 1
        off = (32*b + 32*j)*16
        return [f'ds_read_b128 {v(KO+6*buf,4)}, v{aKm} offset:{off}',
                f'ds_read_b64 {v(KO+6*buf+4,2)}, v{aKt} offset:{off}']
    def vreads(b, j, sg):
        buf = (2*j + sg) & 3
        off = (32*b + 32*j + 16*sg)*16
        return [f'ds_read_b64_tr_b16 {v(VO+4*buf+2*p,2)}, v{aV} offset:{off + 128*p}' for p in range(2)]
    for b in range(2):
        for x in kreads(b, 0): S(x)
        def maxops(j):
            L = []
            for k in range(8):
                if j == 0 and k == 0:
                    L.append(f'v_max_f32 v{vM}, v{sc(0,0)}, v{sc(0,1)}')
                else:
                    L.append(f'v_max3_f32 v{vM if k%2==0 else vL}, v{sc(j,2*k)}, v{sc(j,2*k+1)}, v{vM if k%2==0 else vL}' if not (j == 0 and k == 1)
                             else f'v_max_f32 v{vL}, v{sc(0,2)}, v{sc(0,3)}')
            return L
        for j in range(9):
            buf = j & 1
            cin = v(B0,16) if j == 0 else (v(B8,16) if j == 8 else '0')
            if j + 1 < 9:
                nxt = kreads(b, j + 1)
            else: nxt = []
            S(f'v_mfma_f32_32x32x16_bf16 {v(sc(j),16)}, {v(KO+6*buf,4)}, {v(Q+6*b,4)}, {cin}')
            for x in nxt: S(x)
            mo = maxops(j - 2) if j >= 2 else []
            for x in mo[:4]: S(x)
            S(f'v_mfma_f32_32x32x8_bf16 {v(sc(j),16)}, {v(KO+6*buf+4,2)}, {v(Q+6*b+4,2)}, {v(sc(j),16)}')
            for x in mo[4:]: S(x)
        if b == 0:
            if not MERGE: S.wait_tag('V')
            S('s_barrier')
        for x in vreads(b, 0, 0): S(x)
        for x in vreads(b, 0, 1): S(x)
        for x in maxops(7): S(x)
        for x in maxops(8): S(x)
        S(f'v_max_f32 v{vM}, v{vM}, v{vL}')
        S(f'v_mov_b32 v{vL}, v{vM}')
        S(f'v_permlane32_swap_b32 v{vM}, v{vL}')
        S(f'v_max_f32 v{vM}, v{vM}, v{vL}')
        if b == 0: stamp(S, 3)
        for j in range(9):
            mf = []
            for sg in range(2):
                cin = '0' if (j == 0 and sg == 0) else v(OA,16)
                mf.append(f'v_mfma_f32_32x32x16_bf16 {v(OA,16)}, {v(VO+4*((2*j+sg)&3),4)}, {v(sc(j,4*sg),4)}, {cin}')
            for sg in range(2):
                for r in range(8*sg, 8*sg + 8):
                    S(f'v_sub_f32 v{sc(j,r)}, v{sc(j,r)}, v{vM}')
                for r in range(8*sg, 8*sg + 8):
                    S(f'v_exp_f32 v{sc(j,r)}, v{sc(j,r)}')
                for k in range(4):
                    S(f'v_cvt_pk_bf16_f32 v{sc(j,4*sg+k)}, v{sc(j,8*sg+2*k)}, v{sc(j,8*sg+2*k+1)}')
                S(mf[sg])
                nj, nsg = (j, sg + 2 - 2) if False else ((2*j + sg + 2) >> 1, (2*j + sg + 2) & 1)
                if nj < 9:
                    for x in vreads(b, nj, nsg): S(x)
        S(f'v_rcp_f32 v{vL}, v{OA+12}')
        for r in range(12):
            S(f'v_mul_f32 v{OA+r}, v{OA+r}, v{vL}')
        for k in range(6):
            S(f'v_cvt_pk_bf16_f32 v{KO+k}, v{OA+2*k}, v{OA+2*k+1}')
        S(f'buffer_store_dwordx4 {v(KO,4)}, v{oM}, s[24:27], {"0" if b == 0 else "s34"} offen') if b == 0 else None
        if b == 0:
            S(f'buffer_store_dwordx2 {v(KO+4,2)}, v{oT}, s[24:27], 0 offen')
            S(f's_mov_b32 s34, {2*20*1024}')
            stamp(S, 4)
        else:
            S(f'buffer_store_dwordx4 {v(KO,4)}, v{oM}, s[24:27], s34 offen')
            S(f'buffer_store_dwordx2 {v(KO+4,2)}, v{oT}, s[24:27], s34 offen')
    stamp(S, 5)
    stamp_flush(S, 6, 10, 0, vtmp=(7, 8), kern_idx=1)

if __name__ == '__main__':
    A = Asm()
    A.raw(f'; @launch kernel=phB_kernel grid=(256,1,1) block=(256,1,1) lds={LDS_B}')
    A.raw('.amdgcn_target "amdgcn-amd-amdhsa--gfx950"')
    gen(A)
    open('b.s','w').write(A.text())
```

```python
from common import *

LDS_R = 4*16384

def div5(S, d, src, tmp):
    S(f's_mul_i32 s{d}, s{src}, 52429'); S(f's_lshr_b32 s{d}, s{d}, 18')
    S(f's_mul_i32 s{tmp}, s{d}, 5'); S(f's_sub_u32 s{tmp}, s{src}, s{tmp}')

def gen(A, name='phR_kernel', stamps=False):
    S = Sched(A); S.name = name; S.stamps = stamps
    kernel_header(A, name)
    S(f's_load_dwordx2 s[8:9], s[0:1], {KA_WS}')
    prologue_guard(S, 256)
    S('v_lshrrev_b32 v1, 6, v0')
    S('v_readfirstlane_b32 s10, v1')
    S('v_and_b32 v0, 63, v0')
    stamp(S, 0)
    repack(S, name, 10, 0)
    stamp_flush(S, 1, 10, 0, kern_idx=5)
    S.label(f'L_exit_{name}')
    S('s_endpgm')
    kernel_desc(A, name, 128, 102)

def repack(S, name, sw, lds_base, T=1, after_issue=None, smod=""):
    S(f's_lshl_b32 s11, s{sw}, 8'); S('s_add_u32 s11, s11, s2')
    S(f's_lshl_b32 s12, s{sw}, 14')
    if lds_base: S(f's_add_u32 s12, s12, {lds_base}')
    S('s_cmp_ge_u32 s11, 640'); S(f's_cbranch_scc1 L_rnone_{name}')
    S('s_cmp_ge_u32 s11, 270'); S(f's_cbranch_scc1 L_rdo_{name}')
    S('s_cmp_ge_u32 s11, 135'); S('s_cselect_b32 s13, 1, 0')
    S('s_mul_i32 s14, s13, 135'); S('s_sub_u32 s14, s11, s14')
    div5(S, 15, 14, 16)
    S('s_lshl_b32 s17, s13, 3'); S(f's_add_u32 s17, s17, {KA_WG}')
    S('s_load_dwordx2 s[4:5], s[0:1], s17')
    vA = [T, T+1]; t = T + 2
    S(f'v_lshrrev_b32 v{t}, 3, v0')
    S(f'v_and_b32 v{t+1}, 2, v{t}'); S(f'v_and_b32 v{t+2}, 7, v0'); S(f'v_xor_b32 v{t+1}, v{t+1}, v{t+2}')
    S(f'v_mul_u32_u24 v{t}, 3456, v{t}')
    S(f'v_lshl_add_u32 v{vA[0]}, v{t+1}, 4, v{t}')
    S('s_lshl_b32 s18, s15, 7'); S(f'v_add_u32 v{vA[0]}, s18, v{vA[0]}')
    S(f'v_xor_b32 v{vA[1]}, 64, v{vA[0]}')
    S('s_waitcnt lgkmcnt(0)')
    srd(S, 20, 4, 640*3456)
    S(f's_mul_i32 s19, s16, {128*3456}')
    for i in range(16):
        S(f's_add_u32 m0, s12, {i*1024}')
        S(f's_add_u32 s18, s19, {8*i*3456}')
        S(f'buffer_load_dwordx4 v{vA[i&1]}, s[20:23], s18 offen lds', tag='p')
    if after_issue: after_issue(16)
    aT = T + 2
    t = T + 6
    S(f'v_lshrrev_b32 v{t}, 4, v0')
    S(f'v_lshrrev_b32 v{t+1}, 2, v0'); S(f'v_and_b32 v{t+1}, 3, v{t+1}')
    S(f'v_and_b32 v{t+2}, 3, v0')
    S(f'v_lshl_add_u32 v{t+3}, v{t}, 3, v{t+1}'); S(f'v_lshlrev_b32 v{t+3}, 7, v{t+3}')
    S(f'v_and_b32 v{t+4}, 1, v{t}'); S(f'v_lshlrev_b32 v{t+4}, 2, v{t+4}')
    S(f'v_and_b32 v{t+5}, 2, v{t+1}'); S(f'v_or_b32 v{t+4}, v{t+4}, v{t+5}')
    S(f'v_lshrrev_b32 v{t+5}, 1, v{t+2}'); S(f'v_xor_b32 v{t+4}, v{t+4}, v{t+5}')
    S(f'v_lshl_add_u32 v{t+3}, v{t+4}, 4, v{t+3}')
    S(f'v_and_b32 v{t+5}, 1, v{t+2}'); S(f'v_lshl_add_u32 v{t+3}, v{t+5}, 3, v{t+3}')
    S(f'v_add_u32 v{aT}, s12, v{t+3}')
    for f in range(1, 4): S(f'v_xor_b32 v{aT+f}, {f<<5}, v{aT}')
    vS = T + 6
    S(f'v_lshrrev_b32 v{t+1}, 1, v{t}'); S(f'v_lshlrev_b32 v{t+1}, 10, v{t+1}')
    S(f'v_and_b32 v{t+2}, 1, v{t}'); S(f'v_lshl_add_u32 v{t+1}, v{t+2}, 8, v{t+1}')
    S(f'v_and_b32 v{t+2}, 15, v0'); S(f'v_lshl_add_u32 v{t+1}, v{t+2}, 4, v{t+1}')
    S(f'v_lshlrev_b32 v{t+3}, 4, v{t}'); S(f'v_mov_b32 v{t+4}, 0x40000000')
    S(f'v_cmp_eq_u32 vcc, 0, v{t+2}'); S(f'v_cndmask_b32 v{t+3}, v{t+4}, v{t+3}, vcc')
    S(f'v_mov_b32 v{vS}, v{t+1}'); vC = vS + 1; S(f'v_mov_b32 v{vC}, v{t+3}')
    srd_off(S, 24, 8, WGU_OFF, WGU_SZ)
    srd_off(S, 28, 8, CS_OFF, CS_SZ)
    S('s_mul_i32 s18, s15, 160'); S('s_lshl_b32 s19, s16, 3'); S('s_add_u32 s18, s18, s19'); S('s_lshl_b32 s18, s18, 10')
    S('s_lshl_b32 s19, s13, 9'); S('s_add_u32 s33, s18, s19')
    ON = T + 9 + ((T + 9) & 1); FR = ON + 4; AC = FR + 16*4
    for k in range(4): S(f'v_mov_b32 v{ON+k}, 0x3f803f80')
    S.wait_tag('p')
    for kap in range(4):
        for f in range(4):
            fr = FR + 4*((4*kap + f) & 15)
            for p in range(2):
                S(f'ds_read_b64_tr_b16 {v(fr+2*p,2)}, v{aT+f} offset:{kap*4096 + p*512}')
    for kap in range(4):
        for f in range(4):
            fr = FR + 4*((4*kap + f) & 15)
            S(f's_add_u32 s18, s33, {(f*40 + 2*kap)*1024}')
            S(f'buffer_store_dwordx4 {v(fr,4)}, v{vS}, s[24:27], s18 offen{smod}')
            S(f'v_mfma_f32_16x16x32_bf16 {v(AC+4*f,4)}, {v(fr,4)}, {v(ON,4)}, {v(AC+4*f,4) if kap else "0"}')
    S('s_mul_i32 s18, s16, 3456'); S('s_mul_i32 s19, s13, 1728'); S('s_add_u32 s18, s18, s19')
    S('s_lshl_b32 s19, s15, 6'); S('s_add_u32 s18, s18, s19'); S('s_lshl_b32 s18, s18, 2')
    for f in range(4):
        S(f'buffer_store_dwordx4 {v(AC+4*f,4)}, v{vC}, s[28:31], s18 offen offset:{64*f}{smod}')
    S(f's_branch L_rdone_{name}')
    S.label(f'L_rdo_{name}')
    S.hist = []; S.lds = []; S.vm = []
    S('s_cmp_ge_u32 s11, 540'); S('s_cselect_b32 s13, 1, 0')
    S('s_mul_i32 s14, s13, 270'); S('s_add_u32 s14, s14, 270'); S('s_sub_u32 s14, s11, s14')
    div5(S, 15, 14, 16)
    S(f's_cmp_eq_u32 s13, 1'); S(f's_cselect_b32 s17, {KA_WO}, {KA_WD}') if False else None
    S(f's_mov_b32 s17, {KA_WD}'); S('s_cmp_eq_u32 s13, 1'); S(f's_cselect_b32 s17, {KA_WO}, s17')
    S('s_load_dwordx2 s[4:5], s[0:1], s17')
    S('s_lshl_b32 s34, s15, 5'); S('s_mov_b32 s35, 16'); S('s_mov_b32 s36, 4'); S('s_mov_b32 s37, 8')
    S('s_cmp_eq_u32 s13, 0'); S(f's_cbranch_scc1 L_rrow_{name}')
    S('s_mul_i32 s34, s15, 40'); S('s_mov_b32 s35, 24')
    S('s_cmp_lt_u32 s15, 16'); S(f's_cbranch_scc1 L_rrow_{name}')
    S('s_sub_u32 s34, s15, 16'); S('s_mul_i32 s34, s34, 160'); S('s_add_u32 s34, s34, 16')
    S('s_mov_b32 s35, 80'); S('s_mov_b32 s36, 40'); S('s_mov_b32 s37, 4')
    S.label(f'L_rrow_{name}')
    vA = [T, T+1]; t = T + 2
    S(f'v_lshrrev_b32 v{t}, 4, v0')
    S(f'v_lshlrev_b32 v{t+1}, 1, v{t}'); S(f'v_and_b32 v{t+2}, 15, v0'); S(f'v_xor_b32 v{t+1}, v{t+1}, v{t+2}')
    S(f'v_mul_u32_u24 v{t}, 1280, v{t}')
    S(f'v_lshl_add_u32 v{vA[0]}, v{t+1}, 4, v{t}')
    S('s_lshl_b32 s18, s16, 8'); S(f'v_add_u32 v{vA[0]}, s18, v{vA[0]}')
    S(f'v_xor_b32 v{vA[1]}, 128, v{vA[0]}')
    for k in (34, 35, 36, 37): S(f's_mul_i32 s{k}, s{k}, 1280')
    S('s_waitcnt lgkmcnt(0)')
    S('s_cmp_eq_u32 s13, 1'); S(f's_cselect_b32 s18, {640*1280}, {1728*1280}') if False else None
    S(f's_mov_b32 s18, {1728*1280}'); S('s_cmp_eq_u32 s13, 1'); S(f's_cselect_b32 s18, {640*1280}, s18')
    S('s_mov_b32 s20, s4'); S('s_and_b32 s21, s5, 0xffff'); S('s_mov_b32 s22, s18'); S('s_mov_b32 s23, 0x00020000')
    for i in range(8):
        S('s_mov_b32 s18, s34')
        if i >> 2: S('s_add_u32 s18, s18, s35')
        if (i >> 1) & 1: S('s_add_u32 s18, s18, s36')
        if i & 1: S('s_add_u32 s18, s18, s37')
        S(f's_add_u32 m0, s12, {i*1024}')
        S(f'buffer_load_dwordx4 v{vA[(i>>1)&1]}, s[20:23], s18 offen lds', tag='p')
    if after_issue: after_issue(8)
    aT = T + 2; t = T + 10
    S(f'v_lshrrev_b32 v{t}, 4, v0')
    S(f'v_lshrrev_b32 v{t+1}, 2, v0'); S(f'v_and_b32 v{t+1}, 3, v{t+1}')
    S(f'v_and_b32 v{t+2}, 3, v0')
    S(f'v_lshl_add_u32 v{t+3}, v{t}, 3, v{t+1}'); S(f'v_lshlrev_b32 v{t+3}, 8, v{t+3}')
    S(f'v_and_b32 v{t+4}, 1, v{t}'); S(f'v_lshlrev_b32 v{t+4}, 3, v{t+4}')
    S(f'v_lshl_or_b32 v{t+4}, v{t+1}, 1, v{t+4}')
    S(f'v_lshrrev_b32 v{t+5}, 1, v{t+2}'); S(f'v_xor_b32 v{t+4}, v{t+4}, v{t+5}')
    S(f'v_lshl_add_u32 v{t+3}, v{t+4}, 4, v{t+3}')
    S(f'v_and_b32 v{t+5}, 1, v{t+2}'); S(f'v_lshl_add_u32 v{t+3}, v{t+5}, 3, v{t+3}')
    S(f'v_add_u32 v{aT}, s12, v{t+3}')
    for f in range(1, 8): S(f'v_xor_b32 v{aT+f}, {f<<5}, v{aT}')
    vS = t
    S(f'v_lshlrev_b32 v{vS}, 4, v0')
    S(f's_mov_b32 s18, {WDF_OFF}'); S('s_cmp_eq_u32 s13, 1'); S(f's_cselect_b32 s18, {WOF_OFF}, s18')
    S('s_add_u32 s24, s8, s18'); S('s_addc_u32 s25, s9, 0'); S('s_and_b32 s25, s25, 0xffff')
    S(f's_mov_b32 s26, {WDF_SZ}'); S('s_cmp_eq_u32 s13, 1'); S(f's_cselect_b32 s26, {WOF_SZ}, s26'); S('s_mov_b32 s27, 0x00020000')
    S('s_mov_b32 s33, 54'); S('s_cmp_eq_u32 s13, 1'); S('s_cselect_b32 s33, 20, s33')
    FR = T + 18 + ((T + 18) & 1)
    S.wait_tag('p')
    for f in range(8):
        for p in range(2):
            S(f'ds_read_b64_tr_b16 {v(FR+4*f+2*p,2)}, v{aT+f} offset:{p*1024}')
    for f in range(8):
        S(f's_lshl_b32 s34, s16, 3'); S(f's_add_u32 s34, s34, {f}')
        div5(S, 35, 34, 36)
        S('s_mul_i32 s35, s35, s33'); S('s_add_u32 s35, s35, s15'); S('s_mul_i32 s35, s35, 5'); S('s_add_u32 s35, s35, s36')
        S('s_lshl_b32 s35, s35, 10')
        S(f'buffer_store_dwordx4 {v(FR+4*f,4)}, v{vS}, s[24:27], s35 offen{smod}')
    S(f's_branch L_rdone_{name}')
    S.label(f'L_rnone_{name}')
    S.hist = []; S.lds = []; S.vm = []
    if after_issue: after_issue(0)
    S.label(f'L_rdone_{name}')

if __name__ == '__main__':
    A = Asm()
    A.raw(f'; @launch kernel=phR_kernel grid=(256,1,1) block=(256,1,1) lds={LDS_R}')
    A.raw('.amdgcn_target "amdgcn-amd-amdhsa--gfx950"')
    gen(A)
    open('r.s','w').write(A.text())
```

```python
import sys; sys.path.insert(0,'gen')
from build import *
import phaseN, phaseP
N = (phaseN, 'phN_kernel', 256, 256, 0, {})
P = PARTS
build('x1.s', P)
build('x2.s', [N] + P)
build('x3.s', [(phaseP, 'phP_kernel', 256, 256, 0, dict(code=False, data=True, which=(0,1)))] + P)
build('x4.s', [(phaseP, 'phP_kernel', 256, 256, 0, dict(code=False, data=True))] + P)
build('x5.s', [P[0]] + P)
build('x6.s', P + [P[-1]])
```

```python
import os
from common import *
EARLY = int(os.environ.get('EARLY', '1'))
ENT = os.environ.get('ENT', '')
LNT = os.environ.get('LNT', '')

NS = 4
ACT_BASE = 0
W_BASE = 65536
X_BASE = 131072
LDS_A = 131072 + 2048
NST = 10
QSCALE = 20 ** -0.5 * 1.4426950408889634

def f32bits(x):
    import struct
    return struct.unpack('<I', struct.pack('<f', x))[0]

def gen(A, name='phA_kernel', stamps=False):
    S = Sched(A); S.name = name; S.stamps = stamps
    kernel_header(A, name)
    S(f's_load_dwordx2 s[4:5], s[0:1], {KA_X}')
    S(f's_load_dwordx2 s[6:7], s[0:1], {KA_WQKV}')
    S(f's_load_dwordx2 s[8:9], s[0:1], {KA_WS}')
    prologue_guard(S, 256)
    S('s_and_b32 s13, s2, 7'); S('s_lshr_b32 s14, s2, 3')
    S('s_lshr_b32 s12, s13, 1'); S('s_lshl_b32 s12, s12, 2'); S('s_lshr_b32 s15, s14, 3'); S('s_add_u32 s12, s12, s15')
    if not EARLY:
        S('s_cmp_ge_u32 s12, 15'); S(f's_cbranch_scc1 L_exit_{name}')
    S('v_lshrrev_b32 v1, 6, v0')
    S('s_and_b32 s11, s13, 1'); S('s_lshl_b32 s11, s11, 3'); S('s_and_b32 s15, s14, 7'); S('s_add_u32 s11, s11, s15')
    S('v_readfirstlane_b32 s10, v1')
    S('v_and_b32 v0, 63, v0')
    if EARLY:
        S('s_lshr_b32 s29, s14, 3')
        S('s_cmp_ge_u32 s12, 15'); S(f's_cbranch_scc1 L_idle_{name}')
    stamp(S, 0)
    S('s_cmp_ge_u32 s10, 4')
    S(f's_cbranch_scc1 L_prod_{name}')
    consumer(S, name)
    S.label(f'L_prod_{name}')
    S.hist = []; S.lds = []; S.vm = []; S.smem_pending = [('s', i) for i in range(4, 10)]
    if EARLY:
        producer2(S, name)
        S.label(f'L_idle_{name}')
        S.hist = []; S.lds = []; S.vm = []; S.smem_pending = [('s', i) for i in range(4, 10)]
        idle(S, name)
    else:
        producer(S, name)
    S.label(f'L_exit_{name}')
    S('s_endpgm')
    kernel_desc(A, name, 184, 102)

def dma_stage(t, pw4k, vA, vW, sx, sw):
    slot = t % NS
    out = []
    for ii in range(4):
        out.append([f's_add_u32 m0, s{pw4k}, {ACT_BASE + slot*16384 + ii*1024}',
                    f's_mov_b32 s18, {ii*10240 + t*128}',
                    f'buffer_load_dwordx4 v{vA[ii&1]}, s[{sx}:{sx+3}], s18 offen lds'])
        out.append([f's_add_u32 m0, s{pw4k}, {W_BASE + slot*16384 + ii*1024}',
                    f's_mov_b32 s18, {(t*64 + 4*ii)*3840}',
                    f'buffer_load_dwordx4 v{vW[ii>>1]}, s[{sw}:{sw+3}], s18 offen lds'])
    return out

def producer(S, name):
    vA = [2, 3]; vW = [4, 5]; t0, t1, t2 = 6, 7, 8
    S('s_sub_u32 s19, s10, 4')
    S('s_lshl_b32 s28, s19, 12')
    S(f'v_lshrrev_b32 v{t0}, 3, v0')
    S(f'v_mul_u32_u24 v{t0}, 1280, v{t0}')
    S(f'v_lshrrev_b32 v{t1}, 4, v0')
    S(f'v_and_b32 v{t2}, 7, v0')
    S(f'v_xor_b32 v{t2}, v{t2}, v{t1}')
    S('s_lshl_b32 s16, s11, 2'); S('s_add_u32 s16, s16, s19'); S(f's_mul_i32 s16, s16, {32*1280}')
    S(f'v_add_u32 v{t0}, s16, v{t0}')
    S(f'v_lshl_add_u32 v{vA[0]}, v{t2}, 4, v{t0}')
    S(f'v_xor_b32 v{vA[1]}, 64, v{vA[0]}')
    S(f's_mul_i32 s16, s19, {16*3840}'); S('s_lshl_b32 s17, s12, 8'); S('s_add_u32 s16, s16, s17')
    S(f'v_mul_u32_u24 v{t0}, 3840, v{t1}')
    S(f'v_add_u32 v{t0}, s16, v{t0}')
    S(f'v_and_b32 v{t2}, 15, v0')
    S(f'v_lshlrev_b32 v{t1}, 1, v{t1}')
    S(f'v_xor_b32 v{t2}, v{t2}, v{t1}')
    S(f'v_lshl_add_u32 v{vW[0]}, v{t2}, 4, v{t0}')
    S(f'v_xor_b32 v{vW[1]}, 128, v{vW[0]}')
    srd(S, 20, 4, 2048*1280)
    srd(S, 24, 6, 640*3840)
    def issue(t):
        for g in dma_stage(t, 28, vA, vW, 20, 24):
            for x in g: S(x, tag=t)
    issue(0)
    stamp(S, 1)
    issue(1)
    S.wait_tag(0)
    stamp(S, 2)
    S('s_barrier')
    issue(2); issue(3)
    for t in range(NST):
        if t + 1 < NST: S.wait_tag(t + 1)
        S('s_barrier')
        if t + NS < NST: issue(t + NS)
    stamp(S, 3)
    S('s_barrier')
    stamp_flush(S, 4, 10, 0)
    S('s_endpgm')

def prod_addr(S, vA, vW0):
    t0, t1, t2 = 20, 21, 22
    S(f'v_lshrrev_b32 v{t0}, 3, v0')
    S(f'v_mul_u32_u24 v{t0}, 1280, v{t0}')
    S(f'v_lshrrev_b32 v{t1}, 4, v0')
    S(f'v_and_b32 v{t2}, 7, v0')
    S(f'v_xor_b32 v{t2}, v{t2}, v{t1}')
    S(f's_mul_i32 s16, s11, {128*1280}')
    S(f'v_add_u32 v{t0}, s16, v{t0}')
    S(f'v_lshl_add_u32 v{vA[0]}, v{t2}, 4, v{t0}')
    S(f'v_xor_b32 v{vA[1]}, 64, v{vA[0]}')
    if vW0 is not None:
        S('s_lshl_b32 s17, s12, 8')
        S(f'v_mul_u32_u24 v{t0}, 3840, v{t1}')
        S(f'v_add_u32 v{t0}, s17, v{t0}')
        S(f'v_and_b32 v{t2}, 15, v0')
        S(f'v_lshlrev_b32 v{t1}, 1, v{t1}')
        S(f'v_xor_b32 v{t2}, v{t2}, v{t1}')
        S(f'v_lshl_add_u32 v{vW0}, v{t2}, 4, v{t0}')

def idle(S, name):
    S('s_cmp_lg_u32 s10, 7'); S(f's_cbranch_scc1 L_exit_{name}')
    vA = [2, 3]
    prod_addr(S, vA, None)
    srd(S, 20, 4, 2048*1280)
    S('s_lshl_b32 s30, s29, 12'); S(f's_mul_i32 s31, s29, {4*10240}')
    for t in range(NST):
        for ii in range(4):
            S(f's_add_u32 m0, s30, {(t % NS)*16384 + ii*1024}')
            S(f's_add_u32 s18, s31, {ii*10240 + t*128}')
            S(f'buffer_load_dwordx4 v{vA[ii&1]}, s[20:23], s18 offen{ENT} lds')
    S.wait(vm=0)
    S('s_endpgm')

def producer2(S, name):
    vA = [2, 3]; vW0 = 4; vWl = [5, 6, 7, 8, 9]
    S('s_sub_u32 s19, s10, 4')
    prod_addr(S, vA, vW0)
    srd(S, 20, 4, 2048*1280)
    srd(S, 24, 6, 640*3840)
    S('s_cmp_eq_u32 s19, 3'); S(f's_cbranch_scc1 L_early_{name}')
    S('s_add_u32 s16, s29, s19'); S('s_add_u32 s16, s16, 1'); S('s_and_b32 s16, s16, 3')
    S('s_lshl_b32 s30, s16, 12'); S(f's_mul_i32 s31, s16, {4*10240}')
    S('s_lshl_b32 s16, s15, 1'); S('s_mul_i32 s17, s19, 5'); S('s_add_u32 s16, s16, s17'); S('s_add_u32 s16, s16, 2')
    for ii in range(5):
        S(f's_add_u32 s17, s16, {ii}'); S('s_and_b32 s17, s17, 15')
        S(f's_lshl_b32 s{32+ii}, s17, 10'); S(f's_mul_i32 s{38+ii}, s17, 15360')
        S('s_lshl_b32 s17, s17, 6'); S('s_and_b32 s17, s17, 128')
        S(f'v_xor_b32 v{vWl[ii]}, s17, v{vW0}')
    def late(t):
        slot = t % NS
        for ii in range(5):
            if ii < 4:
                S(f's_add_u32 m0, s30, {ACT_BASE + slot*16384 + ii*1024}', tag=t)
                S(f's_add_u32 s18, s31, {ii*10240 + t*128}')
                S(f'buffer_load_dwordx4 v{vA[ii&1]}, s[20:23], s18 offen{LNT} lds', tag=t)
            if ii == 4:
                lab = f'L_sk{t}_{name}'
                S('s_cmp_eq_u32 s19, 2'); S(f's_cbranch_scc1 {lab}')
            S(f's_add_u32 m0, s{32+ii}, {W_BASE + slot*16384}')
            S(f's_add_u32 s18, s{38+ii}, {t*64*3840}')
            S(f'buffer_load_dwordx4 v{vWl[ii]}, s[24:27], s18 offen{LNT} lds', tag=t)
            if ii == 4: S.label(lab)
    late(0)
    stamp(S, 1)
    S.wait(vm=0)
    stamp(S, 2)
    S('s_barrier')
    LD = int(os.environ.get('LD', '2'))
    for u in range(1, LD + 1): late(u)
    for t in range(NST):
        if t + 1 < NST:
            n_out = min(LD - 1, NST - 1 - (t + 1))
            S.A.raw(f'  s_waitcnt vmcnt({8*n_out})'); S.vm = []
        S('s_barrier')
        if t + 1 + LD < NST: late(t + 1 + LD)
    stamp(S, 3)
    S('s_barrier')
    stamp_flush(S, 4, 10, 0)
    S('s_endpgm')
    S.label(f'L_early_{name}')
    S.hist = []; S.lds = []; S.vm = []
    S('s_lshl_b32 s30, s29, 12'); S(f's_mul_i32 s31, s29, {4*10240}')
    S('s_lshl_b32 s32, s15, 11'); S(f's_mul_i32 s33, s15, {2*15360}')
    S('s_and_b32 s17, s15, 1'); S('s_lshl_b32 s17, s17, 7'); S(f'v_xor_b32 v{vWl[0]}, s17, v{vW0}')
    def early(t):
        slot = t % NS
        for ii in range(4):
            S(f's_add_u32 m0, s30, {ACT_BASE + slot*16384 + ii*1024}')
            S(f's_add_u32 s18, s31, {ii*10240 + t*128}')
            S(f'buffer_load_dwordx4 v{vA[ii&1]}, s[20:23], s18 offen{ENT} lds', tag=t)
            if ii < 2:
                S(f's_add_u32 m0, s32, {W_BASE + slot*16384 + ii*1024}')
                S(f's_add_u32 s18, s33, {t*64*3840 + ii*15360}')
                S(f'buffer_load_dwordx4 v{vWl[0]}, s[24:27], s18 offen{ENT} lds', tag=t)
    NE0 = int(os.environ.get('NE0', '4'))
    for t in range(NE0): early(t)
    stamp(S, 1)
    S.wait_tag(0)
    stamp(S, 2)
    S('s_barrier')
    for t in range(NE0, NS): early(t)
    for t in range(NST):
        if t + 1 < NST: S.wait_tag(t + 1)
        S('s_barrier')
        if t + NS < NST: early(t + NS)
    stamp(S, 3)
    S('s_barrier')
    stamp_flush(S, 4, 10, 0)
    S('s_endpgm')

def consumer(S, name):
    vG = 1; vT = 2
    aB = [[3, 4], [5, 6]]
    aW = [7, 8, 9, 10]
    T = 11
    ACC = 24
    GR = 88
    RS = 96
    CSA = 104
    OPA = 112
    OPB = 144
    ONES = 176
    acc = lambda i, j: ACC + (i*4 + j)*4
    opa = lambda b, i: OPA + b*16 + i*4
    opb = lambda b, j: OPB + b*16 + j*4
    S('s_lshr_b32 s14, s10, 1')
    S('s_and_b32 s15, s10, 1')
    S(f'v_lshrrev_b32 v{vG}, 4, v0')
    S(f'v_and_b32 v{vT}, 15, v0')
    S(f'v_lshrrev_b32 v{T}, 1, v{vT}')
    S(f'v_xor_b32 v{T}, v{T}, v{vG}')
    S(f'v_lshlrev_b32 v{T}, 4, v{T}')
    S(f'v_lshl_add_u32 v{T}, v{vT}, 7, v{T}')
    S('s_lshl_b32 s16, s14, 2'); S('s_lshl_b32 s17, s15, 1')
    S('s_add_u32 s18, s16, s17')
    S('s_xor_b32 s19, s18, 2')
    S('s_lshl_b32 s16, s18, 11'); S('s_lshl_b32 s17, s19, 11')
    S(f'v_add_u32 v{aB[0][0]}, s16, v{T}'); S(f'v_add_u32 v{aB[0][1]}, s17, v{T}')
    S(f'v_xor_b32 v{aB[1][0]}, 64, v{aB[0][0]}'); S(f'v_xor_b32 v{aB[1][1]}, 64, v{aB[0][1]}')
    S(f'v_and_b32 v{T}, 3, v0')
    S(f'v_lshrrev_b32 v{T+1}, 2, v0'); S(f'v_and_b32 v{T+1}, 3, v{T+1}')
    S(f'v_lshl_add_u32 v{T+2}, v{vG}, 3, v{T+1}')
    S(f'v_lshlrev_b32 v{T+2}, 8, v{T+2}')
    S(f'v_add_u32 v{T+2}, {W_BASE}, v{T+2}')
    S(f'v_and_b32 v{T+3}, 1, v{vG}'); S(f'v_lshlrev_b32 v{T+3}, 3, v{T+3}')
    S(f'v_lshl_or_b32 v{T+3}, v{T+1}, 1, v{T+3}')
    S(f'v_xor_b32 v{T+3}, v{T+3}, v{T}')
    S(f'v_lshrrev_b32 v{T+4}, 1, v{T}')
    S(f'v_lshl_add_u32 v{T+2}, v{T+4}, 3, v{T+2}')
    S('s_lshl_b32 s20, s15, 1'); S('s_add_u32 s20, s20, s14'); S('s_xor_b32 s21, s20, 1')
    for z in range(2):
        S(f's_lshl_b32 s16, s{20+z}, 2')
        S(f'v_xor_b32 v{T+5}, s16, v{T+3}')
        S(f'v_lshl_add_u32 v{aW[2*z]}, v{T+5}, 4, v{T+2}')
        S(f'v_xor_b32 v{aW[2*z+1]}, 8, v{aW[2*z]}')
    for k in range(4): S(f'v_mov_b32 v{ONES+k}, 0x3f803f80')
    def reads(sig):
        t, s_ = sig >> 1, sig & 1
        slot = t % NS; b = sig & 1
        L = []
        for q in range(4):
            L.append(f'ds_read_b128 {v(opb(b,q),4)}, v{aB[s_][q>>1]} offset:{slot*16384 + (q&1)*2048}')
            for p in range(2):
                L.append(f'ds_read_b64_tr_b16 {v(opa(b,q)+2*p,2)}, v{aW[q]} offset:{slot*16384 + s_*8192 + p*1024}')
        return L
    stamp(S, 1)
    S('s_barrier')
    stamp(S, 2)
    for x in reads(0): S(x)
    for sig in range(2*NST):
        b = sig & 1
        mf = []
        def M(d, aa, bb):
            c_ = v(d,4) if sig else '0'
            mf.append(f'v_mfma_f32_16x16x32_bf16 {v(d,4)}, {v(aa,4)}, {v(bb,4)}, {c_}')
        for i in range(4):
            for j in range(4):
                M(acc(i,j), opa(b,i), opb(b,j))
            if i < 2:
                M(GR+4*i, opb(b,i), opb(b,i))
                M(RS+4*i, ONES, opb(b,i))
                M(CSA+4*i, opa(b,i), ONES)
        if b == 1:
            S.wait(lgkm=0)
            S('s_barrier')
        fl = reads(sig + 1) if sig + 1 < 2*NST else []
        S(mf[0])
        n = len(fl); k = 0
        for m in mf[1:]:
            if k < n: S(fl[k]); k += 1
            S(m)
        assert k == n
    stamp(S, 3)
    CSo = X_BASE + 1024
    S(f'v_and_b32 v{T}, 3, v0')
    S(f'v_cmp_eq_u32 s[30:31], 1, v{T}'); S(f'v_cmp_eq_u32 s[32:33], 2, v{T}'); S(f'v_cmp_eq_u32 s[34:35], 3, v{T}')
    S(f's_mov_b32 s26, 0x{f32bits(1/640):08x}'); S(f's_mov_b32 s27, 0x{f32bits(1e-5):08x}')
    S(f's_cmp_lt_u32 s12, 5'); S(f's_cselect_b32 s36, 0x{f32bits(QSCALE):08x}, 1.0')
    for j in range(2):
        q = T + 5 + 2*j + 1; m = T + 5 + 2*j
        S(f'v_cndmask_b32 v{q}, v{GR+4*j}, v{GR+4*j+1}, s[30:31]')
        S(f'v_mul_f32 v{m}, s26, v{RS+4*j}')
        S(f'v_cndmask_b32 v{q}, v{q}, v{GR+4*j+2}, s[32:33]')
        S(f'v_cndmask_b32 v{q}, v{q}, v{GR+4*j+3}, s[34:35]')
    for j in range(2):
        q = T + 5 + 2*j + 1; m = T + 5 + 2*j
        S(f'v_mul_f32 v{q}, s26, v{q}')
        S(f'v_fma_f32 v{q}, -v{m}, v{m}, v{q}')
        S(f'v_max_f32 v{q}, 0, v{q}')
        bf16_round(S, q, q)
        S(f'v_add_f32 v{q}, s27, v{q}')
        bf16_round(S, q, q)
        S(f'v_sqrt_f32 v{q}, v{q}')
        bf16_round(S, m, m)
        bf16_round(S, q, q)
        S(f'v_rcp_f32 v{q}, v{q}')
        S(f'v_mul_f32 v{q}, s36, v{q}')
    S(f'v_lshlrev_b32 v{T+1}, 3, v{vT}')
    S('s_lshl_b32 s16, s18, 7'); S('s_lshl_b32 s17, s19, 7')
    S(f's_add_u32 s16, s16, {X_BASE}'); S(f's_add_u32 s17, s17, {X_BASE}')
    S(f'v_add_u32 v{T+2}, s16, v{T+1}'); S(f'v_add_u32 v{T+3}, s17, v{T+1}')
    S('s_mov_b32 s38, 0x00F0000F'); S('s_mov_b32 s39, 0xF0000F00')
    S('s_mov_b64 exec, s[38:39]')
    for j in range(2):
        S(f'ds_write_b64 v{T+2}, {v(T+5+2*j,2)} offset:{j*128}')
    S('s_mov_b64 exec, -1')
    S(f'v_lshlrev_b32 v{T+10}, 4, v{vG}')
    S('s_lshl_b32 s16, s20, 7'); S('s_lshl_b32 s17, s21, 7')
    S(f's_add_u32 s16, s16, {CSo}'); S(f's_add_u32 s17, s17, {CSo}')
    S(f'v_add_u32 v{T+11}, s17, v{T+10}'); S(f'v_add_u32 v{T+10}, s16, v{T+10}')
    S('s_mov_b32 s38, 0x00010001'); S('s_mov_b32 s39, 0x00010001')
    S('s_mov_b64 exec, s[38:39]')
    for e in range(2):
        S(f'ds_write_b128 v{T+10}, {v(CSA+4*e,4)} offset:{e*64}')
    S('s_mov_b64 exec, -1')
    srd_off(S, 40, 8, QKV_OFF, QKV_SZ)
    VO = OPB
    for z in range(2):
        S(f's_lshl_b32 s16, s12, 2'); S(f's_add_u32 s16, s16, s{20+z}'); S('s_lshl_b32 s16, s16, 2')
        S(f'v_add_u32 v{T}, s16, v{vG}')
        S(f'v_lshlrev_b32 v{T}, 15, v{T}')
        S(f'v_lshl_add_u32 v{T}, v{vT}, 4, v{T}')
        for hf in range(2):
            S(f's_lshl_b32 s16, s11, 3'); S(f's_add_u32 s16, s16, s{18+hf}'); S('s_lshl_b32 s16, s16, 8')
            S(f'v_add_u32 v{VO+2*z+hf}, s16, v{T}')
    S.wait(lgkm=0)
    S('s_barrier')
    stamp(S, 4)
    ST = OPA
    CS2 = OPA + 8
    for j in range(4):
        S(f'ds_read_b64 {v(ST+2*j,2)}, v{T+2+(j>>1)} offset:{(j&1)*128}')
    for e in range(2):
        S(f'ds_read_b128 {v(CS2+4*e,4)}, v{T+11} offset:{e*64}')
    OUT = OPA + 16
    n = 0
    for z in range(2):
        for j in range(4):
            o = OUT + 4*(n & 3); n += 1
            for e in range(2):
                i = 2*z + e
                cs = (CSA + 4*e) if z == 0 else (CS2 + 4*e)
                a_ = acc(i, j)
                for h in range(2):
                    S(f'v_pk_fma_f32 {v(a_+2*h,2)}, {v(cs+2*h,2)}, {v(ST+2*j,2)}, {v(a_+2*h,2)} op_sel:[0,0,0] op_sel_hi:[1,0,1] neg_lo:[0,1,0] neg_hi:[0,1,0]')
                for h in range(2):
                    S(f'v_pk_mul_f32 {v(a_+2*h,2)}, {v(a_+2*h,2)}, {v(ST+2*j,2)} op_sel:[0,1] op_sel_hi:[1,1]')
                for h in range(2):
                    S(f'v_cvt_pk_bf16_f32 v{o+2*e+h}, v{a_+2*h}, v{a_+2*h+1}')
            S(f'buffer_store_dwordx4 {v(o,4)}, v{VO+2*z+(j>>1)}, s[40:43], 0 offen offset:{(j&1)*256}')
    stamp(S, 5)
    stamp_flush(S, 6, 10, 0)
    S('s_endpgm')

if __name__ == '__main__':
    A = Asm()
    A.raw(f'; @launch kernel=phA_kernel grid=(256,1,1) block=(512,1,1) lds={LDS_A}')
    A.raw('.amdgcn_target "amdgcn-amd-amdhsa--gfx950"')
    gen(A)
    open('a.s','w').write(A.text())
```

```python
import os
from common import *
RNT = os.environ.get('RNT', ' nt')

LDS_R = 4*16384

def div5(S, d, src, tmp):
    S(f's_mul_i32 s{d}, s{src}, 52429'); S(f's_lshr_b32 s{d}, s{d}, 18')
    S(f's_mul_i32 s{tmp}, s{d}, 5'); S(f's_sub_u32 s{tmp}, s{src}, s{tmp}')

def gen(A, name='phR_kernel', stamps=False):
    S = Sched(A); S.name = name; S.stamps = stamps
    kernel_header(A, name)
    S(f's_load_dwordx2 s[8:9], s[0:1], {KA_WS}')
    prologue_guard(S, 256)
    S('v_lshrrev_b32 v1, 6, v0')
    S('v_readfirstlane_b32 s10, v1')
    S('v_and_b32 v0, 63, v0')
    stamp(S, 0)
    repack(S, name, 10, 0)
    stamp_flush(S, 1, 10, 0, kern_idx=5)
    S.label(f'L_exit_{name}')
    S('s_endpgm')
    kernel_desc(A, name, 128, 102)

def repack(S, name, sw, lds_base, T=1, after_issue=None, smod=""):
    S(f's_lshl_b32 s11, s{sw}, 8'); S('s_add_u32 s11, s11, s2')
    S(f's_lshl_b32 s12, s{sw}, 14')
    if lds_base: S(f's_add_u32 s12, s12, {lds_base}')
    S('s_cmp_ge_u32 s11, 640'); S(f's_cbranch_scc1 L_rnone_{name}')
    S('s_cmp_ge_u32 s11, 270'); S(f's_cbranch_scc1 L_rdo_{name}')
    S('s_cmp_ge_u32 s11, 135'); S('s_cselect_b32 s13, 1, 0')
    S('s_mul_i32 s14, s13, 135'); S('s_sub_u32 s14, s11, s14')
    div5(S, 15, 14, 16)
    S('s_lshl_b32 s17, s13, 3'); S(f's_add_u32 s17, s17, {KA_WG}')
    S('s_load_dwordx2 s[4:5], s[0:1], s17')
    vA = [T, T+1]; t = T + 2
    S(f'v_lshrrev_b32 v{t}, 3, v0')
    S(f'v_and_b32 v{t+1}, 2, v{t}'); S(f'v_and_b32 v{t+2}, 7, v0'); S(f'v_xor_b32 v{t+1}, v{t+1}, v{t+2}')
    S(f'v_mul_u32_u24 v{t}, 3456, v{t}')
    S(f'v_lshl_add_u32 v{vA[0]}, v{t+1}, 4, v{t}')
    S('s_lshl_b32 s18, s15, 7'); S(f'v_add_u32 v{vA[0]}, s18, v{vA[0]}')
    S(f'v_xor_b32 v{vA[1]}, 64, v{vA[0]}')
    S('s_waitcnt lgkmcnt(0)')
    srd(S, 20, 4, 640*3456)
    S(f's_mul_i32 s19, s16, {128*3456}')
    for i in range(16):
        S(f's_add_u32 m0, s12, {i*1024}')
        S(f's_add_u32 s18, s19, {8*i*3456}')
        S(f'buffer_load_dwordx4 v{vA[i&1]}, s[20:23], s18 offen{RNT} lds', tag='p')
    if after_issue: after_issue(16)
    aT = T + 2
    t = T + 6
    S(f'v_lshrrev_b32 v{t}, 4, v0')
    S(f'v_lshrrev_b32 v{t+1}, 2, v0'); S(f'v_and_b32 v{t+1}, 3, v{t+1}')
    S(f'v_and_b32 v{t+2}, 3, v0')
    S(f'v_lshl_add_u32 v{t+3}, v{t}, 3, v{t+1}'); S(f'v_lshlrev_b32 v{t+3}, 7, v{t+3}')
    S(f'v_and_b32 v{t+4}, 1, v{t}'); S(f'v_lshlrev_b32 v{t+4}, 2, v{t+4}')
    S(f'v_and_b32 v{t+5}, 2, v{t+1}'); S(f'v_or_b32 v{t+4}, v{t+4}, v{t+5}')
    S(f'v_lshrrev_b32 v{t+5}, 1, v{t+2}'); S(f'v_xor_b32 v{t+4}, v{t+4}, v{t+5}')
    S(f'v_lshl_add_u32 v{t+3}, v{t+4}, 4, v{t+3}')
    S(f'v_and_b32 v{t+5}, 1, v{t+2}'); S(f'v_lshl_add_u32 v{t+3}, v{t+5}, 3, v{t+3}')
    S(f'v_add_u32 v{aT}, s12, v{t+3}')
    for f in range(1, 4): S(f'v_xor_b32 v{aT+f}, {f<<5}, v{aT}')
    vS = T + 6
    S(f'v_lshrrev_b32 v{t+1}, 1, v{t}'); S(f'v_lshlrev_b32 v{t+1}, 10, v{t+1}')
    S(f'v_and_b32 v{t+2}, 1, v{t}'); S(f'v_lshl_add_u32 v{t+1}, v{t+2}, 8, v{t+1}')
    S(f'v_and_b32 v{t+2}, 15, v0'); S(f'v_lshl_add_u32 v{t+1}, v{t+2}, 4, v{t+1}')
    S(f'v_lshlrev_b32 v{t+3}, 4, v{t}'); S(f'v_mov_b32 v{t+4}, 0x40000000')
    S(f'v_cmp_eq_u32 vcc, 0, v{t+2}'); S(f'v_cndmask_b32 v{t+3}, v{t+4}, v{t+3}, vcc')
    S(f'v_mov_b32 v{vS}, v{t+1}'); vC = vS + 1; S(f'v_mov_b32 v{vC}, v{t+3}')
    srd_off(S, 24, 8, WGU_OFF, WGU_SZ)
    srd_off(S, 28, 8, CS_OFF, CS_SZ)
    S('s_mul_i32 s18, s15, 160'); S('s_lshl_b32 s19, s16, 3'); S('s_add_u32 s18, s18, s19'); S('s_lshl_b32 s18, s18, 10')
    S('s_lshl_b32 s19, s13, 9'); S('s_add_u32 s33, s18, s19')
    ON = T + 9 + ((T + 9) & 1); FR = ON + 4; AC = FR + 16*4
    for k in range(4): S(f'v_mov_b32 v{ON+k}, 0x3f803f80')
    S.wait_tag('p')
    for kap in range(4):
        for f in range(4):
            fr = FR + 4*((4*kap + f) & 15)
            for p in range(2):
                S(f'ds_read_b64_tr_b16 {v(fr+2*p,2)}, v{aT+f} offset:{kap*4096 + p*512}')
    for kap in range(4):
        for f in range(4):
            fr = FR + 4*((4*kap + f) & 15)
            S(f's_add_u32 s18, s33, {(f*40 + 2*kap)*1024}')
            S(f'buffer_store_dwordx4 {v(fr,4)}, v{vS}, s[24:27], s18 offen{smod}')
            S(f'v_mfma_f32_16x16x32_bf16 {v(AC+4*f,4)}, {v(fr,4)}, {v(ON,4)}, {v(AC+4*f,4) if kap else "0"}')
    S('s_mul_i32 s18, s16, 3456'); S('s_mul_i32 s19, s13, 1728'); S('s_add_u32 s18, s18, s19')
    S('s_lshl_b32 s19, s15, 6'); S('s_add_u32 s18, s18, s19'); S('s_lshl_b32 s18, s18, 2')
    for f in range(4):
        S(f'buffer_store_dwordx4 {v(AC+4*f,4)}, v{vC}, s[28:31], s18 offen offset:{64*f}{smod}')
    S(f's_branch L_rdone_{name}')
    S.label(f'L_rdo_{name}')
    S.hist = []; S.lds = []; S.vm = []
    S('s_cmp_ge_u32 s11, 540'); S('s_cselect_b32 s13, 1, 0')
    S('s_mul_i32 s14, s13, 270'); S('s_add_u32 s14, s14, 270'); S('s_sub_u32 s14, s11, s14')
    div5(S, 15, 14, 16)
    S(f's_cmp_eq_u32 s13, 1'); S(f's_cselect_b32 s17, {KA_WO}, {KA_WD}') if False else None
    S(f's_mov_b32 s17, {KA_WD}'); S('s_cmp_eq_u32 s13, 1'); S(f's_cselect_b32 s17, {KA_WO}, s17')
    S('s_load_dwordx2 s[4:5], s[0:1], s17')
    S('s_lshl_b32 s34, s15, 5'); S('s_mov_b32 s35, 16'); S('s_mov_b32 s36, 8'); S('s_mov_b32 s37, 4')
    S('s_cmp_eq_u32 s13, 0'); S(f's_cbranch_scc1 L_rrow_{name}')
    S('s_mul_i32 s34, s15, 40'); S('s_mov_b32 s35, 24'); S('s_mov_b32 s36, 4'); S('s_mov_b32 s37, 8')
    S('s_cmp_lt_u32 s15, 16'); S(f's_cbranch_scc1 L_rrow_{name}')
    S('s_sub_u32 s34, s15, 16'); S('s_mul_i32 s34, s34, 160'); S('s_add_u32 s34, s34, 16')
    S('s_mov_b32 s35, 80'); S('s_mov_b32 s36, 40'); S('s_mov_b32 s37, 4')
    S.label(f'L_rrow_{name}')
    vA = [T, T+1]; t = T + 2
    S(f'v_lshrrev_b32 v{t}, 4, v0')
    S(f'v_lshlrev_b32 v{t+1}, 1, v{t}'); S(f'v_and_b32 v{t+2}, 15, v0'); S(f'v_xor_b32 v{t+1}, v{t+1}, v{t+2}')
    S(f'v_mul_u32_u24 v{t}, 1280, v{t}')
    S(f'v_lshl_add_u32 v{vA[0]}, v{t+1}, 4, v{t}')
    S('s_lshl_b32 s18, s16, 8'); S(f'v_add_u32 v{vA[0]}, s18, v{vA[0]}')
    S(f'v_xor_b32 v{vA[1]}, 128, v{vA[0]}')
    for k in (34, 35, 36, 37): S(f's_mul_i32 s{k}, s{k}, 1280')
    S('s_waitcnt lgkmcnt(0)')
    S('s_cmp_eq_u32 s13, 1'); S(f's_cselect_b32 s18, {640*1280}, {1728*1280}') if False else None
    S(f's_mov_b32 s18, {1728*1280}'); S('s_cmp_eq_u32 s13, 1'); S(f's_cselect_b32 s18, {640*1280}, s18')
    S('s_mov_b32 s20, s4'); S('s_and_b32 s21, s5, 0xffff'); S('s_mov_b32 s22, s18'); S('s_mov_b32 s23, 0x00020000')
    for i in range(8):
        S('s_mov_b32 s18, s34')
        if i >> 2: S('s_add_u32 s18, s18, s35')
        if (i >> 1) & 1: S('s_add_u32 s18, s18, s36')
        if i & 1: S('s_add_u32 s18, s18, s37')
        S(f's_add_u32 m0, s12, {i*1024}')
        S(f'buffer_load_dwordx4 v{vA[(i>>1)&1]}, s[20:23], s18 offen{RNT} lds', tag='p')
    if after_issue: after_issue(8)
    aT = T + 2; t = T + 10
    S(f'v_lshrrev_b32 v{t}, 4, v0')
    S(f'v_lshrrev_b32 v{t+1}, 2, v0'); S(f'v_and_b32 v{t+1}, 3, v{t+1}')
    S(f'v_and_b32 v{t+2}, 3, v0')
    S(f'v_lshl_add_u32 v{t+3}, v{t}, 3, v{t+1}'); S(f'v_lshlrev_b32 v{t+3}, 8, v{t+3}')
    S(f'v_and_b32 v{t+4}, 1, v{t}'); S(f'v_lshlrev_b32 v{t+4}, 3, v{t+4}')
    S(f'v_lshl_or_b32 v{t+4}, v{t+1}, 1, v{t+4}')
    S(f'v_lshrrev_b32 v{t+5}, 1, v{t+2}'); S(f'v_xor_b32 v{t+4}, v{t+4}, v{t+5}')
    S(f'v_lshl_add_u32 v{t+3}, v{t+4}, 4, v{t+3}')
    S(f'v_and_b32 v{t+5}, 1, v{t+2}'); S(f'v_lshl_add_u32 v{t+3}, v{t+5}, 3, v{t+3}')
    S(f'v_add_u32 v{aT}, s12, v{t+3}')
    for f in range(1, 8): S(f'v_xor_b32 v{aT+f}, {f<<5}, v{aT}')
    vS = t
    S(f'v_lshlrev_b32 v{vS}, 4, v0')
    S(f's_mov_b32 s18, {WDF_OFF}'); S('s_cmp_eq_u32 s13, 1'); S(f's_cselect_b32 s18, {WOF_OFF}, s18')
    S('s_add_u32 s24, s8, s18'); S('s_addc_u32 s25, s9, 0'); S('s_and_b32 s25, s25, 0xffff')
    S(f's_mov_b32 s26, {WDF_SZ}'); S('s_cmp_eq_u32 s13, 1'); S(f's_cselect_b32 s26, {WOF_SZ}, s26'); S('s_mov_b32 s27, 0x00020000')
    S('s_mov_b32 s33, 54'); S('s_cmp_eq_u32 s13, 1'); S('s_cselect_b32 s33, 20, s33')
    FR = T + 18 + ((T + 18) & 1)
    S.wait_tag('p')
    for f in range(8):
        for p in range(2):
            S(f'ds_read_b64_tr_b16 {v(FR+4*f+2*p,2)}, v{aT+f} offset:{p*1024}')
    for f in range(8):
        S(f's_lshl_b32 s34, s16, 3'); S(f's_add_u32 s34, s34, {f}')
        div5(S, 35, 34, 36)
        S('s_mul_i32 s35, s35, s33'); S('s_add_u32 s35, s35, s15'); S('s_mul_i32 s35, s35, 5'); S('s_add_u32 s35, s35, s36')
        S('s_lshl_b32 s35, s35, 10')
        S(f'buffer_store_dwordx4 {v(FR+4*f,4)}, v{vS}, s[24:27], s35 offen{smod}')
    S(f's_branch L_rdone_{name}')
    S.label(f'L_rnone_{name}')
    S.hist = []; S.lds = []; S.vm = []
    if after_issue: after_issue(0)
    S.label(f'L_rdone_{name}')

if __name__ == '__main__':
    A = Asm()
    A.raw(f'; @launch kernel=phR_kernel grid=(256,1,1) block=(256,1,1) lds={LDS_R}')
    A.raw('.amdgcn_target "amdgcn-amd-amdhsa--gfx950"')
    gen(A)
    open('r.s','w').write(A.text())
```

```python
import sys
sys.path.insert(0, 'gen')
from common import *
import os
import phaseA, phaseB, phaseR
import importlib
phaseCE = importlib.import_module('phaseCE' + os.environ.get('CVER', '1'))
phaseD = importlib.import_module('phaseD' + os.environ.get('DVER', '2'))
def build(path, parts):
    ref = open(f'cdna_kernels/{KN}.s.ref').read().split('\n')
    hdr = []
    for l in ref:
        if l.startswith('; Override launch'): break
        hdr.append(l)
    A = Asm()
    for l in hdr: A.raw(l)
    for (mod, nm, grid, blk, lds, kw) in parts:
        A.raw(f'; @launch kernel={nm} grid=({grid},1,1) block=({blk},1,1) lds={lds}')
    A.raw('.amdgcn_target "amdgcn-amd-amdhsa--gfx950"')
    done = set()
    for (mod, nm, grid, blk, lds, kw) in parts:
        if nm in done: continue
        done.add(nm); mod.gen(A, name=nm, **kw)
    open(path, 'w').write(A.text())
PARTS = [
    (phaseA, 'phA_kernel', 256, 512, phaseA.LDS_A, {}),
    (phaseB, 'phB_kernel', 256, phaseB.THREADS_B, phaseB.LDS_B, {}),
    (phaseCE, 'phC_kernel', 256, phaseCE.threads('C'), phaseCE.lds_bytes('C'), dict(mode='C')),
    (phaseD, 'phD_kernel', 256, 512, phaseD.LDS_D, {}),
    (phaseCE, 'phE_kernel', 256, phaseCE.threads('E'), phaseCE.lds_bytes('E'), dict(mode='E')),
]
if not phaseB.MERGE: PARTS.insert(1, (phaseR, 'phR_kernel', 256, 256, phaseR.LDS_R, {}))
if __name__ == '__main__':
    build(f'cdna_kernels/{KN}.s', PARTS)
```

```python
import sys
sys.path.insert(0, 'gen')
from common import *
import os
import phaseA, phaseB, phaseR
import importlib
phaseCE = importlib.import_module('phaseCE' + os.environ.get('CVER', '1'))
phaseD = importlib.import_module('phaseD' + os.environ.get('DVER', '2'))
def build(path, parts):
    ref = open(f'cdna_kernels/{KN}.s.ref').read().split('\n')
    hdr = []
    for l in ref:
        if l.startswith('; Override launch'): break
        hdr.append(l)
    A = Asm()
    for l in hdr: A.raw(l)
    for (mod, nm, grid, blk, lds, kw) in parts:
        A.raw(f'; @launch kernel={nm} grid=({grid},1,1) block=({blk},1,1) lds={lds}')
    A.raw('.amdgcn_target "amdgcn-amd-amdhsa--gfx950"')
    done = set()
    for (mod, nm, grid, blk, lds, kw) in parts:
        if nm in done: continue
        done.add(nm); mod.gen(A, name=nm, **kw)
    open(path, 'w').write(A.text())
PARTS = [
    (phaseA, 'phA_kernel', 256, 512, phaseA.LDS_A, {}),
    (phaseB, 'phB_kernel', 256, phaseB.THREADS_B, phaseB.LDS_B, {}),
    (phaseCE, 'phC_kernel', 256, phaseCE.threads('C'), phaseCE.lds_bytes('C'), dict(mode='C')),
    (phaseD, 'phD_kernel', 256, 512, phaseD.LDS_D, {}),
    (phaseCE, 'phE_kernel', 256, phaseCE.threads('E'), phaseCE.lds_bytes('E'), dict(mode='E')),
]
FUSE = os.environ.get('FUSE', '1')
if FUSE == '1':
    import phaseF
    PARTS = PARTS[:2] + [(phaseF, 'phF_kernel', 256, phaseF.THREADS_F, phaseF.LDS_F, {})]
if not phaseB.MERGE: PARTS.insert(1, (phaseR, 'phR_kernel', 256, 256, phaseR.LDS_R, {}))
if __name__ == '__main__':
    build(f'cdna_kernels/{KN}.s', PARTS)
```

```python
from asmlib import *
from sched import Sched

KN = 'sequential_preLN__sliding_block__glu_gated_bilinear__prompt'
KA_X, KA_WQKV, KA_WO, KA_BX, KA_WG, KA_WU, KA_WD, KA_OUT, KA_DBG, KA_WS = 0, 8, 16, 24, 32, 40, 48, 56, 64, 72
QKV_OFF = 0;          QKV_SZ = 240*2048*16
OF_OFF  = 0x800000;   OF_SZ = 128*20*1024
HF_OFF  = 0xB00000;   HF_SZ = 64*40*1024
ST_OFF  = 0xE00000;   ST_SZ = 2048*8*8
CS_OFF  = 0xE40000;   CS_SZ = 5*3456*4
HP_OFF  = 0x1000000;  HP_SZ = 128*54*1024
WGU_OFF = 0x1800000; WGU_SZ = 108*40*1024
WDF_OFF = 0x1D00000; WDF_SZ = 8*54*5*1024
WOF_OFF = 0x2000000; WOF_SZ = 8*20*5*1024
import os
FSTR = int(os.environ.get('FSTR', '128'))
FGRP = max(128, 16*FSTR)
FL_OFF = 0x2100000; FL_SZ = 4*16*FGRP
FLH = 0; FLP = 16*FGRP; FLO = 32*FGRP; FLR = 48*FGRP
S_, D_, F_ = 2048, 640, 1728

def srd_off(S, d, base, off, nbytes):
    if off:
        S(f's_add_u32 s{d}, s{base}, {off}')
        S(f's_addc_u32 s{d+1}, s{base+1}, 0')
        S(f's_and_b32 s{d+1}, s{d+1}, 0xffff')
    else:
        S(f's_mov_b32 s{d}, s{base}')
        S(f's_and_b32 s{d+1}, s{base+1}, 0xffff')
    S(f's_mov_b32 s{d+2}, {nbytes}')
    S(f's_mov_b32 s{d+3}, 0x00020000')

class LdsAddr:
    def __init__(self, S, regs):
        self.S = S; self.regs = regs
    def finish(self):
        for k in range(1, len(self.regs)):
            self.S(f'v_add_u32 v{self.regs[k]}, {65536*k}, v{self.regs[0]}')
    def at(self, c):
        k = c >> 16
        return f'v{self.regs[k]} offset:{c & 0xffff}' if (c & 0xffff) else f'v{self.regs[k]}'

def bf16_round(S, dst, src):
    S(f'v_cvt_pk_bf16_f32 v{dst}, v{src}, v{src}')
    S(f'v_lshlrev_b32 v{dst}, 16, v{dst}')

def interleave(S, mfmas, fillers, start=0):
    n = len(mfmas); m = len(fillers); k = 0
    for i, mf in enumerate(mfmas):
        S(mf)
        upto = (m * (i + 1) + n - 1) // n
        while k < min(upto, m):
            f = fillers[k]; k += 1
            if callable(f): f()
            elif isinstance(f, tuple): S(f[0], tag=f[1])
            else: S(f)
    while k < m:
        f = fillers[k]; k += 1
        if callable(f): f()
        elif isinstance(f, tuple): S(f[0], tag=f[1])
        else: S(f)


def prologue_guard(S, nwg):
    S(f's_cmp_ge_u32 s2, {nwg}')
    S('s_cbranch_scc1 L_exit_%s' % S.name)

def stamp(S, idx):
    if not getattr(S, 'stamps', False): return
    S('s_memtime s[90:91]')
    if idx == 0: S('s_memrealtime s[88:89]')
    S('s_waitcnt lgkmcnt(0)')
    S(f's_mov_b32 s{getattr(S, "sbase", 92)+idx}, s90')
    if idx == 0: S('s_mov_b32 s99, s88')

def stamp_flush(S, n, wave_sgpr, slot_base, vtmp=(1,2), kern_idx=0):
    if not getattr(S, 'stamps', False): return
    S('s_load_dwordx2 s[84:85], s[0:1], 72')
    S('s_memrealtime s[88:89]')
    S('s_memtime s[90:91]')
    S('s_waitcnt lgkmcnt(0)')
    S('s_mov_b32 s100, s88')
    S('s_mov_b32 s101, s90')
    S(f's_add_u32 s84, s84, {0x8000000 + kern_idx*0x100000}')
    S('s_addc_u32 s85, s85, 0')
    S('s_and_b32 s85, s85, 0xffff')
    S('s_mov_b32 s86, 0x100000')
    S('s_mov_b32 s87, 0x00020000')
    S(f's_lshl_b32 s88, s2, 3')
    S(f's_add_u32 s88, s88, s{wave_sgpr}')
    S(f's_lshl_b32 s88, s88, 6')
    B = 64
    S(f'v_mov_b32 v{B+16}, s88')
    src = {i: getattr(S, 'sbase', 92) + i for i in range(n)}; src.update({13: 99, 14: 100, 15: 101})
    for i in range(16):
        S(f'v_mov_b32 v{B+i}, s{src[i]}' if i in src else f'v_mov_b32 v{B+i}, 0')
    S('s_mov_b64 exec, 1')
    for k in range(4):
        S(f'buffer_store_dwordx4 v[{B+4*k}:{B+4*k+3}], v{B+16}, s[84:87], 0 offen offset:{16*k}')
    S('s_mov_b64 exec, -1')

def poll(S, lab, vaddr, vtmp, srd_, cnt=30):
    S(f's_mov_b32 s{cnt}, 0')
    S.label(lab)
    S(f'buffer_load_dword v{vtmp}, v{vaddr}, s[{srd_}:{srd_+3}], 0 offen sc1')
    S.wait(vm=0)
    S(f'v_cmp_ne_u32 vcc, s54, v{vtmp}')
    S(f's_cbranch_vccz {lab}_ok')
    S(f's_add_u32 s{cnt}, s{cnt}, 1')
    S(f's_cmp_lt_u32 s{cnt}, 0x4000')
    S(f's_cbranch_scc1 {lab}')
    S.label(lab + '_ok')

def set_flag(S, vaddr, vtmp, srd_):
    S(f'v_mov_b32 v{vtmp}, s54')
    S('s_mov_b64 exec, 1')
    S.nosmod = True
    S(f'buffer_store_dword v{vtmp}, v{vaddr}, s[{srd_}:{srd_+3}], 0 offen sc1')
    S('s_mov_b64 exec, -1')
```

```python
import os
from common import *
EARLY = int(os.environ.get('EARLY', '1'))
ENT = os.environ.get('ENT', '')
LNT = os.environ.get('LNT', '')

NS = 4
ACT_BASE = 0
W_BASE = 65536
X_BASE = 131072
LDS_A = 131072 + 2048
NST = 10
QSCALE = 20 ** -0.5 * 1.4426950408889634

def f32bits(x):
    import struct
    return struct.unpack('<I', struct.pack('<f', x))[0]

def gen(A, name='phA_kernel', stamps=False):
    S = Sched(A); S.name = name; S.stamps = stamps
    kernel_header(A, name)
    S(f's_load_dwordx2 s[4:5], s[0:1], {KA_X}')
    S(f's_load_dwordx2 s[6:7], s[0:1], {KA_WQKV}')
    S(f's_load_dwordx2 s[8:9], s[0:1], {KA_WS}')
    prologue_guard(S, 256)
    S('s_and_b32 s13, s2, 7'); S('s_lshr_b32 s14, s2, 3')
    S('s_lshr_b32 s12, s13, 1'); S('s_lshl_b32 s12, s12, 2'); S('s_lshr_b32 s15, s14, 3'); S('s_add_u32 s12, s12, s15')
    if not EARLY:
        S('s_cmp_ge_u32 s12, 15'); S(f's_cbranch_scc1 L_exit_{name}')
    S('v_lshrrev_b32 v1, 6, v0')
    S('s_and_b32 s11, s13, 1'); S('s_lshl_b32 s11, s11, 3'); S('s_and_b32 s15, s14, 7'); S('s_add_u32 s11, s11, s15')
    S('v_readfirstlane_b32 s10, v1')
    S('v_and_b32 v0, 63, v0')
    if EARLY:
        S('s_lshr_b32 s29, s14, 3')
        S('s_cmp_ge_u32 s12, 15'); S(f's_cbranch_scc1 L_idle_{name}')
    stamp(S, 0)
    S('s_cmp_ge_u32 s10, 4')
    S(f's_cbranch_scc1 L_prod_{name}')
    consumer(S, name)
    S.label(f'L_prod_{name}')
    S.hist = []; S.lds = []; S.vm = []; S.smem_pending = [('s', i) for i in range(4, 10)]
    if EARLY:
        producer2(S, name)
        S.label(f'L_idle_{name}')
        S.hist = []; S.lds = []; S.vm = []; S.smem_pending = [('s', i) for i in range(4, 10)]
        idle(S, name)
    else:
        producer(S, name)
    S.label(f'L_exit_{name}')
    S('s_endpgm')
    kernel_desc(A, name, 184, 102)

def dma_stage(t, pw4k, vA, vW, sx, sw):
    slot = t % NS
    out = []
    for ii in range(4):
        out.append([f's_add_u32 m0, s{pw4k}, {ACT_BASE + slot*16384 + ii*1024}',
                    f's_mov_b32 s18, {ii*10240 + t*128}',
                    f'buffer_load_dwordx4 v{vA[ii&1]}, s[{sx}:{sx+3}], s18 offen lds'])
        out.append([f's_add_u32 m0, s{pw4k}, {W_BASE + slot*16384 + ii*1024}',
                    f's_mov_b32 s18, {(t*64 + 4*ii)*3840}',
                    f'buffer_load_dwordx4 v{vW[ii>>1]}, s[{sw}:{sw+3}], s18 offen lds'])
    return out

def producer(S, name):
    vA = [2, 3]; vW = [4, 5]; t0, t1, t2 = 6, 7, 8
    S('s_sub_u32 s19, s10, 4')
    S('s_lshl_b32 s28, s19, 12')
    S(f'v_lshrrev_b32 v{t0}, 3, v0')
    S(f'v_mul_u32_u24 v{t0}, 1280, v{t0}')
    S(f'v_lshrrev_b32 v{t1}, 4, v0')
    S(f'v_and_b32 v{t2}, 7, v0')
    S(f'v_xor_b32 v{t2}, v{t2}, v{t1}')
    S('s_lshl_b32 s16, s11, 2'); S('s_add_u32 s16, s16, s19'); S(f's_mul_i32 s16, s16, {32*1280}')
    S(f'v_add_u32 v{t0}, s16, v{t0}')
    S(f'v_lshl_add_u32 v{vA[0]}, v{t2}, 4, v{t0}')
    S(f'v_xor_b32 v{vA[1]}, 64, v{vA[0]}')
    S(f's_mul_i32 s16, s19, {16*3840}'); S('s_lshl_b32 s17, s12, 8'); S('s_add_u32 s16, s16, s17')
    S(f'v_mul_u32_u24 v{t0}, 3840, v{t1}')
    S(f'v_add_u32 v{t0}, s16, v{t0}')
    S(f'v_and_b32 v{t2}, 15, v0')
    S(f'v_lshlrev_b32 v{t1}, 1, v{t1}')
    S(f'v_xor_b32 v{t2}, v{t2}, v{t1}')
    S(f'v_lshl_add_u32 v{vW[0]}, v{t2}, 4, v{t0}')
    S(f'v_xor_b32 v{vW[1]}, 128, v{vW[0]}')
    srd(S, 20, 4, 2048*1280)
    srd(S, 24, 6, 640*3840)
    def issue(t):
        for g in dma_stage(t, 28, vA, vW, 20, 24):
            for x in g: S(x, tag=t)
    issue(0)
    stamp(S, 1)
    issue(1)
    S.wait_tag(0)
    stamp(S, 2)
    S('s_barrier')
    issue(2); issue(3)
    for t in range(NST):
        if t + 1 < NST: S.wait_tag(t + 1)
        S('s_barrier')
        if t + NS < NST: issue(t + NS)
    stamp(S, 3)
    S('s_barrier')
    stamp_flush(S, 4, 10, 0)
    S('s_endpgm')

def prod_addr(S, vA, vW0):
    t0, t1, t2 = 20, 21, 22
    S(f'v_lshrrev_b32 v{t0}, 3, v0')
    S(f'v_mul_u32_u24 v{t0}, 1280, v{t0}')
    S(f'v_lshrrev_b32 v{t1}, 4, v0')
    S(f'v_and_b32 v{t2}, 7, v0')
    S(f'v_xor_b32 v{t2}, v{t2}, v{t1}')
    S(f's_mul_i32 s16, s11, {128*1280}')
    S(f'v_add_u32 v{t0}, s16, v{t0}')
    S(f'v_lshl_add_u32 v{vA[0]}, v{t2}, 4, v{t0}')
    S(f'v_xor_b32 v{vA[1]}, 64, v{vA[0]}')
    if vW0 is not None:
        S('s_lshl_b32 s17, s12, 8')
        S(f'v_mul_u32_u24 v{t0}, 3840, v{t1}')
        S(f'v_add_u32 v{t0}, s17, v{t0}')
        S(f'v_and_b32 v{t2}, 15, v0')
        S(f'v_lshlrev_b32 v{t1}, 1, v{t1}')
        S(f'v_xor_b32 v{t2}, v{t2}, v{t1}')
        S(f'v_lshl_add_u32 v{vW0}, v{t2}, 4, v{t0}')

def idle(S, name):
    S('s_cmp_lg_u32 s2, 198'); S(f's_cbranch_scc1 L_noz_{name}')
    S('s_cmp_ge_u32 s10, 4'); S(f's_cbranch_scc1 L_noz_{name}')
    srd_off(S, 20, 8, FL_OFF, FL_SZ)
    S(f's_mul_i32 s16, s10, {FL_SZ//4}'); S('v_lshlrev_b32 v2, 4, v0'); S('v_add_u32 v2, s16, v2')
    for k in range(4): S(f'v_mov_b32 v{4+k}, 0')
    for k in range(FL_SZ//4096):
        S(f's_mov_b32 s17, {1024*k}')
        S(f'buffer_store_dwordx4 v[4:7], v2, s[20:23], s17 offen')
    S('s_endpgm')
    S.label(f'L_noz_{name}')
    S.hist = []; S.lds = []; S.vm = []; S.smem_pending = [('s', i) for i in range(4, 10)]
    S('s_cmp_lg_u32 s10, 7'); S(f's_cbranch_scc1 L_exit_{name}')
    vA = [2, 3]
    prod_addr(S, vA, None)
    srd(S, 20, 4, 2048*1280)
    S('s_lshl_b32 s30, s29, 12'); S(f's_mul_i32 s31, s29, {4*10240}')
    for t in range(NST):
        for ii in range(4):
            S(f's_add_u32 m0, s30, {(t % NS)*16384 + ii*1024}')
            S(f's_add_u32 s18, s31, {ii*10240 + t*128}')
            S(f'buffer_load_dwordx4 v{vA[ii&1]}, s[20:23], s18 offen{ENT} lds')
    S.wait(vm=0)
    S('s_endpgm')

def producer2(S, name):
    vA = [2, 3]; vW0 = 4; vWl = [5, 6, 7, 8, 9]
    S('s_sub_u32 s19, s10, 4')
    prod_addr(S, vA, vW0)
    srd(S, 20, 4, 2048*1280)
    srd(S, 24, 6, 640*3840)
    S('s_cmp_eq_u32 s19, 3'); S(f's_cbranch_scc1 L_early_{name}')
    S('s_add_u32 s16, s29, s19'); S('s_add_u32 s16, s16, 1'); S('s_and_b32 s16, s16, 3')
    S('s_lshl_b32 s30, s16, 12'); S(f's_mul_i32 s31, s16, {4*10240}')
    S('s_lshl_b32 s16, s15, 1'); S('s_mul_i32 s17, s19, 5'); S('s_add_u32 s16, s16, s17'); S('s_add_u32 s16, s16, 2')
    for ii in range(5):
        S(f's_add_u32 s17, s16, {ii}'); S('s_and_b32 s17, s17, 15')
        S(f's_lshl_b32 s{32+ii}, s17, 10'); S(f's_mul_i32 s{38+ii}, s17, 15360')
        S('s_lshl_b32 s17, s17, 6'); S('s_and_b32 s17, s17, 128')
        S(f'v_xor_b32 v{vWl[ii]}, s17, v{vW0}')
    def late(t):
        slot = t % NS
        for ii in range(5):
            if ii < 4:
                S(f's_add_u32 m0, s30, {ACT_BASE + slot*16384 + ii*1024}', tag=t)
                S(f's_add_u32 s18, s31, {ii*10240 + t*128}')
                S(f'buffer_load_dwordx4 v{vA[ii&1]}, s[20:23], s18 offen{LNT} lds', tag=t)
            if ii == 4:
                lab = f'L_sk{t}_{name}'
                S('s_cmp_eq_u32 s19, 2'); S(f's_cbranch_scc1 {lab}')
            S(f's_add_u32 m0, s{32+ii}, {W_BASE + slot*16384}')
            S(f's_add_u32 s18, s{38+ii}, {t*64*3840}')
            S(f'buffer_load_dwordx4 v{vWl[ii]}, s[24:27], s18 offen{LNT} lds', tag=t)
            if ii == 4: S.label(lab)
    late(0)
    stamp(S, 1)
    S.wait(vm=0)
    stamp(S, 2)
    S('s_barrier')
    LD = int(os.environ.get('LD', '2'))
    for u in range(1, LD + 1): late(u)
    for t in range(NST):
        if t + 1 < NST:
            n_out = min(LD - 1, NST - 1 - (t + 1))
            S.A.raw(f'  s_waitcnt vmcnt({8*n_out})'); S.vm = []
        S('s_barrier')
        if t + 1 + LD < NST: late(t + 1 + LD)
    stamp(S, 3)
    S('s_barrier')
    stamp_flush(S, 4, 10, 0)
    S('s_endpgm')
    S.label(f'L_early_{name}')
    S.hist = []; S.lds = []; S.vm = []
    S('s_lshl_b32 s30, s29, 12'); S(f's_mul_i32 s31, s29, {4*10240}')
    S('s_lshl_b32 s32, s15, 11'); S(f's_mul_i32 s33, s15, {2*15360}')
    S('s_and_b32 s17, s15, 1'); S('s_lshl_b32 s17, s17, 7'); S(f'v_xor_b32 v{vWl[0]}, s17, v{vW0}')
    def early(t):
        slot = t % NS
        for ii in range(4):
            S(f's_add_u32 m0, s30, {ACT_BASE + slot*16384 + ii*1024}')
            S(f's_add_u32 s18, s31, {ii*10240 + t*128}')
            S(f'buffer_load_dwordx4 v{vA[ii&1]}, s[20:23], s18 offen{ENT} lds', tag=t)
            if ii < 2:
                S(f's_add_u32 m0, s32, {W_BASE + slot*16384 + ii*1024}')
                S(f's_add_u32 s18, s33, {t*64*3840 + ii*15360}')
                S(f'buffer_load_dwordx4 v{vWl[0]}, s[24:27], s18 offen{ENT} lds', tag=t)
    NE0 = int(os.environ.get('NE0', '4'))
    for t in range(NE0): early(t)
    stamp(S, 1)
    S.wait_tag(0)
    stamp(S, 2)
    S('s_barrier')
    for t in range(NE0, NS): early(t)
    for t in range(NST):
        if t + 1 < NST: S.wait_tag(t + 1)
        S('s_barrier')
        if t + NS < NST: early(t + NS)
    stamp(S, 3)
    S('s_barrier')
    stamp_flush(S, 4, 10, 0)
    S('s_endpgm')

def consumer(S, name):
    vG = 1; vT = 2
    aB = [[3, 4], [5, 6]]
    aW = [7, 8, 9, 10]
    T = 11
    ACC = 24
    GR = 88
    RS = 96
    CSA = 104
    OPA = 112
    OPB = 144
    ONES = 176
    acc = lambda i, j: ACC + (i*4 + j)*4
    opa = lambda b, i: OPA + b*16 + i*4
    opb = lambda b, j: OPB + b*16 + j*4
    S('s_lshr_b32 s14, s10, 1')
    S('s_and_b32 s15, s10, 1')
    S(f'v_lshrrev_b32 v{vG}, 4, v0')
    S(f'v_and_b32 v{vT}, 15, v0')
    S(f'v_lshrrev_b32 v{T}, 1, v{vT}')
    S(f'v_xor_b32 v{T}, v{T}, v{vG}')
    S(f'v_lshlrev_b32 v{T}, 4, v{T}')
    S(f'v_lshl_add_u32 v{T}, v{vT}, 7, v{T}')
    S('s_lshl_b32 s16, s14, 2'); S('s_lshl_b32 s17, s15, 1')
    S('s_add_u32 s18, s16, s17')
    S('s_xor_b32 s19, s18, 2')
    S('s_lshl_b32 s16, s18, 11'); S('s_lshl_b32 s17, s19, 11')
    S(f'v_add_u32 v{aB[0][0]}, s16, v{T}'); S(f'v_add_u32 v{aB[0][1]}, s17, v{T}')
    S(f'v_xor_b32 v{aB[1][0]}, 64, v{aB[0][0]}'); S(f'v_xor_b32 v{aB[1][1]}, 64, v{aB[0][1]}')
    S(f'v_and_b32 v{T}, 3, v0')
    S(f'v_lshrrev_b32 v{T+1}, 2, v0'); S(f'v_and_b32 v{T+1}, 3, v{T+1}')
    S(f'v_lshl_add_u32 v{T+2}, v{vG}, 3, v{T+1}')
    S(f'v_lshlrev_b32 v{T+2}, 8, v{T+2}')
    S(f'v_add_u32 v{T+2}, {W_BASE}, v{T+2}')
    S(f'v_and_b32 v{T+3}, 1, v{vG}'); S(f'v_lshlrev_b32 v{T+3}, 3, v{T+3}')
    S(f'v_lshl_or_b32 v{T+3}, v{T+1}, 1, v{T+3}')
    S(f'v_xor_b32 v{T+3}, v{T+3}, v{T}')
    S(f'v_lshrrev_b32 v{T+4}, 1, v{T}')
    S(f'v_lshl_add_u32 v{T+2}, v{T+4}, 3, v{T+2}')
    S('s_lshl_b32 s20, s15, 1'); S('s_add_u32 s20, s20, s14'); S('s_xor_b32 s21, s20, 1')
    for z in range(2):
        S(f's_lshl_b32 s16, s{20+z}, 2')
        S(f'v_xor_b32 v{T+5}, s16, v{T+3}')
        S(f'v_lshl_add_u32 v{aW[2*z]}, v{T+5}, 4, v{T+2}')
        S(f'v_xor_b32 v{aW[2*z+1]}, 8, v{aW[2*z]}')
    for k in range(4): S(f'v_mov_b32 v{ONES+k}, 0x3f803f80')
    def reads(sig):
        t, s_ = sig >> 1, sig & 1
        slot = t % NS; b = sig & 1
        L = []
        for q in range(4):
            L.append(f'ds_read_b128 {v(opb(b,q),4)}, v{aB[s_][q>>1]} offset:{slot*16384 + (q&1)*2048}')
            for p in range(2):
                L.append(f'ds_read_b64_tr_b16 {v(opa(b,q)+2*p,2)}, v{aW[q]} offset:{slot*16384 + s_*8192 + p*1024}')
        return L
    stamp(S, 1)
    S('s_barrier')
    stamp(S, 2)
    for x in reads(0): S(x)
    for sig in range(2*NST):
        b = sig & 1
        mf = []
        def M(d, aa, bb):
            c_ = v(d,4) if sig else '0'
            mf.append(f'v_mfma_f32_16x16x32_bf16 {v(d,4)}, {v(aa,4)}, {v(bb,4)}, {c_}')
        for i in range(4):
            for j in range(4):
                M(acc(i,j), opa(b,i), opb(b,j))
            if i < 2:
                M(GR+4*i, opb(b,i), opb(b,i))
                M(RS+4*i, ONES, opb(b,i))
                M(CSA+4*i, opa(b,i), ONES)
        if b == 1:
            S.wait(lgkm=0)
            S('s_barrier')
        fl = reads(sig + 1) if sig + 1 < 2*NST else []
        S(mf[0])
        n = len(fl); k = 0
        for m in mf[1:]:
            if k < n: S(fl[k]); k += 1
            S(m)
        assert k == n
    stamp(S, 3)
    CSo = X_BASE + 1024
    S(f'v_and_b32 v{T}, 3, v0')
    S(f'v_cmp_eq_u32 s[30:31], 1, v{T}'); S(f'v_cmp_eq_u32 s[32:33], 2, v{T}'); S(f'v_cmp_eq_u32 s[34:35], 3, v{T}')
    S(f's_mov_b32 s26, 0x{f32bits(1/640):08x}'); S(f's_mov_b32 s27, 0x{f32bits(1e-5):08x}')
    S(f's_cmp_lt_u32 s12, 5'); S(f's_cselect_b32 s36, 0x{f32bits(QSCALE):08x}, 1.0')
    for j in range(2):
        q = T + 5 + 2*j + 1; m = T + 5 + 2*j
        S(f'v_cndmask_b32 v{q}, v{GR+4*j}, v{GR+4*j+1}, s[30:31]')
        S(f'v_mul_f32 v{m}, s26, v{RS+4*j}')
        S(f'v_cndmask_b32 v{q}, v{q}, v{GR+4*j+2}, s[32:33]')
        S(f'v_cndmask_b32 v{q}, v{q}, v{GR+4*j+3}, s[34:35]')
    for j in range(2):
        q = T + 5 + 2*j + 1; m = T + 5 + 2*j
        S(f'v_mul_f32 v{q}, s26, v{q}')
        S(f'v_fma_f32 v{q}, -v{m}, v{m}, v{q}')
        S(f'v_max_f32 v{q}, 0, v{q}')
        bf16_round(S, q, q)
        S(f'v_add_f32 v{q}, s27, v{q}')
        bf16_round(S, q, q)
        S(f'v_sqrt_f32 v{q}, v{q}')
        bf16_round(S, m, m)
        bf16_round(S, q, q)
        S(f'v_rcp_f32 v{q}, v{q}')
        S(f'v_mul_f32 v{q}, s36, v{q}')
    S(f'v_lshlrev_b32 v{T+1}, 3, v{vT}')
    S('s_lshl_b32 s16, s18, 7'); S('s_lshl_b32 s17, s19, 7')
    S(f's_add_u32 s16, s16, {X_BASE}'); S(f's_add_u32 s17, s17, {X_BASE}')
    S(f'v_add_u32 v{T+2}, s16, v{T+1}'); S(f'v_add_u32 v{T+3}, s17, v{T+1}')
    S('s_mov_b32 s38, 0x00F0000F'); S('s_mov_b32 s39, 0xF0000F00')
    S('s_mov_b64 exec, s[38:39]')
    for j in range(2):
        S(f'ds_write_b64 v{T+2}, {v(T+5+2*j,2)} offset:{j*128}')
    S('s_mov_b64 exec, -1')
    S(f'v_lshlrev_b32 v{T+10}, 4, v{vG}')
    S('s_lshl_b32 s16, s20, 7'); S('s_lshl_b32 s17, s21, 7')
    S(f's_add_u32 s16, s16, {CSo}'); S(f's_add_u32 s17, s17, {CSo}')
    S(f'v_add_u32 v{T+11}, s17, v{T+10}'); S(f'v_add_u32 v{T+10}, s16, v{T+10}')
    S('s_mov_b32 s38, 0x00010001'); S('s_mov_b32 s39, 0x00010001')
    S('s_mov_b64 exec, s[38:39]')
    for e in range(2):
        S(f'ds_write_b128 v{T+10}, {v(CSA+4*e,4)} offset:{e*64}')
    S('s_mov_b64 exec, -1')
    srd_off(S, 40, 8, QKV_OFF, QKV_SZ)
    VO = OPB
    for z in range(2):
        S(f's_lshl_b32 s16, s12, 2'); S(f's_add_u32 s16, s16, s{20+z}'); S('s_lshl_b32 s16, s16, 2')
        S(f'v_add_u32 v{T}, s16, v{vG}')
        S(f'v_lshlrev_b32 v{T}, 15, v{T}')
        S(f'v_lshl_add_u32 v{T}, v{vT}, 4, v{T}')
        for hf in range(2):
            S(f's_lshl_b32 s16, s11, 3'); S(f's_add_u32 s16, s16, s{18+hf}'); S('s_lshl_b32 s16, s16, 8')
            S(f'v_add_u32 v{VO+2*z+hf}, s16, v{T}')
    S.wait(lgkm=0)
    S('s_barrier')
    stamp(S, 4)
    ST = OPA
    CS2 = OPA + 8
    for j in range(4):
        S(f'ds_read_b64 {v(ST+2*j,2)}, v{T+2+(j>>1)} offset:{(j&1)*128}')
    for e in range(2):
        S(f'ds_read_b128 {v(CS2+4*e,4)}, v{T+11} offset:{e*64}')
    OUT = OPA + 16
    n = 0
    for z in range(2):
        for j in range(4):
            o = OUT + 4*(n & 3); n += 1
            for e in range(2):
                i = 2*z + e
                cs = (CSA + 4*e) if z == 0 else (CS2 + 4*e)
                a_ = acc(i, j)
                for h in range(2):
                    S(f'v_pk_fma_f32 {v(a_+2*h,2)}, {v(cs+2*h,2)}, {v(ST+2*j,2)}, {v(a_+2*h,2)} op_sel:[0,0,0] op_sel_hi:[1,0,1] neg_lo:[0,1,0] neg_hi:[0,1,0]')
                for h in range(2):
                    S(f'v_pk_mul_f32 {v(a_+2*h,2)}, {v(a_+2*h,2)}, {v(ST+2*j,2)} op_sel:[0,1] op_sel_hi:[1,1]')
                for h in range(2):
                    S(f'v_cvt_pk_bf16_f32 v{o+2*e+h}, v{a_+2*h}, v{a_+2*h+1}')
            S(f'buffer_store_dwordx4 {v(o,4)}, v{VO+2*z+(j>>1)}, s[40:43], 0 offen offset:{(j&1)*256}')
    stamp(S, 5)
    stamp_flush(S, 6, 10, 0)
    S('s_endpgm')

if __name__ == '__main__':
    A = Asm()
    A.raw(f'; @launch kernel=phA_kernel grid=(256,1,1) block=(512,1,1) lds={LDS_A}')
    A.raw('.amdgcn_target "amdgcn-amd-amdhsa--gfx950"')
    gen(A)
    open('a.s','w').write(A.text())
```

```python
import os
from common import *

CFG = {'C': dict(NSTEP=20, SPS=4, NS=5, DB=8), 'E': dict(NSTEP=54, SPS=3, NS=6, DB=6)}
def lds_bytes(mode): c = CFG[mode]; return c['NS']*c['SPS']*5120
def threads(mode): return 256 + 64*CFG[mode]['SPS']

def gen(A, name='phC_kernel', mode='C', stamps=False, rot=int(os.environ.get('ROT','0'))):
    S = Sched(A); S.name = name; S.stamps = stamps
    kernel_header(A, name)
    S(f's_load_dwordx2 s[8:9], s[0:1], {KA_WS}')
    if mode == 'C': S(f's_load_dwordx2 s[4:5], s[0:1], {KA_X}')
    else: S(f's_load_dwordx2 s[4:5], s[0:1], {KA_OUT}')
    prologue_guard(S, 256)
    S('v_lshrrev_b32 v1, 6, v0')
    S('s_and_b32 s13, s2, 7'); S('s_lshr_b32 s14, s2, 3')
    S('v_readfirstlane_b32 s10, v1')
    S('v_and_b32 v0, 63, v0')
    tilemap(S)
    c = CFG[mode]; NST = c['NSTEP'] // c['SPS']
    if rot:
        S('s_and_b32 s16, s12, 3'); S('s_lshl_b32 s16, s16, 1'); S('s_add_u32 s16, s16, s11'); S('s_and_b32 s16, s16, 7')
        S(f's_mul_i32 s16, s16, {NST}'); S('s_lshr_b32 s44, s16, 3')
    else: S('s_mov_b32 s44, 0')
    stamp(S, 0)
    S('s_cmp_ge_u32 s10, 4')
    S(f's_cbranch_scc1 L_prod_{name}')
    consumer(S, mode)
    S.label(f'L_prod_{name}')
    S.hist = []; S.lds = []; S.vm = []; S.smem_pending = [('s', 8), ('s', 9), ('s', 4), ('s', 5)]
    producer(S, mode)
    S.label(f'L_exit_{name}')
    S('s_endpgm')
    kernel_desc(A, name, 128, 102)

def tilemap(S):
    S('s_and_b32 s11, s13, 3'); S('s_lshl_b32 s11, s11, 3'); S('s_and_b32 s15, s14, 7'); S('s_add_u32 s11, s11, s15')
    S('s_lshr_b32 s12, s13, 2'); S('s_lshl_b32 s12, s12, 2'); S('s_lshr_b32 s15, s14, 3'); S('s_add_u32 s12, s12, s15')

def producer(S, mode, F=None):
    c = CFG[mode]; NSTEP, SPS, NS = c['NSTEP'], c['SPS'], c['NS']; NST = NSTEP // SPS
    STG = SPS*5120
    S('s_sub_u32 s19, s10, 4')
    S('v_lshlrev_b32 v2, 4, v0')
    S(f's_mul_i32 s16, s12, {NSTEP}'); S('s_add_u32 s16, s16, s19'); S('s_mul_i32 s16, s16, 5120')
    S(f's_mul_i32 s17, s44, {STG}'); S('s_add_u32 s17, s17, s16')
    S(f's_add_u32 s26, s16, {NST*STG}')
    S(f's_mul_i32 s28, s19, 5120')
    so = F.e_slot if (F and mode == 'E') else (lambda sl: sl*STG)
    S('s_waitcnt lgkmcnt(0)')
    if mode == 'C': srd_off(S, 20, 8, WOF_OFF, WOF_SZ)
    else: srd_off(S, 20, 8, WDF_OFF, WDF_SZ)
    def issue(t):
        slot = t % NS
        S(f's_add_u32 m0, s28, {so(slot)}', tag=t)
        for f in range(4):
            S(f'buffer_load_dwordx4 v2, s[20:23], s17 offen' + (f' offset:{f*1024}' if f else '') + ' lds', tag=t)
        S(f's_add_u32 m0, s28, {so(slot) + 4096}'); S('s_add_u32 s18, s17, 4096')
        S(f'buffer_load_dwordx4 v2, s[20:23], s18 offen lds', tag=t)
        S(f's_add_u32 s17, s17, {STG}'); S('s_cmp_eq_u32 s17, s26'); S('s_cselect_b32 s17, s16, s17')
    npre = min(NS, NST)
    if F and mode == 'E':
        for t in range(npre): issue(t)
        F.e_mid()
        S.wait_tag(0)
        S('s_barrier')
    else:
        issue(0); issue(1)
        S.wait_tag(0)
        S('s_barrier')
        for t in range(2, npre): issue(t)
    for t in range(NST):
        if t + 1 < NST: S.wait_tag(t + 1)
        S('s_barrier')
        if t + NS < NST: issue(t + NS)
    if F and mode == 'C': return
    stamp(S, 1)
    if F: stamp_flush(S, 9, 10, 0, kern_idx=F.kidx)
    else: stamp_flush(S, 2, 10, 0, kern_idx=2 if mode == 'C' else 4)
    S('s_endpgm')

def consumer(S, mode, F=None):
    C_ = mode == 'C'
    c = CFG[mode]; NSTEP, SPS, NS, DB = c['NSTEP'], c['SPS'], c['NS'], c['DB']; NST = NSTEP // SPS
    STG = SPS*5120
    aW, vB, vRes, vHF, vSt = 1, 2, 3, 4, 5
    vH4 = 26; XS = 72
    T = 6
    RESR = 16
    ACC = 28
    OPA = 48
    RING = 88
    so = F.e_slot if (F and mode == 'E') else (lambda sl: sl*STG)
    if F and mode == 'E': RESR = F.KEEP
    acc = lambda nb: ACC + nb*4
    opa = lambda b, nb: OPA + b*20 + nb*4
    opb = lambda sg: RING + (sg % DB)*4
    S(f'v_lshlrev_b32 v{aW}, 4, v0')
    S('s_lshl_b32 s16, s11, 2'); S('s_add_u32 s16, s16, s10'); S(f's_mul_i32 s16, s16, {NSTEP*1024}')
    S(f'v_add_u32 v{vB}, s16, v{aW}')
    S(f's_mul_i32 s17, s44, {SPS*1024}')
    S('s_waitcnt lgkmcnt(0)')
    if C_: srd_off(S, 24, 8, OF_OFF, OF_SZ)
    else: srd_off(S, 24, 8, HP_OFF, HP_SZ)
    def bload(sg):
        kk = sg % SPS
        S(f'buffer_load_dwordx4 {v(opb(sg),4)}, v{vB}, s[24:27], s17 offen' + (f' offset:{kk*1024}' if kk else ''))
        if kk == SPS - 1:
            S(f's_add_u32 s17, s17, {SPS*1024}'); S(f's_cmp_eq_u32 s17, {NSTEP*1024}'); S('s_cselect_b32 s17, 0, s17')
    if F and mode == 'E': F.e_pre()
    for sg in range(min(DB, NSTEP)): bload(sg)
    S(f'v_and_b32 v{T+1}, 15, v0')
    S(f'v_lshrrev_b32 v{T+2}, 4, v0')
    S('s_lshl_b32 s16, s11, 6'); S('s_lshl_b32 s18, s10, 4'); S('s_add_u32 s16, s16, s18')
    S(f'v_add_u32 v{T+3}, s16, v{T+1}')
    S(f'v_mul_u32_u24 v{vRes}, 1280, v{T+3}'); S('s_mul_i32 s18, s12, 160')
    S(f'v_lshl_add_u32 v{vRes}, v{T+2}, 3, v{vRes}'); S(f'v_add_u32 v{vRes}, s18, v{vRes}')
    S(f'v_lshrrev_b32 v{T+4}, 5, v{T+3}'); S(f'v_mul_u32_u24 v{T+4}, {40*1024}, v{T+4}')
    S(f'v_and_b32 v{T+5}, 31, v{T+3}'); S(f'v_lshl_add_u32 v{T+4}, v{T+5}, 4, v{T+4}')
    S(f'v_lshrrev_b32 v{T+5}, 1, v{T+2}'); S(f'v_lshl_add_u32 v{T+4}, v{T+5}, 9, v{T+4}')
    S(f'v_and_b32 v{T+5}, 1, v{T+2}'); S(f'v_lshl_add_u32 v{T+4}, v{T+5}, {10 if C_ else 3}, v{T+4}')
    S(f's_mul_i32 s18, s12, {5*1024}'); S(f'v_add_u32 v{vHF}, s18, v{T+4}')
    if C_:
        S(f'v_mov_b32 v{T+4}, 0x40000000'); S(f'v_cmp_eq_u32 vcc, 0, v{T+5}'); S(f'v_cndmask_b32 v{vH4}, v{T+4}, v{vHF}, vcc')
        S('s_lshl_b32 s18, s11, 2'); S('s_add_u32 s18, s18, s10'); S('s_lshl_b32 s18, s18, 3'); S('s_add_u32 s18, s18, s12'); S('s_lshl_b32 s18, s18, 7')
        S(f'v_lshl_add_u32 v{vSt}, v{T+1}, 3, s18')
        S(f'v_cmp_eq_u32 vcc, 0, v{T+2}'); S(f'v_cndmask_b32 v{vSt}, v{T+4}, v{vSt}, vcc')
        srd(S, 32, 4, 2048*1280)
        srd_off(S, 40, 8, ST_OFF, ST_SZ)
    else:
        srd(S, 32, 6 if F else 4, 2048*1280)
    if C_ or not F: srd_off(S, 36, 8, HF_OFF, HF_SZ)
    def areads(sg):
        t, kk = divmod(sg, SPS)
        off = so(t % NS) + kk*5120
        return [f'ds_read_b128 {v(opa(sg&1,nb),4)}, v{[aW, T+9, T+8][(off + nb*1024) >> 16]} offset:{(off + nb*1024) & 0xffff}' for nb in range(5)]
    S(f'v_add_u32 v{T+9}, 65536, v{aW}')
    if F and mode == 'E': S(f'v_add_u32 v{T+8}, 131072, v{aW}')
    if F:
        if C_: F.st(S, 1)
    else: stamp(S, 1)
    S('s_barrier')
    if F: F.st(S, 2 if C_ else 10)
    else: stamp(S, 2)
    for x in areads(0): S(x)
    for sg in range(NSTEP):
        if sg % SPS == SPS - 1:
            S.wait(lgkm=0)
            S('s_barrier')
        fl = areads(sg + 1) if sg + 1 < NSTEP else []
        for nb in range(5):
            S(f'v_mfma_f32_16x16x32_bf16 {v(acc(nb),4)}, {v(opa(sg&1,nb),4)}, {v(opb(sg),4)}, {v(acc(nb),4) if sg else "0"}')
            if fl: S(fl[nb])
        if sg + DB < NSTEP: bload(sg + DB)
        if sg == NSTEP - 4:
            for nb in range(5):
                if C_: S(f'buffer_load_dwordx2 {v(RESR+2*nb,2)}, v{vRes}, s[32:35], 0 offen offset:{32*nb}')
                elif not F:
                    S(f's_mov_b32 s30, {1024*nb}')
                    S(f'buffer_load_dwordx2 {v(RESR+2*nb,2)}, v{vHF}, s[36:39], s30 offen')
    if F: F.st(S, 3 if C_ else 11)
    else: stamp(S, 3)
    U = OPA
    PK = OPA + 12
    if F and C_: PK = F.KEEP
    sm = ' sc1' if (F and C_) else ''
    sum_, ssq = U + 8, U + 9
    for nb in range(5):
        a_ = acc(nb)
        S(f'v_cvt_pk_bf16_f32 v{U}, v{a_}, v{a_+1}'); S(f'v_cvt_pk_bf16_f32 v{U+1}, v{a_+2}, v{a_+3}')
        for k in range(2):
            S(f'v_lshlrev_b32 v{a_+2*k}, 16, v{U+k}'); S(f'v_and_b32 v{a_+2*k+1}, 0xffff0000, v{U+k}')
            S(f'v_lshlrev_b32 v{U+2+2*k}, 16, v{RESR+2*nb+k}'); S(f'v_and_b32 v{U+3+2*k}, 0xffff0000, v{RESR+2*nb+k}')
        for h in range(2):
            S(f'v_pk_add_f32 {v(a_+2*h,2)}, {v(a_+2*h,2)}, {v(U+2+2*h,2)}')
        S(f'v_cvt_pk_bf16_f32 v{PK+2*nb}, v{a_}, v{a_+1}'); S(f'v_cvt_pk_bf16_f32 v{PK+2*nb+1}, v{a_+2}, v{a_+3}')
        if C_:
            if nb in (1, 3, 4):
                X = XS + 4*(nb >> 1); a0 = PK + 2*(nb - 1 if nb < 4 else nb); b0 = PK + 2*nb
                for k in range(2): S(f'v_mov_b32 v{X+k}, v{a0+k}'); S(f'v_mov_b32 v{X+2+k}, v{b0+k}')
                for k in range(2): S(f'v_permlane16_swap_b32 v{X+k}, v{X+2+k}')
                S(f's_mov_b32 s30, {1024*(nb & ~1)}')
                S(f'buffer_store_dwordx4 {v(X,4)}, v{vHF if nb < 4 else vH4}, s[36:39], s30 offen' + sm)
            for k in range(2):
                S(f'v_lshlrev_b32 v{a_+2*k}, 16, v{PK+2*nb+k}'); S(f'v_and_b32 v{a_+2*k+1}, 0xffff0000, v{PK+2*nb+k}')
            for k in range(4):
                if nb == 0 and k == 0:
                    S(f'v_mov_b32 v{sum_}, v{a_}'); S(f'v_mul_f32 v{ssq}, v{a_}, v{a_}')
                else:
                    S(f'v_add_f32 v{sum_}, v{sum_}, v{a_+k}'); S(f'v_fmac_f32 v{ssq}, v{a_+k}, v{a_+k}')
        else:
            S(f'buffer_store_dwordx2 {v(PK+2*nb,2)}, v{vRes}, s[32:35], 0 offen offset:{32*nb}')
    if C_:
        for x in (sum_, ssq):
            S(f'v_mov_b32 v{U}, v{x}'); S(f'v_permlane32_swap_b32 v{x}, v{U}'); S(f'v_add_f32 v{x}, v{x}, v{U}')
            S(f'v_mov_b32 v{U}, v{x}'); S(f'v_permlane16_swap_b32 v{x}, v{U}'); S(f'v_add_f32 v{x}, v{x}, v{U}')
        S(f'buffer_store_dwordx2 {v(sum_,2)}, v{vSt}, s[40:43], 0 offen' + sm)
    if F and C_: return
    if F:
        stamp_flush(S, 13, 10, 0, kern_idx=F.kidx); S('s_endpgm'); return
    stamp(S, 4)
    stamp_flush(S, 5, 10, 0, vtmp=(1, 2), kern_idx=2 if C_ else 4)
    S('s_endpgm')

if __name__ == '__main__':
    for mode in 'CE':
        A = Asm()
        A.raw(f'; @launch kernel=ph{mode}_kernel grid=(256,1,1) block=({threads(mode)},1,1) lds={lds_bytes(mode)}')
        A.raw('.amdgcn_target "amdgcn-amd-amdhsa--gfx950"')
        gen(A, name=f'ph{mode}_kernel', mode=mode)
        open(f't/{mode}.s','w').write(A.text())
```

```python
import os
from common import *
from phaseA import f32bits
import ring

NS = 7
STG = 22*1024
ACT0 = 14*1024
CSL = NS*STG
LDS_D = CSL + 1024
NST = 20
LD = int(os.environ.get('DLD', '3'))

def gen(A, name='phD_kernel', stamps=False):
    S = Sched(A); S.name = name; S.stamps = stamps
    kernel_header(A, name)
    S(f's_load_dwordx2 s[8:9], s[0:1], {KA_WS}')
    prologue_guard(S, 256)
    S('v_lshrrev_b32 v1, 6, v0')
    S('s_and_b32 s13, s2, 7'); S('s_lshr_b32 s14, s2, 3')
    S('v_readfirstlane_b32 s10, v1')
    S('v_and_b32 v0, 63, v0')
    tilemap(S)
    stamp(S, 0)
    S('s_cmp_ge_u32 s10, 4')
    S(f's_cbranch_scc1 L_prod_{name}')
    consumer(S, name)
    S.label(f'L_prod_{name}')
    S.hist = []; S.lds = []; S.vm = []; S.smem_pending = [('s', 8), ('s', 9)]
    producer(S, name)
    S.label(f'L_exit_{name}')
    S('s_endpgm')
    kernel_desc(A, name, 256, 102)

def tilemap(S):
    S('s_and_b32 s11, s13, 1'); S('s_lshl_b32 s11, s11, 3'); S('s_and_b32 s15, s14, 7'); S('s_add_u32 s11, s11, s15')
    S('s_lshr_b32 s12, s13, 1'); S('s_lshl_b32 s12, s12, 2'); S('s_lshr_b32 s29, s14, 3'); S('s_add_u32 s12, s12, s29')
    S('s_mov_b32 s33, s12')
    S('s_mul_i32 s12, s12, 27'); S('s_lshr_b32 s12, s12, 2')

def producer(S, name, F=None):
    S('s_sub_u32 s28, s10, 4')
    S('v_lshlrev_b32 v2, 4, v0')
    srd_off(S, 20, 8, WGU_OFF, WGU_SZ)
    srd_off(S, 24, 8, HF_OFF, HF_SZ)
    srd_off(S, 32, 8, CS_OFF, CS_SZ)
    def w_own(S, k, d):
        S(f's_lshl_b32 s{d}, s15, 1'); ring.mod_add(S, d, d, k, 14)
    def w_late(S, i, d):
        S('s_lshl_b32 s30, s15, 1'); S(f's_add_u32 s30, s30, s{i}'); S('s_add_u32 s30, s30, 2')
        ring.mod_add(S, d, 30, 0, 14)
    def w_goff(S, idx, d):
        S(f's_lshr_b32 s30, s{idx}, 1'); S('s_add_u32 s30, s30, s12'); S('s_mul_i32 s30, s30, 40960')
        S(f's_and_b32 s31, s{idx}, 1'); S('s_lshl_b32 s31, s31, 10'); S(f's_add_u32 s{d}, s30, s31')
    def a_own(S, k, d):
        S(f's_lshl_b32 s{d}, s29, 1')
        if k: S(f's_add_u32 s{d}, s{d}, {k}')
    def a_late(S, i, d):
        S('s_lshl_b32 s30, s29, 1'); S(f's_add_u32 s30, s30, s{i}'); S('s_add_u32 s30, s30, 2'); S(f's_and_b32 s{d}, s30, 7')
    def a_goff(S, idx, d):
        S(f's_lshr_b32 s30, s{idx}, 1'); S('s_lshl_b32 s31, s11, 2'); S('s_add_u32 s30, s30, s31'); S('s_mul_i32 s30, s30, 40960')
        S(f's_and_b32 s31, s{idx}, 1'); S('s_lshl_b32 s31, s31, 10'); S(f's_add_u32 s{d}, s30, s31')
    KW = ring.Kind(lds0=0, stride=2048, srd=20, ne=2, nl=12, own=w_own, late=w_late, goff=w_goff)
    KA = ring.Kind(lds0=ACT0, stride=2048, srd=24, ne=2, nl=6, own=a_own, late=a_late, goff=a_goff)
    def extra(k):
        if k == 1:
            S('s_lshl_b32 s17, s28, 6'); S('v_add_u32 v3, s17, v0')
            S('v_lshrrev_b32 v4, 5, v3'); S('v_bfe_u32 v5, v3, 4, 1'); S('v_and_b32 v6, 15, v3')
            S('v_add_u32 v4, s12, v4'); S('v_lshl_add_u32 v6, v4, 4, v6')
            S('v_mul_u32_u24 v5, 1728, v5'); S('v_add_u32 v6, v6, v5'); S('v_lshlrev_b32 v6, 2, v6')
            S('v_mov_b32 v7, 0x40000000'); S('v_cmp_gt_u32 vcc, 224, v3'); S('v_cndmask_b32 v6, v7, v6, vcc')
            for p in range(5):
                S(f's_mov_b32 s18, {p*3456*4}')
                S(f'buffer_load_dword v{8+p}, v6, s[32:35], s18 offen')
                S.vm.pop()
        if k == NS + 2:
            S('v_add_f32 v8, v8, v9'); S('v_add_f32 v10, v10, v11'); S('v_add_f32 v8, v8, v12'); S('v_add_f32 v8, v8, v10')
            S('v_lshlrev_b32 v3, 2, v3')
            S(f'v_add_u32 v3, {CSL}, v3')
            S('ds_write_b32 v3, v8')
            S.wait(lgkm=0)
    def tail(which=None):
        stamp(S, 1)
        stamp_flush(S, 2, 10, 0, kern_idx=3)
        S('s_endpgm')
    ring.producers(S, name, [KW, KA], NS, STG, NST, 28, LD=LD, extra=extra, tail=F.d_tail if F else tail, mid=F.d_mid if F else None)

def consumer(S, name, F=None):
    vSt, vO, vCs = 3, 4, 5
    T = 6
    ACC = 16
    RB, PD = 8, 6
    OPA = 128
    OPB = 160
    STR = 176
    MS = 184
    aWr = [1, 188, 189]; aBr = [2, 190, 191]
    acc = lambda tau, n: ACC + (tau*14 + n)*4
    opa = lambda i: OPA + (i % RB)*4
    opb = lambda s_, tau: OPB + (s_ & 1)*8 + tau*4
    aW = LdsAddr(S, aWr); aB = LdsAddr(S, aBr)
    S(f'v_lshrrev_b32 v{T}, 4, v0'); S(f'v_and_b32 v{T+1}, 15, v0')
    S(f'v_lshrrev_b32 v{T+2}, 1, v{T}'); S(f'v_and_b32 v{T+3}, 1, v{T}')
    S(f'v_lshlrev_b32 v{T+4}, 4, v{T+1}'); S(f'v_lshl_add_u32 v{T+4}, v{T+2}, 10, v{T+4}')
    S(f'v_lshl_add_u32 v{aWr[0]}, v{T+3}, 8, v{T+4}')
    S(f'v_lshl_add_u32 v{aBr[0]}, v{T+3}, 9, v{T+4}')
    S('s_lshl_b32 s17, s10, 11'); S(f's_add_u32 s17, s17, {ACT0}'); S(f'v_add_u32 v{aBr[0]}, s17, v{aBr[0]}')
    aW.finish(); aB.finish()
    S('s_lshl_b32 s16, s11, 2'); S('s_add_u32 s16, s16, s10')
    S('s_lshl_b32 s17, s16, 11'); S(f'v_lshl_add_u32 v{T+4}, v{T+1}, 3, s17')
    S(f'v_lshl_add_u32 v{vSt}, v{T}, 8, v{T+4}')
    S('s_lshl_b32 s17, s16, 1'); S(f'v_add_u32 v{T+4}, s17, v{T+3}')
    S(f'v_mul_u32_u24 v{T+4}, {54*1024}, v{T+4}')
    S(f'v_lshl_add_u32 v{T+4}, v{T+2}, 8, v{T+4}'); S(f'v_lshl_add_u32 v{vO}, v{T+1}, 4, v{T+4}')
    S(f'v_lshlrev_b32 v{vCs}, 4, v{T}'); S(f'v_add_u32 v{vCs}, {CSL}, v{vCs}')
    S('s_waitcnt lgkmcnt(0)')
    srd_off(S, 24, 8, ST_OFF, ST_SZ)
    srd_off(S, 28, 8, HP_OFF, HP_SZ)
    NF = 14*NST
    def aread(i):
        s_, n = divmod(i, 14)
        off = (s_ % NS)*STG + (n >> 1)*2048 + (n & 1)*512
        return f'ds_read_b128 {v(opa(i),4)}, {aW.at(off)}'
    def bread(s_, tau):
        return f'ds_read_b128 {v(opb(s_,tau),4)}, {aB.at((s_ % NS)*STG + tau*256)}'
    def stats_math():
        L = []
        for tau in range(2):
            b = STR + 4*tau
            L += [f'v_add_f32 v{b}, v{b}, v{b+2}', f'v_add_f32 v{b+1}, v{b+1}, v{b+3}']
        for sw_ in ('v_permlane16_swap_b32', 'v_permlane32_swap_b32'):
            for tau in range(2):
                b = STR + 4*tau
                L += [f'v_mov_b32 v{b+2}, v{b}', f'v_mov_b32 v{b+3}, v{b+1}']
            for tau in range(2):
                b = STR + 4*tau
                L += [f'{sw_} v{b}, v{b+2}', f'{sw_} v{b+1}, v{b+3}']
            for tau in range(2):
                b = STR + 4*tau
                L += [f'v_add_f32 v{b}, v{b}, v{b+2}', f'v_add_f32 v{b+1}, v{b+1}, v{b+3}']
        for tau in range(2):
            b = STR + 4*tau; m, q = MS + 2*tau, MS + 2*tau + 1
            L += [f'v_mul_f32 v{m}, s36, v{b}', f'v_mul_f32 v{q}, s36, v{b+1}']
        for tau in range(2):
            m, q = MS + 2*tau, MS + 2*tau + 1
            L += [f'v_fma_f32 v{q}, -v{m}, v{m}, v{q}']
        for tau in range(2):
            q = MS + 2*tau + 1; L += [f'v_max_f32 v{q}, 0, v{q}']
        for op in range(2):
            for tau in range(2):
                q = MS + 2*tau + 1; L += [f'v_cvt_pk_bf16_f32 v{q}, v{q}, v{q}']
            for tau in range(2):
                q = MS + 2*tau + 1; L += [f'v_lshlrev_b32 v{q}, 16, v{q}']
            if op == 0:
                for tau in range(2):
                    q = MS + 2*tau + 1; L += [f'v_add_f32 v{q}, s37, v{q}']
        for tau in range(2):
            q = MS + 2*tau + 1; L += [f'v_sqrt_f32 v{q}, v{q}']
        for tau in range(2):
            m = MS + 2*tau; L += [f'v_cvt_pk_bf16_f32 v{m}, v{m}, v{m}']
        for tau in range(2):
            m = MS + 2*tau; L += [f'v_lshlrev_b32 v{m}, 16, v{m}']
        for tau in range(2):
            q = MS + 2*tau + 1; L += [f'v_cvt_pk_bf16_f32 v{q}, v{q}, v{q}']
        for tau in range(2):
            q = MS + 2*tau + 1; L += [f'v_lshlrev_b32 v{q}, 16, v{q}']
        for tau in range(2):
            q = MS + 2*tau + 1; L += [f'v_rcp_f32 v{q}, v{q}']
        for tau in range(2):
            q = MS + 2*tau + 1; L += [f'v_mul_f32 v{q}, v{q}, v{q}']
        return L
    S(f's_mov_b32 s36, 0x{f32bits(1/640):08x}'); S(f's_mov_b32 s37, 0x{f32bits(1e-5):08x}')
    if F: F.d_pre()
    else: stamp(S, 1)
    S('s_barrier')
    if F: F.st(S, 6)
    else: stamp(S, 2)
    for tau in range(2): S(bread(0, tau))
    for i in range(PD): S(aread(i))
    sm = stats_math(); smi = 0
    for s_ in range(NST):
        for n in range(14):
            i = s_*14 + n
            if n == 14 - PD and s_ + 1 < NST:
                S('s_barrier')
                for tau in range(2): S(bread(s_ + 1, tau))
            for tau in range(2):
                S(f'v_mfma_f32_16x16x32_bf16 {v(acc(tau,n),4)}, {v(opa(i),4)}, {v(opb(s_,tau),4)}, {v(acc(tau,n),4) if s_ else "0"}')
                if tau == 0 and i + PD < NF: S(aread(i + PD))
            if s_ == 3 and n < 2:
                for k in range(2):
                    S(f'buffer_load_dwordx2 {v(STR+4*n+2*k,2)}, v{vSt}, s[24:27], 0 offen offset:{1024*n + 128*k}')
            if s_ >= 10 and (n & 1) == 1 and smi < len(sm):
                S(sm[smi]); smi += 1
    while smi < len(sm): S(sm[smi]); smi += 1
    if F: F.st(S, 7)
    else: stamp(S, 3)
    CSR = OPA
    def csreads(f):
        c_ = CSR + 8*(f & 1)
        return [f'ds_read_b128 {v(c_+4*k,4)}, v{vCs} offset:{f*128 + k*64}' for k in range(2)]
    for x in csreads(0): S(x)
    OUT = OPB
    for f in range(7):
        if f + 1 < 7:
            for x in csreads(f + 1): S(x)
        c_ = CSR + 8*(f & 1); o = OUT + 4*(f & 3)
        for tau in range(2):
            for mat in range(2):
                a_ = acc(tau, 2*f + mat)
                for k in range(2):
                    S(f'v_pk_fma_f32 {v(a_+2*k,2)}, {v(c_+4*mat+2*k,2)}, {v(MS+2*tau,2)}, {v(a_+2*k,2)} op_sel:[0,0,0] op_sel_hi:[1,0,1] neg_lo:[0,1,0] neg_hi:[0,1,0]')
        for tau in range(2):
            for k in range(2):
                S(f'v_pk_mul_f32 {v(acc(tau,2*f)+2*k,2)}, {v(acc(tau,2*f)+2*k,2)}, {v(acc(tau,2*f+1)+2*k,2)}')
        for tau in range(2):
            for k in range(2):
                S(f'v_pk_mul_f32 {v(acc(tau,2*f)+2*k,2)}, {v(acc(tau,2*f)+2*k,2)}, {v(MS+2*tau,2)} op_sel:[0,1] op_sel_hi:[1,1]')
        for tau in range(2):
            for k in range(2):
                S(f'v_cvt_pk_bf16_f32 v{o+2*tau+k}, v{acc(tau,2*f)+2*k}, v{acc(tau,2*f)+2*k+1}')
        for k in range(2):
            S(f'v_permlane16_swap_b32 v{o+k}, v{o+2+k}')
        S(f's_add_u32 s16, s12, {f}'); S('s_lshr_b32 s17, s16, 1'); S('s_lshl_b32 s17, s17, 10')
        S('s_and_b32 s16, s16, 1'); S('s_lshl_b32 s16, s16, 9'); S('s_add_u32 s16, s16, s17')
        S(f'buffer_store_dwordx4 {v(o,4)}, v{vO}, s[28:31], s16 offen' + (' sc1' if F else ''))
    if F: return
    stamp(S, 4)
    stamp_flush(S, 5, 10, 0, vtmp=(1, 2), kern_idx=3)
    S('s_endpgm')

if __name__ == '__main__':
    A = Asm()
    A.raw(f'; @launch kernel=phD_kernel grid=(256,1,1) block=(512,1,1) lds={LDS_D}')
    A.raw('.amdgcn_target "amdgcn-amd-amdhsa--gfx950"')
    gen(A)
    open('d.s','w').write(A.text())
```

```python
import os
from common import *
import phaseCE1 as CE, phaseD2 as D

LDS_F = D.LDS_D
THREADS_F = 512
NOSYNC = os.environ.get('NOSYNC', '')

class Fz:
    KEEP = 200
    kidx = 2
    def __init__(self, S, name): self.S = S; self.name = name
    def st(self, S, i): stamp(S, i)
    def e_slot(self, sl): return sl*15360 if sl < 5 else 6*D.STG
    def sync(self, lab, own, grp, base):
        S = self.S
        S(f's_mul_i32 s16, s{grp}, {FGRP}'); S(f's_mul_i32 s17, s{own}, {FSTR}'); S('s_add_u32 s16, s16, s17')
        S(f's_add_u32 s16, s16, {base}'); S('v_mov_b32 v20, s16')
        S(f's_mul_i32 s16, s{grp+1}, {FGRP}'); S(f's_add_u32 s16, s16, {base}')
        S('v_and_b32 v22, 15, v0'); S(f'v_mul_u32_u24 v22, {FSTR}, v22'); S('v_add_u32 v22, s16, v22')
        S('s_barrier')
        stamp(S, 2 if base == FLH else 6)
        set_flag(S, 20, 21, 56)
        poll(S, lab, 22, 21, 56)
        if S.stamps: S(f's_add_u32 s{68 if base == FLH else 72}, s30, s64')
        stamp(S, 3 if base == FLH else 7)
        S('s_barrier')
    def d_mid(self, which):
        S = self.S
        if 'D' in NOSYNC: return
        if which == 'late':
            S('s_barrier'); S('s_barrier'); return
        S('s_mov_b32 s62, s60'); S('s_mov_b32 s63, s11')
        self.sync(f'L_ph_{self.name}', 61, 62, FLH)
    def d_tail(self, which):
        S = self.S
        if which == 'early':
            if 'E' not in NOSYNC:
                S('s_mov_b32 s62, s11'); S('s_mov_b32 s60, s55'); CE.tilemap(S); S('s_lshr_b32 s63, s11, 1')
                self.sync(f'L_pp_{self.name}', 60, 62, FLP)
            stamp_flush(S, 9, 10, 0, kern_idx=self.kidx)
            S('s_endpgm'); return
        CE.tilemap(S); S('s_mov_b32 s44, 0')
        CE.producer(S, 'E', self)
    def e_mid(self):
        if 'E' not in NOSYNC:
            self.S('s_barrier'); self.S('s_barrier')
    def d_pre(self):
        S = self.S
        if 'D' not in NOSYNC:
            S.wait(vm=0)
            stamp(S, 4)
            S('s_barrier'); S('s_barrier')
    def e_pre(self):
        S = self.S
        stamp(S, 7)
        if 'E' not in NOSYNC:
            S.wait(vm=0)
            stamp(S, 8)
            S('s_barrier'); S('s_barrier')
        stamp(S, 9)

def gen(A, name='phF_kernel', stamps=False):
    S = Sched(A); S.name = name; S.stamps = stamps; S.sbase = 64
    F = Fz(S, name)
    kernel_header(A, name)
    S(f's_load_dwordx2 s[8:9], s[0:1], {KA_WS}')
    S(f's_load_dwordx2 s[4:5], s[0:1], {KA_X}')
    S(f's_load_dwordx2 s[6:7], s[0:1], {KA_OUT}')
    prologue_guard(S, 256)
    S('v_lshrrev_b32 v1, 6, v0')
    S('s_and_b32 s13, s2, 7'); S('s_lshr_b32 s14, s2, 3')
    S('v_readfirstlane_b32 s10, v1')
    S('v_and_b32 v0, 63, v0')
    CE.tilemap(S); S('s_mov_b32 s44, 0')
    stamp(S, 0)
    S('s_cmp_ge_u32 s10, 4')
    S(f's_cbranch_scc1 L_prod_{name}')
    CE.consumer(S, 'C', F)
    D.tilemap(S)
    D.consumer(S, name, F)
    CE.tilemap(S); S('s_mov_b32 s44, 0')
    CE.consumer(S, 'E', F)
    S.label(f'L_prod_{name}')
    S.hist = []; S.lds = []; S.vm = []; S.smem_pending = [('s', i) for i in range(4, 10)]
    CE.producer(S, 'C', F)
    stamp(S, 1)
    srd_off(S, 56, 8, FL_OFF, FL_SZ)
    S('s_lshr_b32 s60, s11, 1')
    S('s_and_b32 s61, s11, 1'); S('s_lshl_b32 s61, s61, 3'); S('s_add_u32 s61, s61, s12')
    D.tilemap(S); S('s_mov_b32 s55, s33')
    D.producer(S, name, F)
    S.label(f'L_exit_{name}')
    S('s_endpgm')
    kernel_desc(A, name, 256, 102)
```

```python
import os
from common import *
NODMA = os.environ.get('NODMA', '')

class Kind:
    def __init__(self, **kw): self.__dict__.update(kw); self.mod = kw.get('mod', '')

def producers(S, name, kinds, NS, STG, NST, sw, LD=2, NE0=None, extra=None, tail=None, lds_base=0, vlane=2, slot_off=None, mid=None):
    EL = NS - 2
    if NE0 is None: NE0 = EL
    so = slot_off if slot_off else (lambda sl: sl*STG)
    S(f's_cmp_eq_u32 s{sw}, 3'); S(f's_cbranch_scc1 L_early_{name}')
    pcs = []
    r = 40
    for K in kinds:
        per = (K.nl + 2) // 3
        for ii in range(per):
            S(f's_mul_i32 s16, s{sw}, {per}')
            if ii: S(f's_add_u32 s16, s16, {ii}')
            K.late(S, 16, 17)
            K.goff(S, 17, r)
            S(f's_lshl_b32 s{r+1}, s17, 10')
            if K.lds0 + lds_base: S(f's_add_u32 s{r+1}, s{r+1}, {K.lds0 + lds_base}')
            pcs.append((K, r, r+1, 2*per + ii >= K.nl))
            r += 2
    nmin = sum(1 for p in pcs if not p[3])
    uid = [0]
    def issue(t, P, early):
        for (K, sg, sl, skip) in P:
            if NODMA == 'all' or (NODMA == 'late' and not early) or (NODMA == 'early' and early): continue
            if skip:
                uid[0] += 1; lab = f'L_sk{uid[0]}_{name}'
                S(f's_cmp_eq_u32 s{sw}, 2'); S(f's_cbranch_scc1 {lab}')
            S(f's_add_u32 m0, s{sl}, {so(t % NS)}')
            S(f's_add_u32 s18, s{sg}, {t*K.stride}')
            S(f'buffer_load_dwordx4 v{vlane}, s[{K.srd}:{K.srd+3}], s18 offen{K.mod} lds', tag=t)
            if skip:
                S.vm.pop(); S.label(lab)
    if mid is None:
        for t in range(min(LD, NST)): issue(t, pcs, False)
    else:
        for t in range(min(LD, NST)): issue(t, [p for p in pcs if p[0] is kinds[0]], False)
        mid('late')
        for t in range(min(LD, NST)): issue(t, [p for p in pcs if p[0] is not kinds[0]], False)
    for k in range(NST):
        S.wait_tag(k)
        if mid and k == 0: stamp(S, 7)
        S('s_barrier')
        if k + LD < NST: issue(k + LD, pcs, False)
        if extra: extra(k)
    if tail: tail('late')
    S.label(f'L_early_{name}')
    S.hist = []; S.lds = []; S.vm = []
    pcs2 = []
    r = 40
    for K in kinds:
        for k in range(K.ne):
            K.own(S, k, 17)
            K.goff(S, 17, r)
            S(f's_lshl_b32 s{r+1}, s17, 10')
            if K.lds0 + lds_base: S(f's_add_u32 s{r+1}, s{r+1}, {K.lds0 + lds_base}')
            pcs2.append((K, r, r+1, False))
            r += 2
    ne = len(pcs2)
    if mid is None:
        for t in range(min(EL, NST)): issue(t, pcs2, True)
    else:
        for t in range(min(EL, NST)): issue(t, [p for p in pcs2 if p[0] is kinds[0]], True)
        mid('early')
        for t in range(min(EL, NST)): issue(t, [p for p in pcs2 if p[0] is not kinds[0]], True)
    for k in range(NST):
        S.wait_tag(k)
        if mid and k == 0: stamp(S, 7)
        S('s_barrier')
        if k + EL < NST: issue(k + EL, pcs2, True)
        if extra: extra(k)
    if tail: tail('early')

def mod_add(S, d, a, b, m):
    S(f's_add_u32 s{d}, s{a}, {b}')
    S(f's_sub_u32 s19, s{d}, {m}')
    S(f's_cmp_ge_u32 s{d}, {m}')
    S(f's_cselect_b32 s{d}, s19, s{d}')
```

```python
import os
from common import *
import phaseR
EARLY = int(os.environ.get('EARLY', '1'))
ENT = os.environ.get('ENT', '')
LNT = os.environ.get('LNT', '')

NS = 4
ACT_BASE = 0
W_BASE = 65536
X_BASE = 131072
LDS_A = 131072 + 2048
NST = 10
QSCALE = 20 ** -0.5 * 1.4426950408889634

def f32bits(x):
    import struct
    return struct.unpack('<I', struct.pack('<f', x))[0]

def gen(A, name='phA_kernel', stamps=False):
    S = Sched(A); S.name = name; S.stamps = stamps
    kernel_header(A, name)
    S(f's_load_dwordx2 s[4:5], s[0:1], {KA_X}')
    S(f's_load_dwordx2 s[6:7], s[0:1], {KA_WQKV}')
    S(f's_load_dwordx2 s[8:9], s[0:1], {KA_WS}')
    prologue_guard(S, 256)
    S('s_and_b32 s13, s2, 7'); S('s_lshr_b32 s14, s2, 3')
    S('s_lshr_b32 s12, s13, 1'); S('s_lshl_b32 s12, s12, 2'); S('s_lshr_b32 s15, s14, 3'); S('s_add_u32 s12, s12, s15')
    if not EARLY:
        S('s_cmp_ge_u32 s12, 15'); S(f's_cbranch_scc1 L_exit_{name}')
    S('v_lshrrev_b32 v1, 6, v0')
    S('s_and_b32 s11, s13, 1'); S('s_lshl_b32 s11, s11, 3'); S('s_and_b32 s15, s14, 7'); S('s_add_u32 s11, s11, s15')
    S('v_readfirstlane_b32 s10, v1')
    S('v_and_b32 v0, 63, v0')
    if EARLY:
        S('s_lshr_b32 s29, s14, 3')
        S('s_cmp_ge_u32 s12, 15'); S(f's_cbranch_scc1 L_idle_{name}')
    stamp(S, 0)
    S('s_cmp_ge_u32 s10, 4')
    S(f's_cbranch_scc1 L_prod_{name}')
    consumer(S, name)
    S.label(f'L_prod_{name}')
    S.hist = []; S.lds = []; S.vm = []; S.smem_pending = [('s', i) for i in range(4, 10)]
    if EARLY:
        producer2(S, name)
        S.label(f'L_idle_{name}')
        S.hist = []; S.lds = []; S.vm = []; S.smem_pending = [('s', i) for i in range(4, 10)]
        idle(S, name)
    else:
        producer(S, name)
    S.label(f'L_exit_{name}')
    S('s_endpgm')
    kernel_desc(A, name, 184, 102)

def dma_stage(t, pw4k, vA, vW, sx, sw):
    slot = t % NS
    out = []
    for ii in range(4):
        out.append([f's_add_u32 m0, s{pw4k}, {ACT_BASE + slot*16384 + ii*1024}',
                    f's_mov_b32 s18, {ii*10240 + t*128}',
                    f'buffer_load_dwordx4 v{vA[ii&1]}, s[{sx}:{sx+3}], s18 offen lds'])
        out.append([f's_add_u32 m0, s{pw4k}, {W_BASE + slot*16384 + ii*1024}',
                    f's_mov_b32 s18, {(t*64 + 4*ii)*3840}',
                    f'buffer_load_dwordx4 v{vW[ii>>1]}, s[{sw}:{sw+3}], s18 offen lds'])
    return out

def producer(S, name):
    vA = [2, 3]; vW = [4, 5]; t0, t1, t2 = 6, 7, 8
    S('s_sub_u32 s19, s10, 4')
    S('s_lshl_b32 s28, s19, 12')
    S(f'v_lshrrev_b32 v{t0}, 3, v0')
    S(f'v_mul_u32_u24 v{t0}, 1280, v{t0}')
    S(f'v_lshrrev_b32 v{t1}, 4, v0')
    S(f'v_and_b32 v{t2}, 7, v0')
    S(f'v_xor_b32 v{t2}, v{t2}, v{t1}')
    S('s_lshl_b32 s16, s11, 2'); S('s_add_u32 s16, s16, s19'); S(f's_mul_i32 s16, s16, {32*1280}')
    S(f'v_add_u32 v{t0}, s16, v{t0}')
    S(f'v_lshl_add_u32 v{vA[0]}, v{t2}, 4, v{t0}')
    S(f'v_xor_b32 v{vA[1]}, 64, v{vA[0]}')
    S(f's_mul_i32 s16, s19, {16*3840}'); S('s_lshl_b32 s17, s12, 8'); S('s_add_u32 s16, s16, s17')
    S(f'v_mul_u32_u24 v{t0}, 3840, v{t1}')
    S(f'v_add_u32 v{t0}, s16, v{t0}')
    S(f'v_and_b32 v{t2}, 15, v0')
    S(f'v_lshlrev_b32 v{t1}, 1, v{t1}')
    S(f'v_xor_b32 v{t2}, v{t2}, v{t1}')
    S(f'v_lshl_add_u32 v{vW[0]}, v{t2}, 4, v{t0}')
    S(f'v_xor_b32 v{vW[1]}, 128, v{vW[0]}')
    srd(S, 20, 4, 2048*1280)
    srd(S, 24, 6, 640*3840)
    def issue(t):
        for g in dma_stage(t, 28, vA, vW, 20, 24):
            for x in g: S(x, tag=t)
    issue(0)
    stamp(S, 1)
    issue(1)
    S.wait_tag(0)
    stamp(S, 2)
    S('s_barrier')
    issue(2); issue(3)
    for t in range(NST):
        if t + 1 < NST: S.wait_tag(t + 1)
        S('s_barrier')
        if t + NS < NST: issue(t + NS)
    stamp(S, 3)
    S('s_barrier')
    stamp_flush(S, 4, 10, 0)
    S('s_endpgm')

def prod_addr(S, vA, vW0):
    t0, t1, t2 = 20, 21, 22
    S(f'v_lshrrev_b32 v{t0}, 3, v0')
    S(f'v_mul_u32_u24 v{t0}, 1280, v{t0}')
    S(f'v_lshrrev_b32 v{t1}, 4, v0')
    S(f'v_and_b32 v{t2}, 7, v0')
    S(f'v_xor_b32 v{t2}, v{t2}, v{t1}')
    S(f's_mul_i32 s16, s11, {128*1280}')
    S(f'v_add_u32 v{t0}, s16, v{t0}')
    S(f'v_lshl_add_u32 v{vA[0]}, v{t2}, 4, v{t0}')
    S(f'v_xor_b32 v{vA[1]}, 64, v{vA[0]}')
    if vW0 is not None:
        S('s_lshl_b32 s17, s12, 8')
        S(f'v_mul_u32_u24 v{t0}, 3840, v{t1}')
        S(f'v_add_u32 v{t0}, s17, v{t0}')
        S(f'v_and_b32 v{t2}, 15, v0')
        S(f'v_lshlrev_b32 v{t1}, 1, v{t1}')
        S(f'v_xor_b32 v{t2}, v{t2}, v{t1}')
        S(f'v_lshl_add_u32 v{vW0}, v{t2}, 4, v{t0}')

def idle(S, name):
    S('s_cmp_lg_u32 s2, 198'); S(f's_cbranch_scc1 L_noz_{name}')
    S('s_cmp_ge_u32 s10, 4'); S(f's_cbranch_scc1 L_noz_{name}')
    srd_off(S, 20, 8, FL_OFF, FL_SZ)
    S(f's_mul_i32 s16, s10, {16*FGRP}'); S('v_mov_b32 v4, 0')
    S(f'v_lshrrev_b32 v3, 4, v0'); S(f'v_mul_u32_u24 v3, {FGRP}, v3'); S('v_and_b32 v2, 15, v0'); S(f'v_mul_u32_u24 v2, {FSTR}, v2')
    S('v_add_u32 v2, v2, v3'); S('v_add_u32 v2, s16, v2')
    for k in range(4):
        S(f's_mov_b32 s17, {4*k*FGRP}')
        S(f'buffer_store_dword v4, v2, s[20:23], s17 offen')
    S.label(f'L_noz_{name}')
    S.hist = []; S.lds = []; S.vm = []; S.smem_pending = [('s', i) for i in range(4, 10)]
    S('s_cmp_eq_u32 s10, 7'); S(f's_cbranch_scc1 L_xpf_{name}')
    S('s_waitcnt lgkmcnt(0)')
    def setup():
        S('s_sub_u32 s11, s14, 24'); S('s_lshl_b32 s11, s11, 1'); S('s_and_b32 s12, s13, 1'); S('s_add_u32 s11, s11, s12')
        S('s_mul_i32 s11, s11, 7'); S('s_add_u32 s11, s11, s10'); S('s_add_u32 s11, s11, 540')
        S('s_lshl_b32 s12, s10, 13'); S('s_add_u32 s12, s12, 65536')
    phaseR.repack(S, name, 10, 0, T=1, setup=setup)
    S('s_endpgm')
    S.label(f'L_xpf_{name}')
    S.hist = []; S.lds = []; S.vm = []; S.smem_pending = [('s', i) for i in range(4, 10)]
    vA = [2, 3]
    prod_addr(S, vA, None)
    srd(S, 20, 4, 2048*1280)
    S('s_lshl_b32 s30, s29, 12'); S(f's_mul_i32 s31, s29, {4*10240}')
    for t in range(NST):
        for ii in range(4):
            S(f's_add_u32 m0, s30, {(t % NS)*16384 + ii*1024}')
            S(f's_add_u32 s18, s31, {ii*10240 + t*128}')
            S(f'buffer_load_dwordx4 v{vA[ii&1]}, s[20:23], s18 offen{ENT} lds')
    S.wait(vm=0)
    S('s_endpgm')

def producer2(S, name):
    vA = [2, 3]; vW0 = 4; vWl = [5, 6, 7, 8, 9]
    S('s_sub_u32 s19, s10, 4')
    prod_addr(S, vA, vW0)
    srd(S, 20, 4, 2048*1280)
    srd(S, 24, 6, 640*3840)
    S('s_cmp_eq_u32 s19, 3'); S(f's_cbranch_scc1 L_early_{name}')
    S('s_add_u32 s16, s29, s19'); S('s_add_u32 s16, s16, 1'); S('s_and_b32 s16, s16, 3')
    S('s_lshl_b32 s30, s16, 12'); S(f's_mul_i32 s31, s16, {4*10240}')
    S('s_lshl_b32 s16, s15, 1'); S('s_mul_i32 s17, s19, 5'); S('s_add_u32 s16, s16, s17'); S('s_add_u32 s16, s16, 2')
    for ii in range(5):
        S(f's_add_u32 s17, s16, {ii}'); S('s_and_b32 s17, s17, 15')
        S(f's_lshl_b32 s{32+ii}, s17, 10'); S(f's_mul_i32 s{38+ii}, s17, 15360')
        S('s_lshl_b32 s17, s17, 6'); S('s_and_b32 s17, s17, 128')
        S(f'v_xor_b32 v{vWl[ii]}, s17, v{vW0}')
    def late(t):
        slot = t % NS
        for ii in range(5):
            if ii < 4:
                S(f's_add_u32 m0, s30, {ACT_BASE + slot*16384 + ii*1024}', tag=t)
                S(f's_add_u32 s18, s31, {ii*10240 + t*128}')
                S(f'buffer_load_dwordx4 v{vA[ii&1]}, s[20:23], s18 offen{LNT} lds', tag=t)
            if ii == 4:
                lab = f'L_sk{t}_{name}'
                S('s_cmp_eq_u32 s19, 2'); S(f's_cbranch_scc1 {lab}')
            S(f's_add_u32 m0, s{32+ii}, {W_BASE + slot*16384}')
            S(f's_add_u32 s18, s{38+ii}, {t*64*3840}')
            S(f'buffer_load_dwordx4 v{vWl[ii]}, s[24:27], s18 offen{LNT} lds', tag=t)
            if ii == 4: S.label(lab)
    late(0)
    stamp(S, 1)
    S.wait(vm=0)
    stamp(S, 2)
    S('s_barrier')
    LD = int(os.environ.get('LD', '2'))
    for u in range(1, LD + 1): late(u)
    for t in range(NST):
        if t + 1 < NST:
            n_out = min(LD - 1, NST - 1 - (t + 1))
            S.A.raw(f'  s_waitcnt vmcnt({8*n_out})'); S.vm = []
        S('s_barrier')
        if t + 1 + LD < NST: late(t + 1 + LD)
    stamp(S, 3)
    S('s_barrier')
    stamp_flush(S, 4, 10, 0)
    S('s_endpgm')
    S.label(f'L_early_{name}')
    S.hist = []; S.lds = []; S.vm = []
    S('s_lshl_b32 s30, s29, 12'); S(f's_mul_i32 s31, s29, {4*10240}')
    S('s_lshl_b32 s32, s15, 11'); S(f's_mul_i32 s33, s15, {2*15360}')
    S('s_and_b32 s17, s15, 1'); S('s_lshl_b32 s17, s17, 7'); S(f'v_xor_b32 v{vWl[0]}, s17, v{vW0}')
    def early(t):
        slot = t % NS
        for ii in range(4):
            S(f's_add_u32 m0, s30, {ACT_BASE + slot*16384 + ii*1024}')
            S(f's_add_u32 s18, s31, {ii*10240 + t*128}')
            S(f'buffer_load_dwordx4 v{vA[ii&1]}, s[20:23], s18 offen{ENT} lds', tag=t)
            if ii < 2:
                S(f's_add_u32 m0, s32, {W_BASE + slot*16384 + ii*1024}')
                S(f's_add_u32 s18, s33, {t*64*3840 + ii*15360}')
                S(f'buffer_load_dwordx4 v{vWl[0]}, s[24:27], s18 offen{ENT} lds', tag=t)
    NE0 = int(os.environ.get('NE0', '4'))
    for t in range(NE0): early(t)
    stamp(S, 1)
    S.wait_tag(0)
    stamp(S, 2)
    S('s_barrier')
    for t in range(NE0, NS): early(t)
    for t in range(NST):
        if t + 1 < NST: S.wait_tag(t + 1)
        S('s_barrier')
        if t + NS < NST: early(t + NS)
    stamp(S, 3)
    S('s_barrier')
    stamp_flush(S, 4, 10, 0)
    S('s_endpgm')

def consumer(S, name):
    vG = 1; vT = 2
    aB = [[3, 4], [5, 6]]
    aW = [7, 8, 9, 10]
    T = 11
    ACC = 24
    GR = 88
    RS = 96
    CSA = 104
    OPA = 112
    OPB = 144
    ONES = 176
    acc = lambda i, j: ACC + (i*4 + j)*4
    opa = lambda b, i: OPA + b*16 + i*4
    opb = lambda b, j: OPB + b*16 + j*4
    S('s_lshr_b32 s14, s10, 1')
    S('s_and_b32 s15, s10, 1')
    S(f'v_lshrrev_b32 v{vG}, 4, v0')
    S(f'v_and_b32 v{vT}, 15, v0')
    S(f'v_lshrrev_b32 v{T}, 1, v{vT}')
    S(f'v_xor_b32 v{T}, v{T}, v{vG}')
    S(f'v_lshlrev_b32 v{T}, 4, v{T}')
    S(f'v_lshl_add_u32 v{T}, v{vT}, 7, v{T}')
    S('s_lshl_b32 s16, s14, 2'); S('s_lshl_b32 s17, s15, 1')
    S('s_add_u32 s18, s16, s17')
    S('s_xor_b32 s19, s18, 2')
    S('s_lshl_b32 s16, s18, 11'); S('s_lshl_b32 s17, s19, 11')
    S(f'v_add_u32 v{aB[0][0]}, s16, v{T}'); S(f'v_add_u32 v{aB[0][1]}, s17, v{T}')
    S(f'v_xor_b32 v{aB[1][0]}, 64, v{aB[0][0]}'); S(f'v_xor_b32 v{aB[1][1]}, 64, v{aB[0][1]}')
    S(f'v_and_b32 v{T}, 3, v0')
    S(f'v_lshrrev_b32 v{T+1}, 2, v0'); S(f'v_and_b32 v{T+1}, 3, v{T+1}')
    S(f'v_lshl_add_u32 v{T+2}, v{vG}, 3, v{T+1}')
    S(f'v_lshlrev_b32 v{T+2}, 8, v{T+2}')
    S(f'v_add_u32 v{T+2}, {W_BASE}, v{T+2}')
    S(f'v_and_b32 v{T+3}, 1, v{vG}'); S(f'v_lshlrev_b32 v{T+3}, 3, v{T+3}')
    S(f'v_lshl_or_b32 v{T+3}, v{T+1}, 1, v{T+3}')
    S(f'v_xor_b32 v{T+3}, v{T+3}, v{T}')
    S(f'v_lshrrev_b32 v{T+4}, 1, v{T}')
    S(f'v_lshl_add_u32 v{T+2}, v{T+4}, 3, v{T+2}')
    S('s_lshl_b32 s20, s15, 1'); S('s_add_u32 s20, s20, s14'); S('s_xor_b32 s21, s20, 1')
    for z in range(2):
        S(f's_lshl_b32 s16, s{20+z}, 2')
        S(f'v_xor_b32 v{T+5}, s16, v{T+3}')
        S(f'v_lshl_add_u32 v{aW[2*z]}, v{T+5}, 4, v{T+2}')
        S(f'v_xor_b32 v{aW[2*z+1]}, 8, v{aW[2*z]}')
    for k in range(4): S(f'v_mov_b32 v{ONES+k}, 0x3f803f80')
    def reads(sig):
        t, s_ = sig >> 1, sig & 1
        slot = t % NS; b = sig & 1
        L = []
        for q in range(4):
            L.append(f'ds_read_b128 {v(opb(b,q),4)}, v{aB[s_][q>>1]} offset:{slot*16384 + (q&1)*2048}')
            for p in range(2):
                L.append(f'ds_read_b64_tr_b16 {v(opa(b,q)+2*p,2)}, v{aW[q]} offset:{slot*16384 + s_*8192 + p*1024}')
        return L
    stamp(S, 1)
    S('s_barrier')
    stamp(S, 2)
    for x in reads(0): S(x)
    for sig in range(2*NST):
        b = sig & 1
        mf = []
        def M(d, aa, bb):
            c_ = v(d,4) if sig else '0'
            mf.append(f'v_mfma_f32_16x16x32_bf16 {v(d,4)}, {v(aa,4)}, {v(bb,4)}, {c_}')
        for i in range(4):
            for j in range(4):
                M(acc(i,j), opa(b,i), opb(b,j))
            if i < 2:
                M(GR+4*i, opb(b,i), opb(b,i))
                M(RS+4*i, ONES, opb(b,i))
                M(CSA+4*i, opa(b,i), ONES)
        if b == 1:
            S.wait(lgkm=0)
            S('s_barrier')
        fl = reads(sig + 1) if sig + 1 < 2*NST else []
        S(mf[0])
        n = len(fl); k = 0
        for m in mf[1:]:
            if k < n: S(fl[k]); k += 1
            S(m)
        assert k == n
    stamp(S, 3)
    CSo = X_BASE + 1024
    S(f'v_and_b32 v{T}, 3, v0')
    S(f'v_cmp_eq_u32 s[30:31], 1, v{T}'); S(f'v_cmp_eq_u32 s[32:33], 2, v{T}'); S(f'v_cmp_eq_u32 s[34:35], 3, v{T}')
    S(f's_mov_b32 s26, 0x{f32bits(1/640):08x}'); S(f's_mov_b32 s27, 0x{f32bits(1e-5):08x}')
    S(f's_cmp_lt_u32 s12, 5'); S(f's_cselect_b32 s36, 0x{f32bits(QSCALE):08x}, 1.0')
    for j in range(2):
        q = T + 5 + 2*j + 1; m = T + 5 + 2*j
        S(f'v_cndmask_b32 v{q}, v{GR+4*j}, v{GR+4*j+1}, s[30:31]')
        S(f'v_mul_f32 v{m}, s26, v{RS+4*j}')
        S(f'v_cndmask_b32 v{q}, v{q}, v{GR+4*j+2}, s[32:33]')
        S(f'v_cndmask_b32 v{q}, v{q}, v{GR+4*j+3}, s[34:35]')
    for j in range(2):
        q = T + 5 + 2*j + 1; m = T + 5 + 2*j
        S(f'v_mul_f32 v{q}, s26, v{q}')
        S(f'v_fma_f32 v{q}, -v{m}, v{m}, v{q}')
        S(f'v_max_f32 v{q}, 0, v{q}')
        bf16_round(S, q, q)
        S(f'v_add_f32 v{q}, s27, v{q}')
        bf16_round(S, q, q)
        S(f'v_sqrt_f32 v{q}, v{q}')
        bf16_round(S, m, m)
        bf16_round(S, q, q)
        S(f'v_rcp_f32 v{q}, v{q}')
        S(f'v_mul_f32 v{q}, s36, v{q}')
    S(f'v_lshlrev_b32 v{T+1}, 3, v{vT}')
    S('s_lshl_b32 s16, s18, 7'); S('s_lshl_b32 s17, s19, 7')
    S(f's_add_u32 s16, s16, {X_BASE}'); S(f's_add_u32 s17, s17, {X_BASE}')
    S(f'v_add_u32 v{T+2}, s16, v{T+1}'); S(f'v_add_u32 v{T+3}, s17, v{T+1}')
    S('s_mov_b32 s38, 0x00F0000F'); S('s_mov_b32 s39, 0xF0000F00')
    S('s_mov_b64 exec, s[38:39]')
    for j in range(2):
        S(f'ds_write_b64 v{T+2}, {v(T+5+2*j,2)} offset:{j*128}')
    S('s_mov_b64 exec, -1')
    S(f'v_lshlrev_b32 v{T+10}, 4, v{vG}')
    S('s_lshl_b32 s16, s20, 7'); S('s_lshl_b32 s17, s21, 7')
    S(f's_add_u32 s16, s16, {CSo}'); S(f's_add_u32 s17, s17, {CSo}')
    S(f'v_add_u32 v{T+11}, s17, v{T+10}'); S(f'v_add_u32 v{T+10}, s16, v{T+10}')
    S('s_mov_b32 s38, 0x00010001'); S('s_mov_b32 s39, 0x00010001')
    S('s_mov_b64 exec, s[38:39]')
    for e in range(2):
        S(f'ds_write_b128 v{T+10}, {v(CSA+4*e,4)} offset:{e*64}')
    S('s_mov_b64 exec, -1')
    srd_off(S, 40, 8, QKV_OFF, QKV_SZ)
    VO = OPB
    for z in range(2):
        S(f's_lshl_b32 s16, s12, 2'); S(f's_add_u32 s16, s16, s{20+z}'); S('s_lshl_b32 s16, s16, 2')
        S(f'v_add_u32 v{T}, s16, v{vG}')
        S(f'v_lshlrev_b32 v{T}, 15, v{T}')
        S(f'v_lshl_add_u32 v{T}, v{vT}, 4, v{T}')
        for hf in range(2):
            S(f's_lshl_b32 s16, s11, 3'); S(f's_add_u32 s16, s16, s{18+hf}'); S('s_lshl_b32 s16, s16, 8')
            S(f'v_add_u32 v{VO+2*z+hf}, s16, v{T}')
    S.wait(lgkm=0)
    S('s_barrier')
    stamp(S, 4)
    ST = OPA
    CS2 = OPA + 8
    for j in range(4):
        S(f'ds_read_b64 {v(ST+2*j,2)}, v{T+2+(j>>1)} offset:{(j&1)*128}')
    for e in range(2):
        S(f'ds_read_b128 {v(CS2+4*e,4)}, v{T+11} offset:{e*64}')
    OUT = OPA + 16
    n = 0
    for z in range(2):
        for j in range(4):
            o = OUT + 4*(n & 3); n += 1
            for e in range(2):
                i = 2*z + e
                cs = (CSA + 4*e) if z == 0 else (CS2 + 4*e)
                a_ = acc(i, j)
                for h in range(2):
                    S(f'v_pk_fma_f32 {v(a_+2*h,2)}, {v(cs+2*h,2)}, {v(ST+2*j,2)}, {v(a_+2*h,2)} op_sel:[0,0,0] op_sel_hi:[1,0,1] neg_lo:[0,1,0] neg_hi:[0,1,0]')
                for h in range(2):
                    S(f'v_pk_mul_f32 {v(a_+2*h,2)}, {v(a_+2*h,2)}, {v(ST+2*j,2)} op_sel:[0,1] op_sel_hi:[1,1]')
                for h in range(2):
                    S(f'v_cvt_pk_bf16_f32 v{o+2*e+h}, v{a_+2*h}, v{a_+2*h+1}')
            S(f'buffer_store_dwordx4 {v(o,4)}, v{VO+2*z+(j>>1)}, s[40:43], 0 offen offset:{(j&1)*256}')
    stamp(S, 5)
    stamp_flush(S, 6, 10, 0)
    S('s_endpgm')

if __name__ == '__main__':
    A = Asm()
    A.raw(f'; @launch kernel=phA_kernel grid=(256,1,1) block=(512,1,1) lds={LDS_A}')
    A.raw('.amdgcn_target "amdgcn-amd-amdhsa--gfx950"')
    gen(A)
    open('a.s','w').write(A.text())
```

```python
import os
from common import *
import phaseR

KP0 = 0; PSTR = 6208
VP0 = 31232
AUX = 62464
LDS_B0 = AUX + 6656
MERGE = int(os.environ.get('MERGE', '1'))
LDS_B = LDS_B0 + (3*16384 if MERGE else 0)
THREADS_B = 512 if MERGE else 256
RSMOD = os.environ.get('RSMOD', '')
WOA = int(os.environ.get('WOA', '1'))
NEG = 0xF149F2CA
TAILX = 155648

def gen(A, name='phB_kernel', stamps=False, nthreads=256):
    S = Sched(A); S.name = name; S.stamps = stamps
    kernel_header(A, name)
    S(f's_load_dwordx2 s[8:9], s[0:1], {KA_WS}')
    prologue_guard(S, 256)
    S('v_lshrrev_b32 v1, 6, v0')
    S('s_and_b32 s13, s2, 7'); S('s_lshr_b32 s14, s2, 3')
    S('v_readfirstlane_b32 s10, v1')
    S('v_and_b32 v0, 63, v0')
    tilemap(S)
    stamp(S, 0)
    if MERGE:
        S('s_cmp_ge_u32 s10, 4'); S(f's_cbranch_scc1 L_help_{name}')
    attention(S, name)
    if MERGE:
        S('s_endpgm')
        S.label(f'L_help_{name}')
        S.hist = []; S.lds = []; S.vm = []; S.smem_pending = [('s', 8), ('s', 9)]
        helper(S, name)
    S.label(f'L_exit_{name}')
    S('s_endpgm')
    kernel_desc(A, name, 256, 102)

def tilemap(S):
    S('s_lshr_b32 s12, s14, 4'); S('s_lshl_b32 s13, s13, 1'); S('s_add_u32 s12, s12, s13')
    S('s_and_b32 s11, s14, 15')

def kv_dma(S, ty, tag, sw, T):
    for n in range(8):
        S(f's_lshl_b32 s18, s{sw}, 3'); S(f's_add_u32 s18, s18, {n}'); S('s_min_u32 s18, s18, 29')
        S('s_mul_i32 s19, s18, 43'); S('s_lshr_b32 s19, s19, 8')
        S('s_mul_i32 s26, s19, 6'); S('s_sub_u32 s26, s18, s26')
        S('s_lshl_b32 s26, s26, 10')
        S(f's_mul_i32 s27, s19, {PSTR}'); S('s_add_u32 s27, s27, s26')
        S(f's_add_u32 m0, s27, {KP0 if ty == 1 else VP0}')
        S('s_add_u32 s19, s19, s16'); S(f's_add_u32 s19, s19, {80*ty}'); S('s_lshl_b32 s19, s19, 15')
        S('s_add_u32 s19, s19, s26'); S('s_add_u32 s19, s19, s17')
        S(f'buffer_load_dwordx4 v{T}, s[20:23], s19 offen lds', tag=tag)

def helper(S, name, F=None):
    S('s_sub_u32 s38, s10, 4')
    S('s_waitcnt lgkmcnt(0)')
    srd_off(S, 20, 8, QKV_OFF, QKV_SZ)
    S('v_lshlrev_b32 v40, 4, v0')
    S('s_mul_i32 s16, s12, 5')
    S('s_lshl_b32 s17, s11, 7'); S('s_sub_u32 s17, s17, 256'); S('s_lshl_b32 s17, s17, 4')
    kv_dma(S, 2, 'V', 38, 40)
    S('s_barrier')
    def after_issue(n):
        S.A.raw(f'  s_waitcnt vmcnt({n})')
        S('s_barrier')
    if F:
        F.b_help_pre()
        phaseR.repack(S, name, 38, LDS_B0, T=1, after_issue=after_issue, smod=os.environ.get('RS', ' sc1'), njobs=540 if WOA else 640)
        return
    phaseR.repack(S, name, 38, LDS_B0, T=1, after_issue=after_issue, smod=RSMOD, njobs=540 if WOA else 640)
    stamp(S, 1)
    stamp_flush(S, 2, 10, 0, kern_idx=1)

def attention(S, name, F=None):
    S('s_and_b32 s14, s10, 1'); S('s_lshr_b32 s15, s10, 1')
    Sb = 0 + 16
    B0 = 160; B8 = 176
    OA = 192
    Q = 208
    KO = 220
    VO = 232
    aKm, aKt, aV = 2, 3, 4
    oM, oT = 5, 6
    T = 7
    vM = 248; vL = 249
    sc = lambda j, r=0: Sb + 16*j + r
    S('s_waitcnt lgkmcnt(0)')
    srd_off(S, 20, 8, QKV_OFF, QKV_SZ)
    S(f'v_lshlrev_b32 v{T}, 4, v0')
    S('s_mul_i32 s16, s12, 5')
    S('s_lshl_b32 s17, s11, 7'); S('s_sub_u32 s17, s17, 256'); S('s_lshl_b32 s17, s17, 4')
    def dma(ty, tag): kv_dma(S, ty, tag, 10, T)
    dma(1, 'K')
    S(f'v_and_b32 v{T+1}, 31, v0')
    S(f'v_lshrrev_b32 v{T+2}, 5, v0')
    S('s_mul_i32 s18, s14, 3'); S('s_add_u32 s18, s18, s16')
    S(f'v_add_u32 v{T+3}, s18, v{T+2}')
    S(f'v_lshlrev_b32 v{T+3}, 15, v{T+3}')
    S('s_lshl_b32 s19, s11, 1'); S('s_add_u32 s19, s19, s15'); S('s_lshl_b32 s19, s19, 10')
    S(f'v_lshl_add_u32 v{T+4}, v{T+1}, 4, s19')
    S(f'v_add_u32 v{T+3}, v{T+3}, v{T+4}')
    for b in range(2):
        S(f'buffer_load_dwordx4 {v(Q+6*b,4)}, v{T+3}, s[20:23], 0 offen offset:{512*b}', tag='Q')
    S('s_add_u32 s18, s16, 2'); S('s_lshr_b32 s35, s18, 1'); S('s_and_b32 s35, s35, 1'); S('s_xor_b32 s35, s35, s14')
    S('s_lshl_b32 s27, s18, 15'); S('s_lshl_b32 s28, s35, 3'); S('s_add_u32 s27, s27, s28')
    S(f'v_add_u32 v{T+4}, s27, v{T+4}')
    for b in range(2):
        S(f'buffer_load_dwordx2 {v(Q+6*b+4,2)}, v{T+4}, s[20:23], 0 offen offset:{512*b}', tag='Q')
    if not MERGE: dma(2, 'V')
    S('s_mul_i32 s18, s10, 100')
    S(f'v_add_u32 v{T+5}, s18, v0')
    S('s_lshl_b32 s19, s11, 7'); S('s_sub_u32 s19, 256, s19')
    S(f'v_mov_b32 v{KO}, 0x3f80'); S(f'v_mov_b32 v{KO+1}, 0'); S(f'v_mov_b32 v{KO+3}, 0')
    S(f'v_mov_b32 v{T+3}, 0xf149')
    for k in range(2):
        S(f'v_cmp_gt_i32 vcc, s19, v{T+5}')
        S(f'v_cndmask_b32 v{KO+2}, 0, v{T+3}, vcc')
        S(f'v_lshlrev_b32 v{T+4}, 4, v{T+5}')
        if k == 1:
            S('s_mov_b32 exec_lo, -1'); S('s_mov_b32 exec_hi, 0xf') if False else None
            S('s_mov_b64 exec, 0xfffffffff') if False else None
            S('s_mov_b32 s30, -1'); S('s_mov_b32 s31, 0xf'); S('s_mov_b64 exec, s[30:31]')
        S(f'ds_write_b128 v{T+4}, {v(KO,4)} offset:{AUX}')
        if k == 0: S(f'v_add_u32 v{T+5}, 64, v{T+5}')
    S('s_mov_b64 exec, -1')
    S('s_mul_i32 s18, s14, 3')
    S(f'v_add_u32 v{T+3}, s18, v{T+2}'); S(f'v_mul_u32_u24 v{T+3}, {PSTR}, v{T+3}')
    S('s_lshl_b32 s19, s15, 10')
    S(f'v_lshl_add_u32 v{T+4}, v{T+1}, 4, s19')
    S(f'v_add_u32 v{aKm}, v{T+3}, v{T+4}')
    if KP0: S(f'v_add_u32 v{aKm}, {KP0}, v{aKm}')
    S('s_lshl_b32 s28, s35, 3'); S(f's_add_u32 s28, s28, {KP0 + 2*PSTR}')
    S(f'v_mov_b32 v{T+3}, s28'); S(f'v_mov_b32 v{T+5}, {AUX+8}')
    S(f'v_cmp_eq_u32 vcc, 0, v{T+2}')
    S(f'v_cndmask_b32 v{T+3}, v{T+5}, v{T+3}, vcc')
    S(f'v_add_u32 v{aKt}, v{T+3}, v{T+4}')
    S(f'v_and_b32 v{T+3}, 3, v0')
    S(f'v_lshrrev_b32 v{T+4}, 2, v0'); S(f'v_and_b32 v{T+4}, 3, v{T+4}')
    S(f'v_lshl_add_u32 v{T+4}, v{T+2}, 2, v{T+4}')
    S(f'v_lshlrev_b32 v{T+4}, 4, v{T+4}')
    S(f'v_add_u32 v{T+4}, s19, v{T+4}')
    S(f'v_lshrrev_b32 v{T+5}, 1, v{T+3}'); S('s_mul_i32 s18, s14, 3'); S(f'v_add_u32 v{T+5}, s18, v{T+5}')
    S(f'v_add_u32 v{T+6}, s16, v{T+5}'); S(f'v_lshrrev_b32 v{T+6}, 1, v{T+6}'); S(f'v_xor_b32 v{T+6}, v{T+6}, v{T+3}')
    S(f'v_and_b32 v{T+6}, 1, v{T+6}')
    S(f'v_mul_u32_u24 v{T+5}, {PSTR}, v{T+5}'); S(f'v_lshl_add_u32 v{T+5}, v{T+6}, 3, v{T+5}')
    S(f'v_add_u32 v{T+5}, {VP0}, v{T+5}')
    S(f's_lshl_b32 s28, s35, 3'); S(f's_add_u32 s28, s28, {VP0 + 2*PSTR}')
    S('s_lshl_b32 s29, s14, 7'); S(f's_sub_u32 s29, {AUX+192}, s29')
    S(f'v_mov_b32 v{T+6}, s29'); S(f'v_mov_b32 v{T+7}, s28')
    S(f'v_cmp_eq_u32 vcc, 0, v{T+3}'); S(f'v_cndmask_b32 v{T+6}, v{T+6}, v{T+7}, vcc')
    S(f'v_bfe_u32 v{T+7}, v0, 4, 1'); S(f'v_cmp_eq_u32 vcc, 0, v{T+7}')
    S(f'v_cndmask_b32 v{T+5}, v{T+6}, v{T+5}, vcc')
    S(f'v_add_u32 v{aV}, v{T+5}, v{T+4}')
    S(f'v_lshlrev_b32 v{T+3}, 2, v{T+2}'); S(f'v_sub_u32 v{T+3}, v{T+1}, v{T+3}')
    S(f'v_mov_b32 v{T+4}, 0x{NEG:08x}')
    for r in range(16):
        c_ = (r & 3) + 8*(r >> 2)
        S(f'v_cmp_gt_i32 vcc, {c_}, v{T+3}')
        S(f'v_cndmask_b32 v{B0+r}, v{T+4}, 0, vcc')
        S(f'v_cndmask_b32 v{B8+r}, 0, v{T+4}, vcc')
    srd_off(S, 24, 8, OF_OFF, OF_SZ)
    S('s_lshl_b32 s18, s11, 1'); S('s_add_u32 s18, s18, s15'); S('s_lshl_b32 s18, s18, 2')
    S(f'v_lshrrev_b32 v{T+3}, 4, v{T+1}'); S(f'v_add_u32 v{T+3}, s18, v{T+3}')
    S(f'v_mul_u32_u24 v{T+3}, {20*1024}, v{T+3}')
    S(f'v_and_b32 v{T+4}, 15, v0'); S(f'v_lshl_add_u32 v{T+3}, v{T+4}, 4, v{T+3}')
    S('s_lshl_b32 s18, s12, 10'); S('s_lshl_b32 s19, s14, 9'); S('s_add_u32 s18, s18, s19')
    S(f'v_lshl_add_u32 v{oM}, v{T+2}, 8, v{T+3}'); S(f'v_add_u32 v{oM}, s18, v{oM}')
    S('s_lshr_b32 s18, s12, 2'); S('s_add_u32 s18, s18, 16'); S('s_lshl_b32 s18, s18, 10')
    S('s_and_b32 s19, s12, 3'); S('s_lshl_b32 s19, s19, 8'); S('s_add_u32 s18, s18, s19')
    S('s_lshl_b32 s19, s14, 3'); S('s_add_u32 s18, s18, s19')
    S(f'v_add_u32 v{oT}, s18, v{T+3}')
    S(f'v_mov_b32 v{T+4}, 0x40000000'); S(f'v_cmp_eq_u32 vcc, 0, v{T+2}')
    S(f'v_cndmask_b32 v{oT}, v{T+4}, v{oT}, vcc')
    if F:
        S('s_lshl_b32 s18, s15, 10'); S('s_lshl_b32 s19, s14, 3'); S('s_add_u32 s18, s18, s19'); S(f's_add_u32 s18, s18, {TAILX}')
        S(f'v_lshl_add_u32 v{oT}, v{T+1}, 4, s18')
        S('s_mov_b32 s30, -1'); S('s_mov_b32 s31, 0')
    S.wait_tag('Q')
    S(f'v_mov_b32 v{T+4}, 0x3f80')
    for b in range(2):
        S(f'v_cndmask_b32 v{Q+6*b+4}, v{T+4}, v{Q+6*b+4}, vcc')
        S(f'v_cndmask_b32 v{Q+6*b+5}, 0, v{Q+6*b+5}, vcc')
    S.wait_tag('K')
    S.wait(lgkm=0)
    if not F: stamp(S, 1)
    S('s_barrier')
    if not F: stamp(S, 2)
    def kreads(b, j):
        buf = j & 1
        off = (32*b + 32*j)*16
        return [f'ds_read_b128 {v(KO+6*buf,4)}, v{aKm} offset:{off}',
                f'ds_read_b64 {v(KO+6*buf+4,2)}, v{aKt} offset:{off}']
    def vreads(b, j, sg):
        buf = (2*j + sg) & 3
        off = (32*b + 32*j + 16*sg)*16
        return [f'ds_read_b64_tr_b16 {v(VO+4*buf+2*p,2)}, v{aV} offset:{off + 128*p}' for p in range(2)]
    for b in range(2):
        for x in kreads(b, 0): S(x)
        def maxops(j):
            L = []
            for k in range(8):
                if j == 0 and k == 0:
                    L.append(f'v_max_f32 v{vM}, v{sc(0,0)}, v{sc(0,1)}')
                else:
                    L.append(f'v_max3_f32 v{vM if k%2==0 else vL}, v{sc(j,2*k)}, v{sc(j,2*k+1)}, v{vM if k%2==0 else vL}' if not (j == 0 and k == 1)
                             else f'v_max_f32 v{vL}, v{sc(0,2)}, v{sc(0,3)}')
            return L
        for j in range(9):
            buf = j & 1
            cin = v(B0,16) if j == 0 else (v(B8,16) if j == 8 else '0')
            if j + 1 < 9:
                nxt = kreads(b, j + 1)
            else: nxt = []
            S(f'v_mfma_f32_32x32x16_bf16 {v(sc(j),16)}, {v(KO+6*buf,4)}, {v(Q+6*b,4)}, {cin}')
            for x in nxt: S(x)
            mo = maxops(j - 2) if j >= 2 else []
            for x in mo[:4]: S(x)
            S(f'v_mfma_f32_32x32x8_bf16 {v(sc(j),16)}, {v(KO+6*buf+4,2)}, {v(Q+6*b+4,2)}, {v(sc(j),16)}')
            for x in mo[4:]: S(x)
        if b == 0:
            if not MERGE: S.wait_tag('V')
            S('s_barrier')
        for x in vreads(b, 0, 0): S(x)
        for x in vreads(b, 0, 1): S(x)
        for x in maxops(7): S(x)
        for x in maxops(8): S(x)
        S(f'v_max_f32 v{vM}, v{vM}, v{vL}')
        S(f'v_mov_b32 v{vL}, v{vM}')
        S(f'v_permlane32_swap_b32 v{vM}, v{vL}')
        S(f'v_max_f32 v{vM}, v{vM}, v{vL}')
        if b == 0 and not F: stamp(S, 3)
        for j in range(9):
            mf = []
            for sg in range(2):
                cin = '0' if (j == 0 and sg == 0) else v(OA,16)
                mf.append(f'v_mfma_f32_32x32x16_bf16 {v(OA,16)}, {v(VO+4*((2*j+sg)&3),4)}, {v(sc(j,4*sg),4)}, {cin}')
            for sg in range(2):
                for r in range(8*sg, 8*sg + 8):
                    S(f'v_sub_f32 v{sc(j,r)}, v{sc(j,r)}, v{vM}')
                for r in range(8*sg, 8*sg + 8):
                    S(f'v_exp_f32 v{sc(j,r)}, v{sc(j,r)}')
                for k in range(4):
                    S(f'v_cvt_pk_bf16_f32 v{sc(j,4*sg+k)}, v{sc(j,8*sg+2*k)}, v{sc(j,8*sg+2*k+1)}')
                S(mf[sg])
                nj, nsg = (j, sg + 2 - 2) if False else ((2*j + sg + 2) >> 1, (2*j + sg + 2) & 1)
                if nj < 9:
                    for x in vreads(b, nj, nsg): S(x)
        S(f'v_rcp_f32 v{vL}, v{OA+12}')
        for r in range(12):
            S(f'v_mul_f32 v{OA+r}, v{OA+r}, v{vL}')
        for k in range(6):
            S(f'v_cvt_pk_bf16_f32 v{KO+k}, v{OA+2*k}, v{OA+2*k+1}')
        if F:
            if b == 0: S(f's_mov_b32 s34, {2*20*1024}')
            S(f'buffer_store_dwordx4 {v(KO,4)}, v{oM}, s[24:27], {"0" if b == 0 else "s34"} offen sc1')
            S('s_mov_b64 exec, s[30:31]')
            S(f'ds_write_b64 v{oT}, {v(KO+4,2)} offset:{512*b}')
            S('s_mov_b64 exec, -1')
            continue
        S(f'buffer_store_dwordx4 {v(KO,4)}, v{oM}, s[24:27], {"0" if b == 0 else "s34"} offen') if b == 0 else None
        if b == 0:
            S(f'buffer_store_dwordx2 {v(KO+4,2)}, v{oT}, s[24:27], 0 offen')
            S(f's_mov_b32 s34, {2*20*1024}')
            stamp(S, 4)
        else:
            S(f'buffer_store_dwordx4 {v(KO,4)}, v{oM}, s[24:27], s34 offen')
            S(f'buffer_store_dwordx2 {v(KO+4,2)}, v{oT}, s[24:27], s34 offen')
    if F:
        S('s_lshl_b32 s18, s11, 3'); S('s_lshl_b32 s19, s10, 1'); S('s_add_u32 s18, s18, s19')
        S(f'v_bfe_u32 v{T+3}, v0, 4, 1'); S(f'v_add_u32 v{T+3}, s18, v{T+3}'); S(f'v_mul_u32_u24 v{T+3}, {20*1024}, v{T+3}')
        S(f'v_and_b32 v{T+4}, 15, v0'); S(f'v_lshl_add_u32 v{T+3}, v{T+4}, 4, v{T+3}')
        S('s_lshr_b32 s18, s12, 2'); S('s_add_u32 s18, s18, 16'); S('s_lshl_b32 s18, s18, 10')
        S('s_and_b32 s19, s12, 3'); S('s_lshl_b32 s19, s19, 8'); S('s_add_u32 s18, s18, s19')
        S(f'v_add_u32 v{T+3}, s18, v{T+3}')
        S('s_lshl_b32 s19, s10, 9'); S(f's_add_u32 s19, s19, {TAILX}'); S(f'v_lshl_add_u32 v{T+4}, v0, 4, s19')
        S.wait(lgkm=0)
        F.st(S, 1)
        S('s_barrier')
        S('s_mov_b64 exec, s[30:31]')
        S(f'ds_read_b128 {v(KO,4)}, v{T+4}')
        S(f'buffer_store_dwordx4 {v(KO,4)}, v{T+3}, s[24:27], 0 offen sc1')
        S('s_mov_b64 exec, -1')
        return
    stamp(S, 5)
    stamp_flush(S, 6, 10, 0, vtmp=(7, 8), kern_idx=1)

if __name__ == '__main__':
    A = Asm()
    A.raw(f'; @launch kernel=phB_kernel grid=(256,1,1) block=(256,1,1) lds={LDS_B}')
    A.raw('.amdgcn_target "amdgcn-amd-amdhsa--gfx950"')
    gen(A)
    open('b.s','w').write(A.text())
```

```python
import os
ESM = os.environ.get('ESM', '')
from common import *

CFG = {'C': dict(NSTEP=20, SPS=4, NS=5, DB=8), 'E': dict(NSTEP=54, SPS=3, NS=6, DB=6)}
def lds_bytes(mode): c = CFG[mode]; return c['NS']*c['SPS']*5120
def threads(mode): return 256 + 64*CFG[mode]['SPS']

def gen(A, name='phC_kernel', mode='C', stamps=False, rot=int(os.environ.get('ROT','0'))):
    S = Sched(A); S.name = name; S.stamps = stamps
    kernel_header(A, name)
    S(f's_load_dwordx2 s[8:9], s[0:1], {KA_WS}')
    if mode == 'C': S(f's_load_dwordx2 s[4:5], s[0:1], {KA_X}')
    else: S(f's_load_dwordx2 s[4:5], s[0:1], {KA_OUT}')
    prologue_guard(S, 256)
    S('v_lshrrev_b32 v1, 6, v0')
    S('s_and_b32 s13, s2, 7'); S('s_lshr_b32 s14, s2, 3')
    S('v_readfirstlane_b32 s10, v1')
    S('v_and_b32 v0, 63, v0')
    tilemap(S)
    c = CFG[mode]; NST = c['NSTEP'] // c['SPS']
    if rot:
        S('s_and_b32 s16, s12, 3'); S('s_lshl_b32 s16, s16, 1'); S('s_add_u32 s16, s16, s11'); S('s_and_b32 s16, s16, 7')
        S(f's_mul_i32 s16, s16, {NST}'); S('s_lshr_b32 s44, s16, 3')
    else: S('s_mov_b32 s44, 0')
    stamp(S, 0)
    S('s_cmp_ge_u32 s10, 4')
    S(f's_cbranch_scc1 L_prod_{name}')
    consumer(S, mode)
    S.label(f'L_prod_{name}')
    S.hist = []; S.lds = []; S.vm = []; S.smem_pending = [('s', 8), ('s', 9), ('s', 4), ('s', 5)]
    producer(S, mode)
    S.label(f'L_exit_{name}')
    S('s_endpgm')
    kernel_desc(A, name, 128, 102)

def tilemap(S):
    S('s_and_b32 s11, s13, 3'); S('s_lshl_b32 s11, s11, 3'); S('s_and_b32 s15, s14, 7'); S('s_add_u32 s11, s11, s15')
    S('s_lshr_b32 s12, s13, 2'); S('s_lshl_b32 s12, s12, 2'); S('s_lshr_b32 s15, s14, 3'); S('s_add_u32 s12, s12, s15')

def producer(S, mode, F=None):
    c = CFG[mode]; NSTEP, SPS, NS = c['NSTEP'], c['SPS'], c['NS']; NST = NSTEP // SPS
    STG = SPS*5120
    S('s_sub_u32 s19, s10, 4')
    S('v_lshlrev_b32 v2, 4, v0')
    S(f's_mul_i32 s16, s12, {NSTEP}'); S('s_add_u32 s16, s16, s19'); S('s_mul_i32 s16, s16, 5120')
    S(f's_mul_i32 s17, s44, {STG}'); S('s_add_u32 s17, s17, s16')
    S(f's_add_u32 s26, s16, {NST*STG}')
    S(f's_mul_i32 s28, s19, 5120')
    so = F.e_slot if (F and mode == 'E') else (lambda sl: sl*STG)
    S('s_waitcnt lgkmcnt(0)')
    if mode == 'C': srd_off(S, 20, 8, WOF_OFF, WOF_SZ)
    else: srd_off(S, 20, 8, WDF_OFF, WDF_SZ)
    def issue(t):
        slot = t % NS
        S(f's_add_u32 m0, s28, {so(slot)}', tag=t)
        for f in range(4):
            S(f'buffer_load_dwordx4 v2, s[20:23], s17 offen' + (f' offset:{f*1024}' if f else '') + ' lds', tag=t)
        S(f's_add_u32 m0, s28, {so(slot) + 4096}'); S('s_add_u32 s18, s17, 4096')
        S(f'buffer_load_dwordx4 v2, s[20:23], s18 offen lds', tag=t)
        S(f's_add_u32 s17, s17, {STG}'); S('s_cmp_eq_u32 s17, s26'); S('s_cselect_b32 s17, s16, s17')
    npre = min(NS, NST)
    if F and (mode == 'E' or F.withB):
        n0 = int(os.environ.get('PRE' + mode, '6' if mode == 'E' else '2'))
        for t in range(n0): issue(t)
        if mode == 'E': F.e_mid()
        else: F.c_mid()
        S.wait_tag(0)
        S('s_barrier')
        for t in range(n0, npre): issue(t)
    else:
        issue(0); issue(1)
        S.wait_tag(0)
        S('s_barrier')
        for t in range(2, npre): issue(t)
    for t in range(NST):
        if t + 1 < NST: S.wait_tag(t + 1)
        if F and mode == 'C': F.c_step(t)
        S('s_barrier')
        if t + NS < NST: issue(t + NS)
    if F and mode == 'C': return
    if not F: stamp(S, 1)
    if F: stamp_flush(S, 10, 10, 0, kern_idx=F.kidx)
    else: stamp_flush(S, 2, 10, 0, kern_idx=2 if mode == 'C' else 4)
    S('s_endpgm')

def consumer(S, mode, F=None):
    C_ = mode == 'C'
    c = CFG[mode]; NSTEP, SPS, NS, DB = c['NSTEP'], c['SPS'], c['NS'], c['DB']; NST = NSTEP // SPS
    STG = SPS*5120
    aW, vB, vRes, vHF, vSt = 1, 2, 3, 4, 5
    vH4 = 26; XS = 72
    T = 6
    RESR = 16
    ACC = 28
    OPA = 48
    RING = 88
    so = F.e_slot if (F and mode == 'E') else (lambda sl: sl*STG)
    if F and mode == 'E': RESR = F.KEEP
    acc = lambda nb: ACC + nb*4
    opa = lambda b, nb: OPA + b*20 + nb*4
    opb = lambda sg: RING + (sg % DB)*4
    S(f'v_lshlrev_b32 v{aW}, 4, v0')
    S('s_lshl_b32 s16, s11, 2'); S('s_add_u32 s16, s16, s10'); S(f's_mul_i32 s16, s16, {NSTEP*1024}')
    S(f'v_add_u32 v{vB}, s16, v{aW}')
    S(f's_mul_i32 s17, s44, {SPS*1024}')
    S('s_waitcnt lgkmcnt(0)')
    if C_: srd_off(S, 24, 8, OF_OFF, OF_SZ)
    else: srd_off(S, 24, 8, HP_OFF, HP_SZ)
    def bload(sg):
        kk = sg % SPS
        S(f'buffer_load_dwordx4 {v(opb(sg),4)}, v{vB}, s[24:27], s17 offen' + (f' offset:{kk*1024}' if kk else ''))
        if kk == SPS - 1:
            S(f's_add_u32 s17, s17, {SPS*1024}'); S(f's_cmp_eq_u32 s17, {NSTEP*1024}'); S('s_cselect_b32 s17, 0, s17')
    if F and mode == 'E': F.e_pre()
    if F and mode == 'C': F.c_pre()
    for sg in range(min(DB, NSTEP)): bload(sg)
    S(f'v_and_b32 v{T+1}, 15, v0')
    S(f'v_lshrrev_b32 v{T+2}, 4, v0')
    S('s_lshl_b32 s16, s11, 6'); S('s_lshl_b32 s18, s10, 4'); S('s_add_u32 s16, s16, s18')
    S(f'v_add_u32 v{T+3}, s16, v{T+1}')
    S(f'v_mul_u32_u24 v{vRes}, 1280, v{T+3}'); S('s_mul_i32 s18, s12, 160')
    S(f'v_lshl_add_u32 v{vRes}, v{T+2}, 3, v{vRes}'); S(f'v_add_u32 v{vRes}, s18, v{vRes}')
    S(f'v_lshrrev_b32 v{T+4}, 5, v{T+3}'); S(f'v_mul_u32_u24 v{T+4}, {40*1024}, v{T+4}')
    S(f'v_and_b32 v{T+5}, 31, v{T+3}'); S(f'v_lshl_add_u32 v{T+4}, v{T+5}, 4, v{T+4}')
    S(f'v_lshrrev_b32 v{T+5}, 1, v{T+2}'); S(f'v_lshl_add_u32 v{T+4}, v{T+5}, 9, v{T+4}')
    S(f'v_and_b32 v{T+5}, 1, v{T+2}'); S(f'v_lshl_add_u32 v{T+4}, v{T+5}, {10 if C_ else 3}, v{T+4}')
    S(f's_mul_i32 s18, s12, {5*1024}'); S(f'v_add_u32 v{vHF}, s18, v{T+4}')
    if C_:
        S(f'v_mov_b32 v{T+4}, 0x40000000'); S(f'v_cmp_eq_u32 vcc, 0, v{T+5}'); S(f'v_cndmask_b32 v{vH4}, v{T+4}, v{vHF}, vcc')
        S('s_lshl_b32 s18, s11, 2'); S('s_add_u32 s18, s18, s10'); S('s_lshl_b32 s18, s18, 3'); S('s_add_u32 s18, s18, s12'); S('s_lshl_b32 s18, s18, 7')
        S(f'v_lshl_add_u32 v{vSt}, v{T+1}, 3, s18')
        S(f'v_cmp_eq_u32 vcc, 0, v{T+2}'); S(f'v_cndmask_b32 v{vSt}, v{T+4}, v{vSt}, vcc')
        srd(S, 32, 4, 2048*1280)
        srd_off(S, 40, 8, ST_OFF, ST_SZ)
    else:
        srd(S, 32, 6 if F else 4, 2048*1280)
    if C_ or not F: srd_off(S, 36, 8, HF_OFF, HF_SZ)
    def areads(sg):
        t, kk = divmod(sg, SPS)
        off = so(t % NS) + kk*5120
        return [f'ds_read_b128 {v(opa(sg&1,nb),4)}, v{[aW, T+9, T+8][(off + nb*1024) >> 16]} offset:{(off + nb*1024) & 0xffff}' for nb in range(5)]
    S(f'v_add_u32 v{T+9}, 65536, v{aW}')
    if F and mode == 'E': S(f'v_add_u32 v{T+8}, 131072, v{aW}')
    if not F: stamp(S, 1)
    S('s_barrier')
    if F: F.st(S, 3 if C_ else 11)
    else: stamp(S, 2)
    for x in areads(0): S(x)
    for sg in range(NSTEP):
        if sg % SPS == SPS - 1:
            S.wait(lgkm=0)
            S('s_barrier')
        fl = areads(sg + 1) if sg + 1 < NSTEP else []
        for nb in range(5):
            S(f'v_mfma_f32_16x16x32_bf16 {v(acc(nb),4)}, {v(opa(sg&1,nb),4)}, {v(opb(sg),4)}, {v(acc(nb),4) if sg else "0"}')
            if fl: S(fl[nb])
        if sg + DB < NSTEP: bload(sg + DB)
        if sg == NSTEP - 4:
            for nb in range(5):
                if C_: S(f'buffer_load_dwordx2 {v(RESR+2*nb,2)}, v{vRes}, s[32:35], 0 offen offset:{32*nb}')
                elif not F:
                    S(f's_mov_b32 s30, {1024*nb}')
                    S(f'buffer_load_dwordx2 {v(RESR+2*nb,2)}, v{vHF}, s[36:39], s30 offen')
    if F: F.st(S, 4 if C_ else 12)
    else: stamp(S, 3)
    U = OPA
    PK = OPA + 12
    if F and C_: PK = F.KEEP
    sm = ' sc1' if (F and C_) else ''
    sum_, ssq = U + 8, U + 9
    for nb in range(5):
        a_ = acc(nb)
        S(f'v_cvt_pk_bf16_f32 v{U}, v{a_}, v{a_+1}'); S(f'v_cvt_pk_bf16_f32 v{U+1}, v{a_+2}, v{a_+3}')
        for k in range(2):
            S(f'v_lshlrev_b32 v{a_+2*k}, 16, v{U+k}'); S(f'v_and_b32 v{a_+2*k+1}, 0xffff0000, v{U+k}')
            S(f'v_lshlrev_b32 v{U+2+2*k}, 16, v{RESR+2*nb+k}'); S(f'v_and_b32 v{U+3+2*k}, 0xffff0000, v{RESR+2*nb+k}')
        for h in range(2):
            S(f'v_pk_add_f32 {v(a_+2*h,2)}, {v(a_+2*h,2)}, {v(U+2+2*h,2)}')
        S(f'v_cvt_pk_bf16_f32 v{PK+2*nb}, v{a_}, v{a_+1}'); S(f'v_cvt_pk_bf16_f32 v{PK+2*nb+1}, v{a_+2}, v{a_+3}')
        if C_:
            if nb in (1, 3, 4):
                X = XS + 4*(nb >> 1); a0 = PK + 2*(nb - 1 if nb < 4 else nb); b0 = PK + 2*nb
                for k in range(2): S(f'v_mov_b32 v{X+k}, v{a0+k}'); S(f'v_mov_b32 v{X+2+k}, v{b0+k}')
                for k in range(2): S(f'v_permlane16_swap_b32 v{X+k}, v{X+2+k}')
                S(f's_mov_b32 s30, {1024*(nb & ~1)}')
                S(f'buffer_store_dwordx4 {v(X,4)}, v{vHF if nb < 4 else vH4}, s[36:39], s30 offen' + sm)
            for k in range(2):
                S(f'v_lshlrev_b32 v{a_+2*k}, 16, v{PK+2*nb+k}'); S(f'v_and_b32 v{a_+2*k+1}, 0xffff0000, v{PK+2*nb+k}')
            for k in range(4):
                if nb == 0 and k == 0:
                    S(f'v_mov_b32 v{sum_}, v{a_}'); S(f'v_mul_f32 v{ssq}, v{a_}, v{a_}')
                else:
                    S(f'v_add_f32 v{sum_}, v{sum_}, v{a_+k}'); S(f'v_fmac_f32 v{ssq}, v{a_+k}, v{a_+k}')
        else:
            S(f'buffer_store_dwordx2 {v(PK+2*nb,2)}, v{vRes}, s[32:35], 0 offen offset:{32*nb}' + ESM)
    if C_:
        for x in (sum_, ssq):
            S(f'v_mov_b32 v{U}, v{x}'); S(f'v_permlane32_swap_b32 v{x}, v{U}'); S(f'v_add_f32 v{x}, v{x}, v{U}')
            S(f'v_mov_b32 v{U}, v{x}'); S(f'v_permlane16_swap_b32 v{x}, v{U}'); S(f'v_add_f32 v{x}, v{x}, v{U}')
        S(f'buffer_store_dwordx2 {v(sum_,2)}, v{vSt}, s[40:43], 0 offen' + sm)
    if F and C_: return
    if F:
        stamp_flush(S, 13, 10, 0, kern_idx=F.kidx); S('s_endpgm'); return
    stamp(S, 4)
    stamp_flush(S, 5, 10, 0, vtmp=(1, 2), kern_idx=2 if C_ else 4)
    S('s_endpgm')

if __name__ == '__main__':
    for mode in 'CE':
        A = Asm()
        A.raw(f'; @launch kernel=ph{mode}_kernel grid=(256,1,1) block=({threads(mode)},1,1) lds={lds_bytes(mode)}')
        A.raw('.amdgcn_target "amdgcn-amd-amdhsa--gfx950"')
        gen(A, name=f'ph{mode}_kernel', mode=mode)
        open(f't/{mode}.s','w').write(A.text())
```

```python
import os
from common import *
import phaseCE1 as CE, phaseD2 as D, phaseB as B

LDS_F = D.LDS_D
THREADS_F = 512
NOSYNC = os.environ.get('NOSYNC', '')

class Fz:
    KEEP = 200
    kidx = 2
    def __init__(self, S, name, withB): self.S = S; self.name = name; self.withB = withB
    def st(self, S, i): stamp(S, i)
    def e_slot(self, sl): return sl*15360 if sl < 5 else 6*D.STG
    def sync_addr(self, own, grp, base):
        S = self.S
        S(f's_mul_i32 s52, s{grp}, {FGRP}'); S(f's_mul_i32 s53, s{own}, {FSTR}'); S('s_add_u32 s52, s52, s53')
        if base: S(f's_add_u32 s52, s52, {base}')
        S('v_mov_b32 v20, s52')
        S(f's_mul_i32 s52, s{grp+1}, {FGRP}')
        if base: S(f's_add_u32 s52, s52, {base}')
        S('v_and_b32 v22, 15, v0'); S(f'v_mul_u32_u24 v22, {FSTR}, v22'); S('v_add_u32 v22, s52, v22')
    def sync(self, lab, si):
        S = self.S
        stamp(S, si)
        set_flag(S, 20, 21, 56)
        poll(S, lab, 22, 21, 56)
        stamp(S, si + 1)
    def b_help_pre(self):
        S = self.S
        srd_off(S, 56, 8, FL_OFF, FL_SZ); S('s_mov_b32 s54, 1')
    def b_help_post(self):
        S = self.S
        stamp(S, 1)
        self.rstores = [I_dummy]
        S.vm = [I_dummy]
        S('s_barrier')
    def c_mid(self):
        S = self.S; nm = self.name
        S('s_lshr_b32 s63, s11, 1')
        self.sync_addr(61, 62, FLO)
        S(f'v_add_u32 v23, {FLR - FLO}, v22')
        S(f's_mul_i32 s52, s63, {FSTR}'); S(f's_add_u32 s52, s52, {FLR}')
        S('v_and_b32 v24, 15, v0'); S(f'v_mul_u32_u24 v24, {FGRP}, v24'); S('v_add_u32 v24, s52, v24')
        S.wait(vm=len(S.vm) - 1)
        stamp(S, 2)
        S('s_barrier')
        S('s_cmp_lg_u32 s10, 7'); S(f's_cbranch_scc1 L_nso_{nm}')
        vm = list(S.vm)
        self.sync(f'L_po_{nm}', 3)
        S('s_and_b32 s52, s11, 1'); S('s_or_b32 s52, s52, s12'); S('s_cmp_lg_u32 s52, 0'); S(f's_cbranch_scc1 L_nso_{nm}')
        S('v_mov_b32 v21, s54'); S('s_mov_b64 exec, 0xffff')
        S('buffer_store_dword v21, v24, s[56:59], 0 offen sc1')
        S('s_mov_b64 exec, -1')
        S.label(f'L_nso_{nm}')
        S.vm = vm
        S('s_barrier')
    def c_step(self, t):
        if not self.withB: return
        S = self.S; nm = self.name
        last = CE.CFG['C']['NSTEP'] // CE.CFG['C']['SPS'] - 1
        if t == last - 1:
            S('s_cmp_lg_u32 s10, 7'); S(f's_cbranch_scc1 L_nr1_{nm}')
            vm = list(S.vm)
            S('buffer_load_dword v25, v23, s[56:59], 0 offen sc1')
            S.label(f'L_nr1_{nm}')
            S.vm = vm
        if t == last:
            S('s_cmp_lg_u32 s10, 7'); S(f's_cbranch_scc1 L_nr2_{nm}')
            vm = list(S.vm)
            S('s_waitcnt vmcnt(0)')
            S('v_cmp_ne_u32 vcc, s54, v25')
            S(f's_cbranch_vccz L_nr2_{nm}')
            poll(S, f'L_rf_{nm}', 23, 25, 56)
            S.label(f'L_nr2_{nm}')
            S.vm = vm
    def c_pre(self):
        S = self.S
        if not self.withB: return
        S.wait(vm=0)
        stamp(S, 2)
        S('s_barrier'); S('s_barrier')
    def d_mid(self, which):
        S = self.S
        if which == 'late':
            S('s_barrier'); S('s_barrier'); return
        S('s_mov_b32 s62, s60'); S('s_mov_b32 s63, s11')
        self.sync_addr(61, 62, FLH)
        S('s_barrier')
        self.sync(f'L_ph_{self.name}', 5)
        S('s_barrier')
    def d_tail(self, which):
        S = self.S
        if which == 'early':
            S('s_mov_b32 s62, s11'); CE.tilemap(S); S('s_lshr_b32 s63, s11, 1')
            self.sync_addr(55, 62, FLP)
            S('s_barrier')
            self.sync(f'L_pp_{self.name}', 8)
            S('s_barrier')
            stamp_flush(S, 10, 10, 0, kern_idx=self.kidx)
            S('s_endpgm'); return
        CE.tilemap(S); S('s_mov_b32 s44, 0')
        CE.producer(S, 'E', self)
    def e_mid(self):
        self.S('s_barrier'); self.S('s_barrier')
    def d_pre(self):
        S = self.S
        S.wait(vm=0)
        stamp(S, 5)
        S('s_barrier'); S('s_barrier')
    def e_pre(self):
        S = self.S
        stamp(S, 8)
        S.wait(vm=0)
        stamp(S, 9)
        S('s_barrier'); S('s_barrier')
        stamp(S, 10)

from sched import I
I_dummy = I('buffer_store_dword v255, v255, s[56:59], 0 offen')

def ids(S):
    S('s_and_b32 s13, s2, 7'); S('s_lshr_b32 s14, s2, 3')

def gen(A, name='phF_kernel', stamps=False, withB=False):
    S = Sched(A); S.name = name; S.stamps = stamps; S.sbase = 64
    F = Fz(S, name, withB)
    kernel_header(A, name)
    S(f's_load_dwordx2 s[8:9], s[0:1], {KA_WS}')
    S(f's_load_dwordx2 s[4:5], s[0:1], {KA_X}')
    S(f's_load_dwordx2 s[6:7], s[0:1], {KA_OUT}')
    prologue_guard(S, 256)
    S('v_lshrrev_b32 v1, 6, v0')
    ids(S)
    S('v_readfirstlane_b32 s10, v1')
    S('v_and_b32 v0, 63, v0')
    if withB: B.tilemap(S)
    else: CE.tilemap(S); S('s_mov_b32 s44, 0')
    stamp(S, 0)
    S('s_cmp_ge_u32 s10, 4')
    S(f's_cbranch_scc1 L_prod_{name}')
    if withB:
        B.attention(S, name, F)
        ids(S); CE.tilemap(S); S('s_mov_b32 s44, 0')
    CE.consumer(S, 'C', F)
    D.tilemap(S)
    D.consumer(S, name, F)
    CE.tilemap(S); S('s_mov_b32 s44, 0')
    CE.consumer(S, 'E', F)
    S.label(f'L_prod_{name}')
    S.hist = []; S.lds = []; S.vm = []; S.smem_pending = [('s', i) for i in range(4, 10)]
    if withB:
        B.helper(S, name, F)
        F.b_help_post()
        ids(S); B.tilemap(S); S('s_mov_b32 s62, s11'); S('s_mov_b32 s61, s12')
        ids(S); CE.tilemap(S); S('s_mov_b32 s44, 0')
    else:
        S('s_mov_b32 s54, 1')
    CE.producer(S, 'C', F)
    if not withB: srd_off(S, 56, 8, FL_OFF, FL_SZ)
    S('s_lshr_b32 s60, s11, 1')
    S('s_and_b32 s61, s11, 1'); S('s_lshl_b32 s61, s61, 3'); S('s_add_u32 s61, s61, s12')
    D.tilemap(S); S('s_mov_b32 s55, s33')
    D.producer(S, name, F)
    S.label(f'L_exit_{name}')
    S('s_endpgm')
    kernel_desc(A, name, 256, 102)
```

```python
import os
from common import *
RNT = os.environ.get('RNT', ' nt')

LDS_R = 4*16384

def div5(S, d, src, tmp):
    S(f's_mul_i32 s{d}, s{src}, 52429'); S(f's_lshr_b32 s{d}, s{d}, 18')
    S(f's_mul_i32 s{tmp}, s{d}, 5'); S(f's_sub_u32 s{tmp}, s{src}, s{tmp}')

def gen(A, name='phR_kernel', stamps=False):
    S = Sched(A); S.name = name; S.stamps = stamps
    kernel_header(A, name)
    S(f's_load_dwordx2 s[8:9], s[0:1], {KA_WS}')
    prologue_guard(S, 256)
    S('v_lshrrev_b32 v1, 6, v0')
    S('v_readfirstlane_b32 s10, v1')
    S('v_and_b32 v0, 63, v0')
    stamp(S, 0)
    repack(S, name, 10, 0)
    stamp_flush(S, 1, 10, 0, kern_idx=5)
    S.label(f'L_exit_{name}')
    S('s_endpgm')
    kernel_desc(A, name, 128, 102)

def repack(S, name, sw, lds_base, T=1, after_issue=None, smod="", setup=None, njobs=640):
    if setup: setup()
    else:
        S(f's_lshl_b32 s11, s{sw}, 8'); S('s_add_u32 s11, s11, s2')
        S(f's_lshl_b32 s12, s{sw}, 14')
        if lds_base: S(f's_add_u32 s12, s12, {lds_base}')
    S(f's_cmp_ge_u32 s11, {njobs}'); S(f's_cbranch_scc1 L_rnone_{name}')
    S('s_cmp_ge_u32 s11, 270'); S(f's_cbranch_scc1 L_rdo_{name}')
    S('s_cmp_ge_u32 s11, 135'); S('s_cselect_b32 s13, 1, 0')
    S('s_mul_i32 s14, s13, 135'); S('s_sub_u32 s14, s11, s14')
    div5(S, 15, 14, 16)
    S('s_lshl_b32 s17, s13, 3'); S(f's_add_u32 s17, s17, {KA_WG}')
    S('s_load_dwordx2 s[4:5], s[0:1], s17')
    vA = [T, T+1]; t = T + 2
    S(f'v_lshrrev_b32 v{t}, 3, v0')
    S(f'v_and_b32 v{t+1}, 2, v{t}'); S(f'v_and_b32 v{t+2}, 7, v0'); S(f'v_xor_b32 v{t+1}, v{t+1}, v{t+2}')
    S(f'v_mul_u32_u24 v{t}, 3456, v{t}')
    S(f'v_lshl_add_u32 v{vA[0]}, v{t+1}, 4, v{t}')
    S('s_lshl_b32 s18, s15, 7'); S(f'v_add_u32 v{vA[0]}, s18, v{vA[0]}')
    S(f'v_xor_b32 v{vA[1]}, 64, v{vA[0]}')
    S('s_waitcnt lgkmcnt(0)')
    srd(S, 20, 4, 640*3456)
    S(f's_mul_i32 s19, s16, {128*3456}')
    for i in range(16):
        S(f's_add_u32 m0, s12, {i*1024}')
        S(f's_add_u32 s18, s19, {8*i*3456}')
        S(f'buffer_load_dwordx4 v{vA[i&1]}, s[20:23], s18 offen{RNT} lds', tag='p')
    if after_issue: after_issue(16)
    aT = T + 2
    t = T + 6
    S(f'v_lshrrev_b32 v{t}, 4, v0')
    S(f'v_lshrrev_b32 v{t+1}, 2, v0'); S(f'v_and_b32 v{t+1}, 3, v{t+1}')
    S(f'v_and_b32 v{t+2}, 3, v0')
    S(f'v_lshl_add_u32 v{t+3}, v{t}, 3, v{t+1}'); S(f'v_lshlrev_b32 v{t+3}, 7, v{t+3}')
    S(f'v_and_b32 v{t+4}, 1, v{t}'); S(f'v_lshlrev_b32 v{t+4}, 2, v{t+4}')
    S(f'v_and_b32 v{t+5}, 2, v{t+1}'); S(f'v_or_b32 v{t+4}, v{t+4}, v{t+5}')
    S(f'v_lshrrev_b32 v{t+5}, 1, v{t+2}'); S(f'v_xor_b32 v{t+4}, v{t+4}, v{t+5}')
    S(f'v_lshl_add_u32 v{t+3}, v{t+4}, 4, v{t+3}')
    S(f'v_and_b32 v{t+5}, 1, v{t+2}'); S(f'v_lshl_add_u32 v{t+3}, v{t+5}, 3, v{t+3}')
    S(f'v_add_u32 v{aT}, s12, v{t+3}')
    for f in range(1, 4): S(f'v_xor_b32 v{aT+f}, {f<<5}, v{aT}')
    vS = T + 6
    S(f'v_lshrrev_b32 v{t+1}, 1, v{t}'); S(f'v_lshlrev_b32 v{t+1}, 10, v{t+1}')
    S(f'v_and_b32 v{t+2}, 1, v{t}'); S(f'v_lshl_add_u32 v{t+1}, v{t+2}, 8, v{t+1}')
    S(f'v_and_b32 v{t+2}, 15, v0'); S(f'v_lshl_add_u32 v{t+1}, v{t+2}, 4, v{t+1}')
    S(f'v_lshlrev_b32 v{t+3}, 4, v{t}'); S(f'v_mov_b32 v{t+4}, 0x40000000')
    S(f'v_cmp_eq_u32 vcc, 0, v{t+2}'); S(f'v_cndmask_b32 v{t+3}, v{t+4}, v{t+3}, vcc')
    S(f'v_mov_b32 v{vS}, v{t+1}'); vC = vS + 1; S(f'v_mov_b32 v{vC}, v{t+3}')
    srd_off(S, 24, 8, WGU_OFF, WGU_SZ)
    srd_off(S, 28, 8, CS_OFF, CS_SZ)
    S('s_mul_i32 s18, s15, 160'); S('s_lshl_b32 s19, s16, 3'); S('s_add_u32 s18, s18, s19'); S('s_lshl_b32 s18, s18, 10')
    S('s_lshl_b32 s19, s13, 9'); S('s_add_u32 s33, s18, s19')
    ON = T + 9 + ((T + 9) & 1); FR = ON + 4; AC = FR + 16*4
    for k in range(4): S(f'v_mov_b32 v{ON+k}, 0x3f803f80')
    S.wait_tag('p')
    for kap in range(4):
        for f in range(4):
            fr = FR + 4*((4*kap + f) & 15)
            for p in range(2):
                S(f'ds_read_b64_tr_b16 {v(fr+2*p,2)}, v{aT+f} offset:{kap*4096 + p*512}')
    for kap in range(4):
        for f in range(4):
            fr = FR + 4*((4*kap + f) & 15)
            S(f's_add_u32 s18, s33, {(f*40 + 2*kap)*1024}')
            S(f'buffer_store_dwordx4 {v(fr,4)}, v{vS}, s[24:27], s18 offen{smod}')
            S(f'v_mfma_f32_16x16x32_bf16 {v(AC+4*f,4)}, {v(fr,4)}, {v(ON,4)}, {v(AC+4*f,4) if kap else "0"}')
    S('s_mul_i32 s18, s16, 3456'); S('s_mul_i32 s19, s13, 1728'); S('s_add_u32 s18, s18, s19')
    S('s_lshl_b32 s19, s15, 6'); S('s_add_u32 s18, s18, s19'); S('s_lshl_b32 s18, s18, 2')
    for f in range(4):
        S(f'buffer_store_dwordx4 {v(AC+4*f,4)}, v{vC}, s[28:31], s18 offen offset:{64*f}{smod}')
    S(f's_branch L_rdone_{name}')
    S.label(f'L_rdo_{name}')
    S.hist = []; S.lds = []; S.vm = []
    S('s_cmp_ge_u32 s11, 540'); S('s_cselect_b32 s13, 1, 0')
    S('s_mul_i32 s14, s13, 270'); S('s_add_u32 s14, s14, 270'); S('s_sub_u32 s14, s11, s14')
    div5(S, 15, 14, 16)
    S(f's_cmp_eq_u32 s13, 1'); S(f's_cselect_b32 s17, {KA_WO}, {KA_WD}') if False else None
    S(f's_mov_b32 s17, {KA_WD}'); S('s_cmp_eq_u32 s13, 1'); S(f's_cselect_b32 s17, {KA_WO}, s17')
    S('s_load_dwordx2 s[4:5], s[0:1], s17')
    S('s_lshl_b32 s34, s15, 5'); S('s_mov_b32 s35, 16'); S('s_mov_b32 s36, 8'); S('s_mov_b32 s37, 4')
    S('s_cmp_eq_u32 s13, 0'); S(f's_cbranch_scc1 L_rrow_{name}')
    S('s_mul_i32 s34, s15, 40'); S('s_mov_b32 s35, 24'); S('s_mov_b32 s36, 4'); S('s_mov_b32 s37, 8')
    S('s_cmp_lt_u32 s15, 16'); S(f's_cbranch_scc1 L_rrow_{name}')
    S('s_sub_u32 s34, s15, 16'); S('s_mul_i32 s34, s34, 160'); S('s_add_u32 s34, s34, 16')
    S('s_mov_b32 s35, 80'); S('s_mov_b32 s36, 40'); S('s_mov_b32 s37, 4')
    S.label(f'L_rrow_{name}')
    vA = [T, T+1]; t = T + 2
    S(f'v_lshrrev_b32 v{t}, 4, v0')
    S(f'v_lshlrev_b32 v{t+1}, 1, v{t}'); S(f'v_and_b32 v{t+2}, 15, v0'); S(f'v_xor_b32 v{t+1}, v{t+1}, v{t+2}')
    S(f'v_mul_u32_u24 v{t}, 1280, v{t}')
    S(f'v_lshl_add_u32 v{vA[0]}, v{t+1}, 4, v{t}')
    S('s_lshl_b32 s18, s16, 8'); S(f'v_add_u32 v{vA[0]}, s18, v{vA[0]}')
    S(f'v_xor_b32 v{vA[1]}, 128, v{vA[0]}')
    for k in (34, 35, 36, 37): S(f's_mul_i32 s{k}, s{k}, 1280')
    S('s_waitcnt lgkmcnt(0)')
    S('s_cmp_eq_u32 s13, 1'); S(f's_cselect_b32 s18, {640*1280}, {1728*1280}') if False else None
    S(f's_mov_b32 s18, {1728*1280}'); S('s_cmp_eq_u32 s13, 1'); S(f's_cselect_b32 s18, {640*1280}, s18')
    S('s_mov_b32 s20, s4'); S('s_and_b32 s21, s5, 0xffff'); S('s_mov_b32 s22, s18'); S('s_mov_b32 s23, 0x00020000')
    for i in range(8):
        S('s_mov_b32 s18, s34')
        if i >> 2: S('s_add_u32 s18, s18, s35')
        if (i >> 1) & 1: S('s_add_u32 s18, s18, s36')
        if i & 1: S('s_add_u32 s18, s18, s37')
        S(f's_add_u32 m0, s12, {i*1024}')
        S(f'buffer_load_dwordx4 v{vA[(i>>1)&1]}, s[20:23], s18 offen{RNT} lds', tag='p')
    if after_issue: after_issue(8)
    aT = T + 2; t = T + 10
    S(f'v_lshrrev_b32 v{t}, 4, v0')
    S(f'v_lshrrev_b32 v{t+1}, 2, v0'); S(f'v_and_b32 v{t+1}, 3, v{t+1}')
    S(f'v_and_b32 v{t+2}, 3, v0')
    S(f'v_lshl_add_u32 v{t+3}, v{t}, 3, v{t+1}'); S(f'v_lshlrev_b32 v{t+3}, 8, v{t+3}')
    S(f'v_and_b32 v{t+4}, 1, v{t}'); S(f'v_lshlrev_b32 v{t+4}, 3, v{t+4}')
    S(f'v_lshl_or_b32 v{t+4}, v{t+1}, 1, v{t+4}')
    S(f'v_lshrrev_b32 v{t+5}, 1, v{t+2}'); S(f'v_xor_b32 v{t+4}, v{t+4}, v{t+5}')
    S(f'v_lshl_add_u32 v{t+3}, v{t+4}, 4, v{t+3}')
    S(f'v_and_b32 v{t+5}, 1, v{t+2}'); S(f'v_lshl_add_u32 v{t+3}, v{t+5}, 3, v{t+3}')
    S(f'v_add_u32 v{aT}, s12, v{t+3}')
    for f in range(1, 8): S(f'v_xor_b32 v{aT+f}, {f<<5}, v{aT}')
    vS = t
    S(f'v_lshlrev_b32 v{vS}, 4, v0')
    S(f's_mov_b32 s18, {WDF_OFF}'); S('s_cmp_eq_u32 s13, 1'); S(f's_cselect_b32 s18, {WOF_OFF}, s18')
    S('s_add_u32 s24, s8, s18'); S('s_addc_u32 s25, s9, 0'); S('s_and_b32 s25, s25, 0xffff')
    S(f's_mov_b32 s26, {WDF_SZ}'); S('s_cmp_eq_u32 s13, 1'); S(f's_cselect_b32 s26, {WOF_SZ}, s26'); S('s_mov_b32 s27, 0x00020000')
    S('s_mov_b32 s33, 54'); S('s_cmp_eq_u32 s13, 1'); S('s_cselect_b32 s33, 20, s33')
    FR = T + 18 + ((T + 18) & 1)
    S.wait_tag('p')
    for f in range(8):
        for p in range(2):
            S(f'ds_read_b64_tr_b16 {v(FR+4*f+2*p,2)}, v{aT+f} offset:{p*1024}')
    for f in range(8):
        S(f's_lshl_b32 s34, s16, 3'); S(f's_add_u32 s34, s34, {f}')
        div5(S, 35, 34, 36)
        S('s_mul_i32 s35, s35, s33'); S('s_add_u32 s35, s35, s15'); S('s_mul_i32 s35, s35, 5'); S('s_add_u32 s35, s35, s36')
        S('s_lshl_b32 s35, s35, 10')
        S(f'buffer_store_dwordx4 {v(FR+4*f,4)}, v{vS}, s[24:27], s35 offen{smod}')
    S(f's_branch L_rdone_{name}')
    S.label(f'L_rnone_{name}')
    S.hist = []; S.lds = []; S.vm = []
    if after_issue: after_issue(0)
    S.label(f'L_rdone_{name}')

if __name__ == '__main__':
    A = Asm()
    A.raw(f'; @launch kernel=phR_kernel grid=(256,1,1) block=(256,1,1) lds={LDS_R}')
    A.raw('.amdgcn_target "amdgcn-amd-amdhsa--gfx950"')
    gen(A)
    open('r.s','w').write(A.text())
```

```python
import sys
sys.path.insert(0, 'gen')
from common import *
import os
import phaseA, phaseB, phaseR
import importlib
phaseCE = importlib.import_module('phaseCE' + os.environ.get('CVER', '1'))
phaseD = importlib.import_module('phaseD' + os.environ.get('DVER', '2'))
def build(path, parts):
    ref = open(f'cdna_kernels/{KN}.s.ref').read().split('\n')
    hdr = []
    for l in ref:
        if l.startswith('; Override launch'): break
        hdr.append(l)
    A = Asm()
    for l in hdr: A.raw(l)
    for (mod, nm, grid, blk, lds, kw) in parts:
        A.raw(f'; @launch kernel={nm} grid=({grid},1,1) block=({blk},1,1) lds={lds}')
    A.raw('.amdgcn_target "amdgcn-amd-amdhsa--gfx950"')
    done = set()
    for (mod, nm, grid, blk, lds, kw) in parts:
        if nm in done: continue
        done.add(nm); mod.gen(A, name=nm, **kw)
    open(path, 'w').write(A.text())
PARTS = [
    (phaseA, 'phA_kernel', 256, 512, phaseA.LDS_A, {}),
    (phaseB, 'phB_kernel', 256, phaseB.THREADS_B, phaseB.LDS_B, {}),
    (phaseCE, 'phC_kernel', 256, phaseCE.threads('C'), phaseCE.lds_bytes('C'), dict(mode='C')),
    (phaseD, 'phD_kernel', 256, 512, phaseD.LDS_D, {}),
    (phaseCE, 'phE_kernel', 256, phaseCE.threads('E'), phaseCE.lds_bytes('E'), dict(mode='E')),
]
FUSE = os.environ.get('FUSE', '3')
if FUSE == '1':
    import phaseF
    PARTS = PARTS[:2] + [(phaseF, 'phF_kernel', 256, phaseF.THREADS_F, phaseF.LDS_F, {})]
if FUSE == '2':
    import phaseF
    PARTS = PARTS[:1] + [(phaseF, 'phF_kernel', 256, phaseF.THREADS_F, phaseF.LDS_F, dict(withB=True))]
if FUSE == '3':
    import phaseF
    PARTS = [(phaseF, 'phF_kernel', 256, phaseF.THREADS_F, phaseF.LDS_F, dict(withB=True, withA=True))]
if not phaseB.MERGE: PARTS.insert(1, (phaseR, 'phR_kernel', 256, 256, phaseR.LDS_R, {}))
if __name__ == '__main__':
    build(f'cdna_kernels/{KN}.s', PARTS)
```

```python
from asmlib import *
from sched import Sched

KN = 'sequential_preLN__sliding_block__glu_gated_bilinear__prompt'
KA_X, KA_WQKV, KA_WO, KA_BX, KA_WG, KA_WU, KA_WD, KA_OUT, KA_DBG, KA_WS = 0, 8, 16, 24, 32, 40, 48, 56, 64, 72
QKV_OFF = 0;          QKV_SZ = 240*2048*16
OF_OFF  = 0x800000;   OF_SZ = 128*20*1024
HF_OFF  = 0xB00000;   HF_SZ = 64*40*1024
ST_OFF  = 0xE00000;   ST_SZ = 2048*8*8
CS_OFF  = 0xE40000;   CS_SZ = 5*3456*4
HP_OFF  = 0x1000000;  HP_SZ = 128*54*1024
WGU_OFF = 0x1800000; WGU_SZ = 108*40*1024
WDF_OFF = 0x1D00000; WDF_SZ = 8*54*5*1024
WOF_OFF = 0x2000000; WOF_SZ = 8*20*5*1024
import os
FSTR = int(os.environ.get('FSTR', '128'))
FGRP = max(128, 16*FSTR)
FL_OFF = 0x2100000; FL_SZ = 6*16*FGRP
FLH = 0; FLP = 16*FGRP; FLO = 32*FGRP; FLR = 48*FGRP; FLA = 64*FGRP; FLW = 80*FGRP
S_, D_, F_ = 2048, 640, 1728

def srd_off(S, d, base, off, nbytes):
    if off:
        S(f's_add_u32 s{d}, s{base}, {off}')
        S(f's_addc_u32 s{d+1}, s{base+1}, 0')
        S(f's_and_b32 s{d+1}, s{d+1}, 0xffff')
    else:
        S(f's_mov_b32 s{d}, s{base}')
        S(f's_and_b32 s{d+1}, s{base+1}, 0xffff')
    S(f's_mov_b32 s{d+2}, {nbytes}')
    S(f's_mov_b32 s{d+3}, 0x00020000')

class LdsAddr:
    def __init__(self, S, regs):
        self.S = S; self.regs = regs
    def finish(self):
        for k in range(1, len(self.regs)):
            self.S(f'v_add_u32 v{self.regs[k]}, {65536*k}, v{self.regs[0]}')
    def at(self, c):
        k = c >> 16
        return f'v{self.regs[k]} offset:{c & 0xffff}' if (c & 0xffff) else f'v{self.regs[k]}'

def bf16_round(S, dst, src):
    S(f'v_cvt_pk_bf16_f32 v{dst}, v{src}, v{src}')
    S(f'v_lshlrev_b32 v{dst}, 16, v{dst}')

def interleave(S, mfmas, fillers, start=0):
    n = len(mfmas); m = len(fillers); k = 0
    for i, mf in enumerate(mfmas):
        S(mf)
        upto = (m * (i + 1) + n - 1) // n
        while k < min(upto, m):
            f = fillers[k]; k += 1
            if callable(f): f()
            elif isinstance(f, tuple): S(f[0], tag=f[1])
            else: S(f)
    while k < m:
        f = fillers[k]; k += 1
        if callable(f): f()
        elif isinstance(f, tuple): S(f[0], tag=f[1])
        else: S(f)


def prologue_guard(S, nwg):
    S(f's_cmp_ge_u32 s2, {nwg}')
    S('s_cbranch_scc1 L_exit_%s' % S.name)

def stamp(S, idx):
    if not getattr(S, 'stamps', False): return
    S('s_memtime s[90:91]')
    if idx == 0: S('s_memrealtime s[88:89]')
    S('s_waitcnt lgkmcnt(0)')
    S(f's_mov_b32 s{getattr(S, "sbase", 92)+idx}, s90')
    if idx == 0: S('s_mov_b32 s99, s88')

def stamp_flush(S, n, wave_sgpr, slot_base, vtmp=(1,2), kern_idx=0):
    if not getattr(S, 'stamps', False): return
    S('s_load_dwordx2 s[84:85], s[0:1], 72')
    S('s_memrealtime s[88:89]')
    S('s_memtime s[90:91]')
    S('s_waitcnt lgkmcnt(0)')
    S('s_mov_b32 s100, s88')
    S('s_mov_b32 s101, s90')
    S(f's_add_u32 s84, s84, {0x8000000 + kern_idx*0x100000}')
    S('s_addc_u32 s85, s85, 0')
    S('s_and_b32 s85, s85, 0xffff')
    S('s_mov_b32 s86, 0x100000')
    S('s_mov_b32 s87, 0x00020000')
    S(f's_lshl_b32 s88, s2, 3')
    S(f's_add_u32 s88, s88, s{wave_sgpr}')
    S(f's_lshl_b32 s88, s88, 6')
    B = 64
    S(f'v_mov_b32 v{B+16}, s88')
    src = {i: getattr(S, 'sbase', 92) + i for i in range(n)}; src.update({13: 99, 14: 100, 15: 101})
    for i in range(16):
        S(f'v_mov_b32 v{B+i}, s{src[i]}' if i in src else f'v_mov_b32 v{B+i}, 0')
    S('s_mov_b64 exec, 1')
    for k in range(4):
        S(f'buffer_store_dwordx4 v[{B+4*k}:{B+4*k+3}], v{B+16}, s[84:87], 0 offen offset:{16*k}')
    S('s_mov_b64 exec, -1')

def poll(S, lab, vaddr, vtmp, srd_, cnt=30):
    S(f's_mov_b32 s{cnt}, 0')
    S.label(lab)
    S(f'buffer_load_dword v{vtmp}, v{vaddr}, s[{srd_}:{srd_+3}], 0 offen sc1')
    S.wait(vm=0)
    S(f'v_cmp_ne_u32 vcc, s54, v{vtmp}')
    S(f's_cbranch_vccz {lab}_ok')
    S(f's_add_u32 s{cnt}, s{cnt}, 1')
    S(f's_cmp_lt_u32 s{cnt}, 0x4000')
    S(f's_cbranch_scc1 {lab}')
    S.label(lab + '_ok')

def set_flag(S, vaddr, vtmp, srd_, mask='1'):
    S(f'v_mov_b32 v{vtmp}, s54')
    S(f's_mov_b64 exec, {mask}')
    S.nosmod = True
    S(f'buffer_store_dword v{vtmp}, v{vaddr}, s[{srd_}:{srd_+3}], 0 offen sc1')
    S('s_mov_b64 exec, -1')
```

```python
import os
from common import *
import phaseR
EARLY = int(os.environ.get('EARLY', '1'))
ENT = os.environ.get('ENT', '')
LNT = os.environ.get('LNT', '')

NS = 4
ACT_BASE = 0
W_BASE = 65536
X_BASE = 131072
LDS_A = 131072 + 2048
NST = 10
QSCALE = 20 ** -0.5 * 1.4426950408889634

def f32bits(x):
    import struct
    return struct.unpack('<I', struct.pack('<f', x))[0]

def gen(A, name='phA_kernel', stamps=False):
    S = Sched(A); S.name = name; S.stamps = stamps
    kernel_header(A, name)
    S(f's_load_dwordx2 s[4:5], s[0:1], {KA_X}')
    S(f's_load_dwordx2 s[6:7], s[0:1], {KA_WQKV}')
    S(f's_load_dwordx2 s[8:9], s[0:1], {KA_WS}')
    prologue_guard(S, 256)
    S('s_and_b32 s13, s2, 7'); S('s_lshr_b32 s14, s2, 3')
    S('s_lshr_b32 s12, s13, 1'); S('s_lshl_b32 s12, s12, 2'); S('s_lshr_b32 s15, s14, 3'); S('s_add_u32 s12, s12, s15')
    if not EARLY:
        S('s_cmp_ge_u32 s12, 15'); S(f's_cbranch_scc1 L_exit_{name}')
    S('v_lshrrev_b32 v1, 6, v0')
    S('s_and_b32 s11, s13, 1'); S('s_lshl_b32 s11, s11, 3'); S('s_and_b32 s15, s14, 7'); S('s_add_u32 s11, s11, s15')
    S('v_readfirstlane_b32 s10, v1')
    S('v_and_b32 v0, 63, v0')
    if EARLY:
        S('s_lshr_b32 s29, s14, 3')
        S('s_cmp_ge_u32 s12, 15'); S(f's_cbranch_scc1 L_idle_{name}')
    stamp(S, 0)
    S('s_cmp_ge_u32 s10, 4')
    S(f's_cbranch_scc1 L_prod_{name}')
    consumer(S, name)
    S.label(f'L_prod_{name}')
    S.hist = []; S.lds = []; S.vm = []; S.smem_pending = [('s', i) for i in range(4, 10)]
    if EARLY:
        producer2(S, name)
        S.label(f'L_idle_{name}')
        S.hist = []; S.lds = []; S.vm = []; S.smem_pending = [('s', i) for i in range(4, 10)]
        idle(S, name)
    else:
        producer(S, name)
    S.label(f'L_exit_{name}')
    S('s_endpgm')
    kernel_desc(A, name, 184, 102)

def tilemap(S):
    S('s_lshr_b32 s12, s13, 1'); S('s_lshl_b32 s12, s12, 2'); S('s_lshr_b32 s15, s14, 3'); S('s_add_u32 s12, s12, s15')
    S('s_and_b32 s11, s13, 1'); S('s_lshl_b32 s11, s11, 3'); S('s_and_b32 s15, s14, 7'); S('s_add_u32 s11, s11, s15')
    S('s_lshr_b32 s29, s14, 3')

def dma_stage(t, pw4k, vA, vW, sx, sw):
    slot = t % NS
    out = []
    for ii in range(4):
        out.append([f's_add_u32 m0, s{pw4k}, {ACT_BASE + slot*16384 + ii*1024}',
                    f's_mov_b32 s18, {ii*10240 + t*128}',
                    f'buffer_load_dwordx4 v{vA[ii&1]}, s[{sx}:{sx+3}], s18 offen lds'])
        out.append([f's_add_u32 m0, s{pw4k}, {W_BASE + slot*16384 + ii*1024}',
                    f's_mov_b32 s18, {(t*64 + 4*ii)*3840}',
                    f'buffer_load_dwordx4 v{vW[ii>>1]}, s[{sw}:{sw+3}], s18 offen lds'])
    return out

def producer(S, name):
    vA = [2, 3]; vW = [4, 5]; t0, t1, t2 = 6, 7, 8
    S('s_sub_u32 s19, s10, 4')
    S('s_lshl_b32 s28, s19, 12')
    S(f'v_lshrrev_b32 v{t0}, 3, v0')
    S(f'v_mul_u32_u24 v{t0}, 1280, v{t0}')
    S(f'v_lshrrev_b32 v{t1}, 4, v0')
    S(f'v_and_b32 v{t2}, 7, v0')
    S(f'v_xor_b32 v{t2}, v{t2}, v{t1}')
    S('s_lshl_b32 s16, s11, 2'); S('s_add_u32 s16, s16, s19'); S(f's_mul_i32 s16, s16, {32*1280}')
    S(f'v_add_u32 v{t0}, s16, v{t0}')
    S(f'v_lshl_add_u32 v{vA[0]}, v{t2}, 4, v{t0}')
    S(f'v_xor_b32 v{vA[1]}, 64, v{vA[0]}')
    S(f's_mul_i32 s16, s19, {16*3840}'); S('s_lshl_b32 s17, s12, 8'); S('s_add_u32 s16, s16, s17')
    S(f'v_mul_u32_u24 v{t0}, 3840, v{t1}')
    S(f'v_add_u32 v{t0}, s16, v{t0}')
    S(f'v_and_b32 v{t2}, 15, v0')
    S(f'v_lshlrev_b32 v{t1}, 1, v{t1}')
    S(f'v_xor_b32 v{t2}, v{t2}, v{t1}')
    S(f'v_lshl_add_u32 v{vW[0]}, v{t2}, 4, v{t0}')
    S(f'v_xor_b32 v{vW[1]}, 128, v{vW[0]}')
    srd(S, 20, 4, 2048*1280)
    srd(S, 24, 6, 640*3840)
    def issue(t):
        for g in dma_stage(t, 28, vA, vW, 20, 24):
            for x in g: S(x, tag=t)
    issue(0)
    stamp(S, 1)
    issue(1)
    S.wait_tag(0)
    stamp(S, 2)
    S('s_barrier')
    issue(2); issue(3)
    for t in range(NST):
        if t + 1 < NST: S.wait_tag(t + 1)
        S('s_barrier')
        if t + NS < NST: issue(t + NS)
    stamp(S, 3)
    S('s_barrier')
    stamp_flush(S, 4, 10, 0)
    S('s_endpgm')

def prod_addr(S, vA, vW0):
    t0, t1, t2 = 20, 21, 22
    S(f'v_lshrrev_b32 v{t0}, 3, v0')
    S(f'v_mul_u32_u24 v{t0}, 1280, v{t0}')
    S(f'v_lshrrev_b32 v{t1}, 4, v0')
    S(f'v_and_b32 v{t2}, 7, v0')
    S(f'v_xor_b32 v{t2}, v{t2}, v{t1}')
    S(f's_mul_i32 s16, s11, {128*1280}')
    S(f'v_add_u32 v{t0}, s16, v{t0}')
    S(f'v_lshl_add_u32 v{vA[0]}, v{t2}, 4, v{t0}')
    S(f'v_xor_b32 v{vA[1]}, 64, v{vA[0]}')
    if vW0 is not None:
        S('s_lshl_b32 s17, s12, 8')
        S(f'v_mul_u32_u24 v{t0}, 3840, v{t1}')
        S(f'v_add_u32 v{t0}, s17, v{t0}')
        S(f'v_and_b32 v{t2}, 15, v0')
        S(f'v_lshlrev_b32 v{t1}, 1, v{t1}')
        S(f'v_xor_b32 v{t2}, v{t2}, v{t1}')
        S(f'v_lshl_add_u32 v{vW0}, v{t2}, 4, v{t0}')

def idle(S, name, F=None):
    if not F:
        S('s_cmp_lg_u32 s2, 198'); S(f's_cbranch_scc1 L_noz_{name}')
        S('s_cmp_ge_u32 s10, 4'); S(f's_cbranch_scc1 L_noz_{name}')
        srd_off(S, 20, 8, FL_OFF, FL_SZ)
        S('s_lshl_b32 s16, s10, 15')
        for k in range(4): S(f'v_mov_b32 v{4+k}, 0')
        S('v_lshrrev_b32 v3, 2, v0'); S('v_lshlrev_b32 v3, 7, v3'); S('v_and_b32 v2, 3, v0'); S('v_lshl_add_u32 v2, v2, 4, v3'); S('v_add_u32 v2, s16, v2')
        for k in range(16):
            S(f's_mov_b32 s17, {2048*k}')
            S(f'buffer_store_dwordx4 v[4:7], v2, s[20:23], s17 offen')
    S.label(f'L_noz_{name}')
    S.hist = []; S.lds = []; S.vm = []; S.smem_pending = [('s', i) for i in range(4, 10)]
    S('s_cmp_eq_u32 s10, 7'); S(f's_cbranch_scc1 L_xpf_{name}')
    S('s_waitcnt lgkmcnt(0)')
    def setup():
        S('s_sub_u32 s11, s14, 24'); S('s_lshl_b32 s11, s11, 1'); S('s_and_b32 s12, s13, 1'); S('s_add_u32 s11, s11, s12')
        S('s_mul_i32 s11, s11, 7'); S('s_add_u32 s11, s11, s10'); S('s_add_u32 s11, s11, 540')
        S('s_lshl_b32 s12, s10, 13'); S('s_add_u32 s12, s12, 65536')
    phaseR.repack(S, name + 'w', 10, 0, T=1, setup=setup, smod=' sc1' if F else '')
    if F:
        S('s_waitcnt vmcnt(0)')
        S(f's_load_dwordx2 s[4:5], s[0:1], {KA_X}')
        S('s_waitcnt lgkmcnt(0)')
        S('s_barrier')
        S.fence()
        S('s_cmp_ge_u32 s10, 4'); S(f's_cbranch_scc1 L_help_{name}')
        S(f's_branch L_postA_{name}')
    else: S('s_endpgm')
    S.label(f'L_xpf_{name}')
    S.hist = []; S.lds = []; S.vm = []; S.smem_pending = [('s', i) for i in range(4, 10)]
    vA = [2, 3]
    prod_addr(S, vA, None)
    srd(S, 20, 4, 2048*1280)
    S('s_lshl_b32 s30, s29, 12'); S(f's_mul_i32 s31, s29, {4*10240}')
    for t in range(NST):
        for ii in range(4):
            S(f's_add_u32 m0, s30, {(t % NS)*16384 + ii*1024}')
            S(f's_add_u32 s18, s31, {ii*10240 + t*128}')
            S(f'buffer_load_dwordx4 v{vA[ii&1]}, s[20:23], s18 offen{ENT} lds')
    if F:
        F.zero_flags()
        S.wait(vm=0)
        S('s_barrier')
        S(f's_branch L_help_{name}')
        return
    S.wait(vm=0)
    S('s_endpgm')

def producer2(S, name, F=None):
    vA = [2, 3]; vW0 = 4; vWl = [5, 6, 7, 8, 9]
    S('s_sub_u32 s19, s10, 4')
    prod_addr(S, vA, vW0)
    srd(S, 20, 4, 2048*1280)
    srd(S, 24, 6, 640*3840)
    S('s_cmp_eq_u32 s19, 3'); S(f's_cbranch_scc1 L_earlyA_{name}')
    S('s_add_u32 s16, s29, s19'); S('s_add_u32 s16, s16, 1'); S('s_and_b32 s16, s16, 3')
    S('s_lshl_b32 s30, s16, 12'); S(f's_mul_i32 s31, s16, {4*10240}')
    S('s_lshl_b32 s16, s15, 1'); S('s_mul_i32 s17, s19, 5'); S('s_add_u32 s16, s16, s17'); S('s_add_u32 s16, s16, 2')
    for ii in range(5):
        S(f's_add_u32 s17, s16, {ii}'); S('s_and_b32 s17, s17, 15')
        S(f's_lshl_b32 s{32+ii}, s17, 10'); S(f's_mul_i32 s{38+ii}, s17, 15360')
        S('s_lshl_b32 s17, s17, 6'); S('s_and_b32 s17, s17, 128')
        S(f'v_xor_b32 v{vWl[ii]}, s17, v{vW0}')
    def late(t):
        slot = t % NS
        for ii in range(5):
            if ii < 4:
                S(f's_add_u32 m0, s30, {ACT_BASE + slot*16384 + ii*1024}', tag=t)
                S(f's_add_u32 s18, s31, {ii*10240 + t*128}')
                S(f'buffer_load_dwordx4 v{vA[ii&1]}, s[20:23], s18 offen{LNT} lds', tag=t)
            if ii == 4:
                lab = f'L_skA{t}_{name}'
                S('s_cmp_eq_u32 s19, 2'); S(f's_cbranch_scc1 {lab}')
            S(f's_add_u32 m0, s{32+ii}, {W_BASE + slot*16384}')
            S(f's_add_u32 s18, s{38+ii}, {t*64*3840}')
            S(f'buffer_load_dwordx4 v{vWl[ii]}, s[24:27], s18 offen{LNT} lds', tag=t)
            if ii == 4: S.label(lab)
    late(0)
    if not F: stamp(S, 1)
    S.wait(vm=0)
    if not F: stamp(S, 2)
    S('s_barrier')
    LD = int(os.environ.get('LD', '2'))
    for u in range(1, LD + 1): late(u)
    for t in range(NST):
        if t + 1 < NST:
            n_out = min(LD - 1, NST - 1 - (t + 1))
            S.A.raw(f'  s_waitcnt vmcnt({8*n_out})'); S.vm = []
        S('s_barrier')
        if t + 1 + LD < NST: late(t + 1 + LD)
    if not F: stamp(S, 3)
    S('s_barrier')
    if F: S(f's_branch L_help_{name}')
    else:
        stamp_flush(S, 4, 10, 0)
        S('s_endpgm')
    S.label(f'L_earlyA_{name}')
    S.hist = []; S.lds = []; S.vm = []
    S('s_lshl_b32 s30, s29, 12'); S(f's_mul_i32 s31, s29, {4*10240}')
    S('s_lshl_b32 s32, s15, 11'); S(f's_mul_i32 s33, s15, {2*15360}')
    S('s_and_b32 s17, s15, 1'); S('s_lshl_b32 s17, s17, 7'); S(f'v_xor_b32 v{vWl[0]}, s17, v{vW0}')
    def early(t):
        slot = t % NS
        for ii in range(4):
            S(f's_add_u32 m0, s30, {ACT_BASE + slot*16384 + ii*1024}')
            S(f's_add_u32 s18, s31, {ii*10240 + t*128}')
            S(f'buffer_load_dwordx4 v{vA[ii&1]}, s[20:23], s18 offen{ENT} lds', tag=t)
            if ii < 2:
                S(f's_add_u32 m0, s32, {W_BASE + slot*16384 + ii*1024}')
                S(f's_add_u32 s18, s33, {t*64*3840 + ii*15360}')
                S(f'buffer_load_dwordx4 v{vWl[0]}, s[24:27], s18 offen{ENT} lds', tag=t)
    NE0 = int(os.environ.get('NE0', '4'))
    for t in range(NE0): early(t)
    if F: F.zero_flags()
    else: stamp(S, 1)
    S.wait_tag(0)
    if not F: stamp(S, 2)
    S('s_barrier')
    for t in range(NE0, NS): early(t)
    for t in range(NST):
        if t + 1 < NST: S.wait_tag(t + 1)
        S('s_barrier')
        if t + NS < NST: early(t + NS)
    if not F: stamp(S, 3)
    S('s_barrier')
    if F: S(f's_branch L_help_{name}')
    else:
        stamp_flush(S, 4, 10, 0)
        S('s_endpgm')

def consumer(S, name, F=None):
    vG = 1; vT = 2
    aB = [[3, 4], [5, 6]]
    aW = [7, 8, 9, 10]
    T = 11
    ACC = 24
    GR = 88
    RS = 96
    CSA = 104
    OPA = 112
    OPB = 144
    ONES = 176
    acc = lambda i, j: ACC + (i*4 + j)*4
    opa = lambda b, i: OPA + b*16 + i*4
    opb = lambda b, j: OPB + b*16 + j*4
    S('s_lshr_b32 s14, s10, 1')
    S('s_and_b32 s15, s10, 1')
    S(f'v_lshrrev_b32 v{vG}, 4, v0')
    S(f'v_and_b32 v{vT}, 15, v0')
    S(f'v_lshrrev_b32 v{T}, 1, v{vT}')
    S(f'v_xor_b32 v{T}, v{T}, v{vG}')
    S(f'v_lshlrev_b32 v{T}, 4, v{T}')
    S(f'v_lshl_add_u32 v{T}, v{vT}, 7, v{T}')
    S('s_lshl_b32 s16, s14, 2'); S('s_lshl_b32 s17, s15, 1')
    S('s_add_u32 s18, s16, s17')
    S('s_xor_b32 s19, s18, 2')
    S('s_lshl_b32 s16, s18, 11'); S('s_lshl_b32 s17, s19, 11')
    S(f'v_add_u32 v{aB[0][0]}, s16, v{T}'); S(f'v_add_u32 v{aB[0][1]}, s17, v{T}')
    S(f'v_xor_b32 v{aB[1][0]}, 64, v{aB[0][0]}'); S(f'v_xor_b32 v{aB[1][1]}, 64, v{aB[0][1]}')
    S(f'v_and_b32 v{T}, 3, v0')
    S(f'v_lshrrev_b32 v{T+1}, 2, v0'); S(f'v_and_b32 v{T+1}, 3, v{T+1}')
    S(f'v_lshl_add_u32 v{T+2}, v{vG}, 3, v{T+1}')
    S(f'v_lshlrev_b32 v{T+2}, 8, v{T+2}')
    S(f'v_add_u32 v{T+2}, {W_BASE}, v{T+2}')
    S(f'v_and_b32 v{T+3}, 1, v{vG}'); S(f'v_lshlrev_b32 v{T+3}, 3, v{T+3}')
    S(f'v_lshl_or_b32 v{T+3}, v{T+1}, 1, v{T+3}')
    S(f'v_xor_b32 v{T+3}, v{T+3}, v{T}')
    S(f'v_lshrrev_b32 v{T+4}, 1, v{T}')
    S(f'v_lshl_add_u32 v{T+2}, v{T+4}, 3, v{T+2}')
    S('s_lshl_b32 s20, s15, 1'); S('s_add_u32 s20, s20, s14'); S('s_xor_b32 s21, s20, 1')
    for z in range(2):
        S(f's_lshl_b32 s16, s{20+z}, 2')
        S(f'v_xor_b32 v{T+5}, s16, v{T+3}')
        S(f'v_lshl_add_u32 v{aW[2*z]}, v{T+5}, 4, v{T+2}')
        S(f'v_xor_b32 v{aW[2*z+1]}, 8, v{aW[2*z]}')
    for k in range(4): S(f'v_mov_b32 v{ONES+k}, 0x3f803f80')
    def reads(sig):
        t, s_ = sig >> 1, sig & 1
        slot = t % NS; b = sig & 1
        L = []
        for q in range(4):
            L.append(f'ds_read_b128 {v(opb(b,q),4)}, v{aB[s_][q>>1]} offset:{slot*16384 + (q&1)*2048}')
            for p in range(2):
                L.append(f'ds_read_b64_tr_b16 {v(opa(b,q)+2*p,2)}, v{aW[q]} offset:{slot*16384 + s_*8192 + p*1024}')
        return L
    if not F: stamp(S, 1)
    S('s_barrier')
    if not F: stamp(S, 2)
    for x in reads(0): S(x)
    for sig in range(2*NST):
        b = sig & 1
        mf = []
        def M(d, aa, bb):
            c_ = v(d,4) if sig else '0'
            mf.append(f'v_mfma_f32_16x16x32_bf16 {v(d,4)}, {v(aa,4)}, {v(bb,4)}, {c_}')
        for i in range(4):
            for j in range(4):
                M(acc(i,j), opa(b,i), opb(b,j))
            if i < 2:
                M(GR+4*i, opb(b,i), opb(b,i))
                M(RS+4*i, ONES, opb(b,i))
                M(CSA+4*i, opa(b,i), ONES)
        if b == 1:
            S.wait(lgkm=0)
            S('s_barrier')
        fl = reads(sig + 1) if sig + 1 < 2*NST else []
        S(mf[0])
        n = len(fl); k = 0
        for m in mf[1:]:
            if k < n: S(fl[k]); k += 1
            S(m)
        assert k == n
    stamp(S, 2 if F else 3)
    CSo = X_BASE + 1024
    S(f'v_and_b32 v{T}, 3, v0')
    S(f'v_cmp_eq_u32 s[30:31], 1, v{T}'); S(f'v_cmp_eq_u32 s[32:33], 2, v{T}'); S(f'v_cmp_eq_u32 s[34:35], 3, v{T}')
    S(f's_mov_b32 s26, 0x{f32bits(1/640):08x}'); S(f's_mov_b32 s27, 0x{f32bits(1e-5):08x}')
    S(f's_cmp_lt_u32 s12, 5'); S(f's_cselect_b32 s36, 0x{f32bits(QSCALE):08x}, 1.0')
    for j in range(2):
        q = T + 5 + 2*j + 1; m = T + 5 + 2*j
        S(f'v_cndmask_b32 v{q}, v{GR+4*j}, v{GR+4*j+1}, s[30:31]')
        S(f'v_mul_f32 v{m}, s26, v{RS+4*j}')
        S(f'v_cndmask_b32 v{q}, v{q}, v{GR+4*j+2}, s[32:33]')
        S(f'v_cndmask_b32 v{q}, v{q}, v{GR+4*j+3}, s[34:35]')
    for j in range(2):
        q = T + 5 + 2*j + 1; m = T + 5 + 2*j
        S(f'v_mul_f32 v{q}, s26, v{q}')
        S(f'v_fma_f32 v{q}, -v{m}, v{m}, v{q}')
        S(f'v_max_f32 v{q}, 0, v{q}')
        bf16_round(S, q, q)
        S(f'v_add_f32 v{q}, s27, v{q}')
        bf16_round(S, q, q)
        S(f'v_sqrt_f32 v{q}, v{q}')
        bf16_round(S, m, m)
        bf16_round(S, q, q)
        S(f'v_rcp_f32 v{q}, v{q}')
        S(f'v_mul_f32 v{q}, s36, v{q}')
    S(f'v_lshlrev_b32 v{T+1}, 3, v{vT}')
    S('s_lshl_b32 s16, s18, 7'); S('s_lshl_b32 s17, s19, 7')
    S(f's_add_u32 s16, s16, {X_BASE}'); S(f's_add_u32 s17, s17, {X_BASE}')
    S(f'v_add_u32 v{T+2}, s16, v{T+1}'); S(f'v_add_u32 v{T+3}, s17, v{T+1}')
    S('s_mov_b32 s38, 0x00F0000F'); S('s_mov_b32 s39, 0xF0000F00')
    S('s_mov_b64 exec, s[38:39]')
    for j in range(2):
        S(f'ds_write_b64 v{T+2}, {v(T+5+2*j,2)} offset:{j*128}')
    S('s_mov_b64 exec, -1')
    S(f'v_lshlrev_b32 v{T+10}, 4, v{vG}')
    S('s_lshl_b32 s16, s20, 7'); S('s_lshl_b32 s17, s21, 7')
    S(f's_add_u32 s16, s16, {CSo}'); S(f's_add_u32 s17, s17, {CSo}')
    S(f'v_add_u32 v{T+11}, s17, v{T+10}'); S(f'v_add_u32 v{T+10}, s16, v{T+10}')
    S('s_mov_b32 s38, 0x00010001'); S('s_mov_b32 s39, 0x00010001')
    S('s_mov_b64 exec, s[38:39]')
    for e in range(2):
        S(f'ds_write_b128 v{T+10}, {v(CSA+4*e,4)} offset:{e*64}')
    S('s_mov_b64 exec, -1')
    srd_off(S, 40, 8, QKV_OFF, QKV_SZ)
    VO = OPB
    for z in range(2):
        S(f's_lshl_b32 s16, s12, 2'); S(f's_add_u32 s16, s16, s{20+z}'); S('s_lshl_b32 s16, s16, 2')
        S(f'v_add_u32 v{T}, s16, v{vG}')
        S(f'v_lshlrev_b32 v{T}, 15, v{T}')
        S(f'v_lshl_add_u32 v{T}, v{vT}, 4, v{T}')
        for hf in range(2):
            S(f's_lshl_b32 s16, s11, 3'); S(f's_add_u32 s16, s16, s{18+hf}'); S('s_lshl_b32 s16, s16, 8')
            S(f'v_add_u32 v{VO+2*z+hf}, s16, v{T}')
    S.wait(lgkm=0)
    S('s_barrier')
    if not F: stamp(S, 4)
    ST = OPA
    CS2 = OPA + 8
    for j in range(4):
        S(f'ds_read_b64 {v(ST+2*j,2)}, v{T+2+(j>>1)} offset:{(j&1)*128}')
    for e in range(2):
        S(f'ds_read_b128 {v(CS2+4*e,4)}, v{T+11} offset:{e*64}')
    OUT = OPA + 16
    n = 0
    for z in range(2):
        for j in range(4):
            o = OUT + 4*(n & 3); n += 1
            for e in range(2):
                i = 2*z + e
                cs = (CSA + 4*e) if z == 0 else (CS2 + 4*e)
                a_ = acc(i, j)
                for h in range(2):
                    S(f'v_pk_fma_f32 {v(a_+2*h,2)}, {v(cs+2*h,2)}, {v(ST+2*j,2)}, {v(a_+2*h,2)} op_sel:[0,0,0] op_sel_hi:[1,0,1] neg_lo:[0,1,0] neg_hi:[0,1,0]')
                for h in range(2):
                    S(f'v_pk_mul_f32 {v(a_+2*h,2)}, {v(a_+2*h,2)}, {v(ST+2*j,2)} op_sel:[0,1] op_sel_hi:[1,1]')
                for h in range(2):
                    S(f'v_cvt_pk_bf16_f32 v{o+2*e+h}, v{a_+2*h}, v{a_+2*h+1}')
            S(f'buffer_store_dwordx4 {v(o,4)}, v{VO+2*z+(j>>1)}, s[40:43], 0 offen offset:{(j&1)*256}' + (' sc1' if F else ''))
    if F: return
    stamp(S, 5)
    stamp_flush(S, 6, 10, 0)
    S('s_endpgm')

if __name__ == '__main__':
    A = Asm()
    A.raw(f'; @launch kernel=phA_kernel grid=(256,1,1) block=(512,1,1) lds={LDS_A}')
    A.raw('.amdgcn_target "amdgcn-amd-amdhsa--gfx950"')
    gen(A)
    open('a.s','w').write(A.text())
```

```python
import os
from common import *
import phaseR

KP0 = 0; PSTR = 6208
VP0 = 31232
AUX = 62464
LDS_B0 = AUX + 6656
MERGE = int(os.environ.get('MERGE', '1'))
LDS_B = LDS_B0 + (3*16384 if MERGE else 0)
THREADS_B = 512 if MERGE else 256
RSMOD = os.environ.get('RSMOD', '')
WOA = int(os.environ.get('WOA', '1'))
NEG = 0xF149F2CA
TAILX = 155648

def gen(A, name='phB_kernel', stamps=False, nthreads=256):
    S = Sched(A); S.name = name; S.stamps = stamps
    kernel_header(A, name)
    S(f's_load_dwordx2 s[8:9], s[0:1], {KA_WS}')
    prologue_guard(S, 256)
    S('v_lshrrev_b32 v1, 6, v0')
    S('s_and_b32 s13, s2, 7'); S('s_lshr_b32 s14, s2, 3')
    S('v_readfirstlane_b32 s10, v1')
    S('v_and_b32 v0, 63, v0')
    tilemap(S)
    stamp(S, 0)
    if MERGE:
        S('s_cmp_ge_u32 s10, 4'); S(f's_cbranch_scc1 L_help_{name}')
    attention(S, name)
    if MERGE:
        S('s_endpgm')
        S.label(f'L_help_{name}')
        S.hist = []; S.lds = []; S.vm = []; S.smem_pending = [('s', 8), ('s', 9)]
        helper(S, name)
    S.label(f'L_exit_{name}')
    S('s_endpgm')
    kernel_desc(A, name, 256, 102)

def tilemap(S):
    S('s_lshr_b32 s12, s14, 4'); S('s_lshl_b32 s13, s13, 1'); S('s_add_u32 s12, s12, s13')
    S('s_and_b32 s11, s14, 15')

def kv_dma(S, ty, tag, sw, T):
    for n in range(8):
        S(f's_lshl_b32 s18, s{sw}, 3'); S(f's_add_u32 s18, s18, {n}'); S('s_min_u32 s18, s18, 29')
        S('s_mul_i32 s19, s18, 43'); S('s_lshr_b32 s19, s19, 8')
        S('s_mul_i32 s26, s19, 6'); S('s_sub_u32 s26, s18, s26')
        S('s_lshl_b32 s26, s26, 10')
        S(f's_mul_i32 s27, s19, {PSTR}'); S('s_add_u32 s27, s27, s26')
        S(f's_add_u32 m0, s27, {KP0 if ty == 1 else VP0}')
        S('s_add_u32 s19, s19, s16'); S(f's_add_u32 s19, s19, {80*ty}'); S('s_lshl_b32 s19, s19, 15')
        S('s_add_u32 s19, s19, s26'); S('s_add_u32 s19, s19, s17')
        S(f'buffer_load_dwordx4 v{T}, s[20:23], s19 offen lds', tag=tag)

def kv_prep(S, ty, sw, regs):
    for n in range(8):
        S(f's_lshl_b32 s18, s{sw}, 3'); S(f's_add_u32 s18, s18, {n}'); S('s_min_u32 s18, s18, 29')
        S('s_mul_i32 s19, s18, 43'); S('s_lshr_b32 s19, s19, 8')
        S('s_mul_i32 s26, s19, 6'); S('s_sub_u32 s26, s18, s26')
        S('s_lshl_b32 s26, s26, 10')
        S(f's_mul_i32 s27, s19, {PSTR}'); S('s_add_u32 s27, s27, s26')
        S(f's_add_u32 s{regs[2*n]}, s27, {KP0 if ty == 1 else VP0}')
        S('s_add_u32 s19, s19, s16'); S(f's_add_u32 s19, s19, {80*ty}'); S('s_lshl_b32 s19, s19, 15')
        S('s_add_u32 s26, s26, s17'); S('s_max_i32 s26, s26, 0'); S(f's_add_u32 s{regs[2*n+1]}, s19, s26')
def kv_fire(S, regs, T, tag):
    for n in range(8):
        S(f's_mov_b32 m0, s{regs[2*n]}')
        S(f'buffer_load_dwordx4 v{T}, s[20:23], s{regs[2*n+1]} offen lds', tag=tag)

def helper(S, name, F=None):
    if F and F.withA:
        S('s_sub_u32 s38, s10, 4')
        S('s_mul_i32 s16, s12, 5')
        S('s_lshl_b32 s17, s11, 7'); S('s_sub_u32 s17, s17, 256'); S('s_lshl_b32 s17, s17, 4')
        VR = list(range(40, 52)) + [78, 79, 80, 81]
        kv_prep(S, 2, 38, VR)
        F.a_help_pre()
        if int(os.environ.get('RLATE', '1')):
            F.a_help_sync(0, 0)
            srd_off(S, 20, 8, QKV_OFF, QKV_SZ)
            S('v_lshlrev_b32 v60, 4, v0')
            if int(os.environ.get('VLATE', '0')):
                S('s_barrier')
                kv_fire(S, VR, 60, 'V')
            else:
                kv_fire(S, VR, 60, 'V')
                S('s_barrier')
            def after_issue(n):
                S.A.raw(f'  s_waitcnt vmcnt({n})')
                S('s_barrier')
                F.a_help_post(n, 0)
            phaseR.repack(S, name, 38, LDS_B0, T=1, after_issue=after_issue, smod=os.environ.get('RS', ' sc1'), njobs=540)
            return
        cnt = [0]
        def after_issue(n):
            cnt[0] += 1
            F.a_help_sync(n, cnt[0])
            srd_off(S, 20, 8, QKV_OFF, QKV_SZ)
            S('v_lshlrev_b32 v60, 4, v0')
            kv_fire(S, VR, 60, 'V')
            S('s_barrier')
            S.A.raw('  s_waitcnt vmcnt(0)'); S.vm = []
            S('s_barrier')
            F.a_help_post(n, cnt[0])
        phaseR.repack(S, name, 38, LDS_B0, T=1, after_issue=after_issue, smod=os.environ.get('RS', ' sc1'), njobs=540)
        return
    S('s_sub_u32 s38, s10, 4')
    S('s_waitcnt lgkmcnt(0)')
    srd_off(S, 20, 8, QKV_OFF, QKV_SZ)
    S('v_lshlrev_b32 v40, 4, v0')
    S('s_mul_i32 s16, s12, 5')
    S('s_lshl_b32 s17, s11, 7'); S('s_sub_u32 s17, s17, 256'); S('s_lshl_b32 s17, s17, 4')
    kv_dma(S, 2, 'V', 38, 40)
    S('s_barrier')
    def after_issue(n):
        S.A.raw(f'  s_waitcnt vmcnt({n})')
        S('s_barrier')
    if F:
        F.b_help_pre()
        phaseR.repack(S, name, 38, LDS_B0, T=1, after_issue=after_issue, smod=os.environ.get('RS', ' sc1'), njobs=540 if WOA else 640)
        return
    phaseR.repack(S, name, 38, LDS_B0, T=1, after_issue=after_issue, smod=RSMOD, njobs=540 if WOA else 640)
    stamp(S, 1)
    stamp_flush(S, 2, 10, 0, kern_idx=1)

def attention(S, name, F=None):
    S('s_and_b32 s14, s10, 1'); S('s_lshr_b32 s15, s10, 1')
    Sb = 0 + 16
    B0 = 160; B8 = 176
    OA = 192
    Q = 208
    KO = 220
    VO = 232
    aKm, aKt, aV = 2, 3, 4
    oM, oT = 5, 6
    T = 7
    vM = 248; vL = 249
    sc = lambda j, r=0: Sb + 16*j + r
    S('s_waitcnt lgkmcnt(0)')
    srd_off(S, 20, 8, QKV_OFF, QKV_SZ)
    S(f'v_lshlrev_b32 v{T}, 4, v0')
    S('s_mul_i32 s16, s12, 5')
    S('s_lshl_b32 s17, s11, 7'); S('s_sub_u32 s17, s17, 256'); S('s_lshl_b32 s17, s17, 4')
    def dma(ty, tag): kv_dma(S, ty, tag, 10, T)
    lateq = F and F.withA
    KR = list(range(40, 56)); vQa, vQb = (250, 251) if lateq else (T+3, T+4)
    if lateq: kv_prep(S, 1, 10, KR)
    else: dma(1, 'K')
    S(f'v_and_b32 v{T+1}, 31, v0')
    S(f'v_lshrrev_b32 v{T+2}, 5, v0')
    S('s_mul_i32 s18, s14, 3'); S('s_add_u32 s18, s18, s16')
    S(f'v_add_u32 v{T+3}, s18, v{T+2}')
    S(f'v_lshlrev_b32 v{T+3}, 15, v{T+3}')
    S('s_lshl_b32 s19, s11, 1'); S('s_add_u32 s19, s19, s15'); S('s_lshl_b32 s19, s19, 10')
    S(f'v_lshl_add_u32 v{T+4}, v{T+1}, 4, s19')
    S(f'v_add_u32 v{vQa}, v{T+3}, v{T+4}')
    def qmain():
        for b in range(2):
            S(f'buffer_load_dwordx4 {v(Q+6*b,4)}, v{vQa}, s[20:23], 0 offen offset:{512*b}', tag='Q')
    if not lateq: qmain()
    S('s_add_u32 s18, s16, 2'); S('s_lshr_b32 s35, s18, 1'); S('s_and_b32 s35, s35, 1'); S('s_xor_b32 s35, s35, s14')
    S('s_lshl_b32 s27, s18, 15'); S('s_lshl_b32 s28, s35, 3'); S('s_add_u32 s27, s27, s28')
    S(f'v_add_u32 v{vQb}, s27, v{T+4}')
    def qtail():
        for b in range(2):
            S(f'buffer_load_dwordx2 {v(Q+6*b+4,2)}, v{vQb}, s[20:23], 0 offen offset:{512*b}', tag='Q')
    if not lateq: qtail()
    if not MERGE: dma(2, 'V')
    S('s_mul_i32 s18, s10, 100')
    S(f'v_add_u32 v{T+5}, s18, v0')
    S('s_lshl_b32 s19, s11, 7'); S('s_sub_u32 s19, 256, s19')
    S(f'v_mov_b32 v{KO}, 0x3f80'); S(f'v_mov_b32 v{KO+1}, 0'); S(f'v_mov_b32 v{KO+3}, 0')
    S(f'v_mov_b32 v{T+3}, 0xf149')
    for k in range(2):
        S(f'v_cmp_gt_i32 vcc, s19, v{T+5}')
        S(f'v_cndmask_b32 v{KO+2}, 0, v{T+3}, vcc')
        S(f'v_lshlrev_b32 v{T+4}, 4, v{T+5}')
        if k == 1:
            S('s_mov_b32 exec_lo, -1'); S('s_mov_b32 exec_hi, 0xf') if False else None
            S('s_mov_b64 exec, 0xfffffffff') if False else None
            S('s_mov_b32 s30, -1'); S('s_mov_b32 s31, 0xf'); S('s_mov_b64 exec, s[30:31]')
        S(f'ds_write_b128 v{T+4}, {v(KO,4)} offset:{AUX}')
        if k == 0: S(f'v_add_u32 v{T+5}, 64, v{T+5}')
    S('s_mov_b64 exec, -1')
    S('s_mul_i32 s18, s14, 3')
    S(f'v_add_u32 v{T+3}, s18, v{T+2}'); S(f'v_mul_u32_u24 v{T+3}, {PSTR}, v{T+3}')
    S('s_lshl_b32 s19, s15, 10')
    S(f'v_lshl_add_u32 v{T+4}, v{T+1}, 4, s19')
    S(f'v_add_u32 v{aKm}, v{T+3}, v{T+4}')
    if KP0: S(f'v_add_u32 v{aKm}, {KP0}, v{aKm}')
    S('s_lshl_b32 s28, s35, 3'); S(f's_add_u32 s28, s28, {KP0 + 2*PSTR}')
    S(f'v_mov_b32 v{T+3}, s28'); S(f'v_mov_b32 v{T+5}, {AUX+8}')
    S(f'v_cmp_eq_u32 vcc, 0, v{T+2}')
    S(f'v_cndmask_b32 v{T+3}, v{T+5}, v{T+3}, vcc')
    S(f'v_add_u32 v{aKt}, v{T+3}, v{T+4}')
    S(f'v_and_b32 v{T+3}, 3, v0')
    S(f'v_lshrrev_b32 v{T+4}, 2, v0'); S(f'v_and_b32 v{T+4}, 3, v{T+4}')
    S(f'v_lshl_add_u32 v{T+4}, v{T+2}, 2, v{T+4}')
    S(f'v_lshlrev_b32 v{T+4}, 4, v{T+4}')
    S(f'v_add_u32 v{T+4}, s19, v{T+4}')
    S(f'v_lshrrev_b32 v{T+5}, 1, v{T+3}'); S('s_mul_i32 s18, s14, 3'); S(f'v_add_u32 v{T+5}, s18, v{T+5}')
    S(f'v_add_u32 v{T+6}, s16, v{T+5}'); S(f'v_lshrrev_b32 v{T+6}, 1, v{T+6}'); S(f'v_xor_b32 v{T+6}, v{T+6}, v{T+3}')
    S(f'v_and_b32 v{T+6}, 1, v{T+6}')
    S(f'v_mul_u32_u24 v{T+5}, {PSTR}, v{T+5}'); S(f'v_lshl_add_u32 v{T+5}, v{T+6}, 3, v{T+5}')
    S(f'v_add_u32 v{T+5}, {VP0}, v{T+5}')
    S(f's_lshl_b32 s28, s35, 3'); S(f's_add_u32 s28, s28, {VP0 + 2*PSTR}')
    S('s_lshl_b32 s29, s14, 7'); S(f's_sub_u32 s29, {AUX+192}, s29')
    S(f'v_mov_b32 v{T+6}, s29'); S(f'v_mov_b32 v{T+7}, s28')
    S(f'v_cmp_eq_u32 vcc, 0, v{T+3}'); S(f'v_cndmask_b32 v{T+6}, v{T+6}, v{T+7}, vcc')
    S(f'v_bfe_u32 v{T+7}, v0, 4, 1'); S(f'v_cmp_eq_u32 vcc, 0, v{T+7}')
    S(f'v_cndmask_b32 v{T+5}, v{T+6}, v{T+5}, vcc')
    S(f'v_add_u32 v{aV}, v{T+5}, v{T+4}')
    S(f'v_lshlrev_b32 v{T+3}, 2, v{T+2}'); S(f'v_sub_u32 v{T+3}, v{T+1}, v{T+3}')
    S(f'v_mov_b32 v{T+4}, 0x{NEG:08x}')
    for r in range(16):
        c_ = (r & 3) + 8*(r >> 2)
        S(f'v_cmp_gt_i32 vcc, {c_}, v{T+3}')
        S(f'v_cndmask_b32 v{B0+r}, v{T+4}, 0, vcc')
        S(f'v_cndmask_b32 v{B8+r}, 0, v{T+4}, vcc')
    srd_off(S, 24, 8, OF_OFF, OF_SZ)
    S('s_lshl_b32 s18, s11, 1'); S('s_add_u32 s18, s18, s15'); S('s_lshl_b32 s18, s18, 2')
    S(f'v_lshrrev_b32 v{T+3}, 4, v{T+1}'); S(f'v_add_u32 v{T+3}, s18, v{T+3}')
    S(f'v_mul_u32_u24 v{T+3}, {20*1024}, v{T+3}')
    S(f'v_and_b32 v{T+4}, 15, v0'); S(f'v_lshl_add_u32 v{T+3}, v{T+4}, 4, v{T+3}')
    S('s_lshl_b32 s18, s12, 10'); S('s_lshl_b32 s19, s14, 9'); S('s_add_u32 s18, s18, s19')
    S(f'v_lshl_add_u32 v{oM}, v{T+2}, 8, v{T+3}'); S(f'v_add_u32 v{oM}, s18, v{oM}')
    S('s_lshr_b32 s18, s12, 2'); S('s_add_u32 s18, s18, 16'); S('s_lshl_b32 s18, s18, 10')
    S('s_and_b32 s19, s12, 3'); S('s_lshl_b32 s19, s19, 8'); S('s_add_u32 s18, s18, s19')
    S('s_lshl_b32 s19, s14, 3'); S('s_add_u32 s18, s18, s19')
    S(f'v_add_u32 v{oT}, s18, v{T+3}')
    S(f'v_mov_b32 v{T+4}, 0x40000000'); S(f'v_cmp_eq_u32 vcc, 0, v{T+2}')
    S(f'v_cndmask_b32 v{oT}, v{T+4}, v{oT}, vcc')
    if F:
        S('s_lshl_b32 s18, s15, 10'); S('s_lshl_b32 s19, s14, 3'); S('s_add_u32 s18, s18, s19'); S(f's_add_u32 s18, s18, {TAILX}')
        S(f'v_lshl_add_u32 v{oT}, v{T+1}, 4, s18')
        S('s_mov_b32 s30, -1'); S('s_mov_b32 s31, 0')
    if lateq:
        S(f'v_lshlrev_b32 v252, 4, v0')
        F.b_pre()
        kv_fire(S, KR, 252, 'K')
        qmain(); qtail()
        S(f'v_cmp_eq_u32 vcc, 0, v{T+2}')
    S.wait_tag('Q')
    S(f'v_mov_b32 v{T+4}, 0x3f80')
    for b in range(2):
        S(f'v_cndmask_b32 v{Q+6*b+4}, v{T+4}, v{Q+6*b+4}, vcc')
        S(f'v_cndmask_b32 v{Q+6*b+5}, 0, v{Q+6*b+5}, vcc')
    S.wait_tag('K')
    S.wait(lgkm=0)
    if not F: stamp(S, 1)
    S('s_barrier')
    if not F: stamp(S, 2)
    elif F.withA: stamp(S, 8)
    def kreads(b, j):
        buf = j & 1
        off = (32*b + 32*j)*16
        return [f'ds_read_b128 {v(KO+6*buf,4)}, v{aKm} offset:{off}',
                f'ds_read_b64 {v(KO+6*buf+4,2)}, v{aKt} offset:{off}']
    def vreads(b, j, sg):
        buf = (2*j + sg) & 3
        off = (32*b + 32*j + 16*sg)*16
        return [f'ds_read_b64_tr_b16 {v(VO+4*buf+2*p,2)}, v{aV} offset:{off + 128*p}' for p in range(2)]
    for b in range(2):
        for x in kreads(b, 0): S(x)
        def maxops(j):
            L = []
            for k in range(8):
                if j == 0 and k == 0:
                    L.append(f'v_max_f32 v{vM}, v{sc(0,0)}, v{sc(0,1)}')
                else:
                    L.append(f'v_max3_f32 v{vM if k%2==0 else vL}, v{sc(j,2*k)}, v{sc(j,2*k+1)}, v{vM if k%2==0 else vL}' if not (j == 0 and k == 1)
                             else f'v_max_f32 v{vL}, v{sc(0,2)}, v{sc(0,3)}')
            return L
        for j in range(9):
            buf = j & 1
            cin = v(B0,16) if j == 0 else (v(B8,16) if j == 8 else '0')
            if j + 1 < 9:
                nxt = kreads(b, j + 1)
            else: nxt = []
            S(f'v_mfma_f32_32x32x16_bf16 {v(sc(j),16)}, {v(KO+6*buf,4)}, {v(Q+6*b,4)}, {cin}')
            for x in nxt: S(x)
            mo = maxops(j - 2) if j >= 2 else []
            for x in mo[:4]: S(x)
            S(f'v_mfma_f32_32x32x8_bf16 {v(sc(j),16)}, {v(KO+6*buf+4,2)}, {v(Q+6*b+4,2)}, {v(sc(j),16)}')
            for x in mo[4:]: S(x)
        if b == 0:
            if not MERGE: S.wait_tag('V')
            S('s_barrier')
        for x in vreads(b, 0, 0): S(x)
        for x in vreads(b, 0, 1): S(x)
        for x in maxops(7): S(x)
        for x in maxops(8): S(x)
        S(f'v_max_f32 v{vM}, v{vM}, v{vL}')
        S(f'v_mov_b32 v{vL}, v{vM}')
        S(f'v_permlane32_swap_b32 v{vM}, v{vL}')
        S(f'v_max_f32 v{vM}, v{vM}, v{vL}')
        if b == 0 and not F: stamp(S, 3)
        for j in range(9):
            mf = []
            for sg in range(2):
                cin = '0' if (j == 0 and sg == 0) else v(OA,16)
                mf.append(f'v_mfma_f32_32x32x16_bf16 {v(OA,16)}, {v(VO+4*((2*j+sg)&3),4)}, {v(sc(j,4*sg),4)}, {cin}')
            for sg in range(2):
                for r in range(8*sg, 8*sg + 8):
                    S(f'v_sub_f32 v{sc(j,r)}, v{sc(j,r)}, v{vM}')
                for r in range(8*sg, 8*sg + 8):
                    S(f'v_exp_f32 v{sc(j,r)}, v{sc(j,r)}')
                for k in range(4):
                    S(f'v_cvt_pk_bf16_f32 v{sc(j,4*sg+k)}, v{sc(j,8*sg+2*k)}, v{sc(j,8*sg+2*k+1)}')
                S(mf[sg])
                nj, nsg = (j, sg + 2 - 2) if False else ((2*j + sg + 2) >> 1, (2*j + sg + 2) & 1)
                if nj < 9:
                    for x in vreads(b, nj, nsg): S(x)
        S(f'v_rcp_f32 v{vL}, v{OA+12}')
        for r in range(12):
            S(f'v_mul_f32 v{OA+r}, v{OA+r}, v{vL}')
        for k in range(6):
            S(f'v_cvt_pk_bf16_f32 v{KO+k}, v{OA+2*k}, v{OA+2*k+1}')
        if F:
            if b == 0: S(f's_mov_b32 s34, {2*20*1024}')
            S(f'buffer_store_dwordx4 {v(KO,4)}, v{oM}, s[24:27], {"0" if b == 0 else "s34"} offen sc1')
            S('s_mov_b64 exec, s[30:31]')
            S(f'ds_write_b64 v{oT}, {v(KO+4,2)} offset:{512*b}')
            S('s_mov_b64 exec, -1')
            continue
        S(f'buffer_store_dwordx4 {v(KO,4)}, v{oM}, s[24:27], {"0" if b == 0 else "s34"} offen') if b == 0 else None
        if b == 0:
            S(f'buffer_store_dwordx2 {v(KO+4,2)}, v{oT}, s[24:27], 0 offen')
            S(f's_mov_b32 s34, {2*20*1024}')
            stamp(S, 4)
        else:
            S(f'buffer_store_dwordx4 {v(KO,4)}, v{oM}, s[24:27], s34 offen')
            S(f'buffer_store_dwordx2 {v(KO+4,2)}, v{oT}, s[24:27], s34 offen')
    if F:
        S('s_lshl_b32 s18, s11, 3'); S('s_lshl_b32 s19, s10, 1'); S('s_add_u32 s18, s18, s19')
        S(f'v_bfe_u32 v{T+3}, v0, 4, 1'); S(f'v_add_u32 v{T+3}, s18, v{T+3}'); S(f'v_mul_u32_u24 v{T+3}, {20*1024}, v{T+3}')
        S(f'v_and_b32 v{T+4}, 15, v0'); S(f'v_lshl_add_u32 v{T+3}, v{T+4}, 4, v{T+3}')
        S('s_lshr_b32 s18, s12, 2'); S('s_add_u32 s18, s18, 16'); S('s_lshl_b32 s18, s18, 10')
        S('s_and_b32 s19, s12, 3'); S('s_lshl_b32 s19, s19, 8'); S('s_add_u32 s18, s18, s19')
        S(f'v_add_u32 v{T+3}, s18, v{T+3}')
        S('s_lshl_b32 s19, s10, 9'); S(f's_add_u32 s19, s19, {TAILX}'); S(f'v_lshl_add_u32 v{T+4}, v0, 4, s19')
        S.wait(lgkm=0)
        F.st(S, 1)
        S('s_barrier')
        S('s_mov_b64 exec, s[30:31]')
        S(f'ds_read_b128 {v(KO,4)}, v{T+4}')
        S(f'buffer_store_dwordx4 {v(KO,4)}, v{T+3}, s[24:27], 0 offen sc1')
        S('s_mov_b64 exec, -1')
        return
    stamp(S, 5)
    stamp_flush(S, 6, 10, 0, vtmp=(7, 8), kern_idx=1)

if __name__ == '__main__':
    A = Asm()
    A.raw(f'; @launch kernel=phB_kernel grid=(256,1,1) block=(256,1,1) lds={LDS_B}')
    A.raw('.amdgcn_target "amdgcn-amd-amdhsa--gfx950"')
    gen(A)
    open('b.s','w').write(A.text())
```

```python
import os
from common import *
import phaseCE1 as CE, phaseD2 as D, phaseB as B, phaseA as PA

LDS_F = D.LDS_D
THREADS_F = 512
NOSYNC = os.environ.get('NOSYNC', '')
PUSH = int(os.environ.get('PUSH', '0'))

class Fz:
    KEEP = 200
    kidx = 2
    def __init__(self, S, name, withB, withA=False): self.S = S; self.name = name; self.withB = withB; self.withA = withA
    def stx(self, i):
        if not self.withA: stamp(self.S, i)
    def st(self, S, i): stamp(S, i)
    def e_slot(self, sl): return sl*15360 if sl < 5 else 6*D.STG
    def sync_addr(self, own, grp, base):
        S = self.S
        if PUSH:
            S('v_and_b32 v22, 15, v0')
            S(f's_lshl_b32 s52, s53, 7')
            if base: S(f's_add_u32 s52, s52, {base}')
            S('v_lshlrev_b32 v20, 7, v22')
            S('v_lshl_add_u32 v22, v22, 2, s52')
            S(f's_lshl_b32 s52, s{grp}, 11'); S(f's_lshl_b32 s53, s{own}, 2'); S('s_add_u32 s52, s52, s53')
            if base: S(f's_add_u32 s52, s52, {base}')
            S('v_add_u32 v20, s52, v20')
            return
        S(f's_mul_i32 s52, s{grp}, {FGRP}'); S(f's_mul_i32 s53, s{own}, {FSTR}'); S('s_add_u32 s52, s52, s53')
        if base: S(f's_add_u32 s52, s52, {base}')
        S('v_mov_b32 v20, s52')
        S(f's_mul_i32 s52, s{grp+1}, {FGRP}')
        if base: S(f's_add_u32 s52, s52, {base}')
        S('v_and_b32 v22, 15, v0'); S(f'v_mul_u32_u24 v22, {FSTR}, v22'); S('v_add_u32 v22, s52, v22')
    def sync(self, lab, si):
        S = self.S
        if si is not None: stamp(S, si)
        set_flag(S, 20, 21, 56, mask='0xffff' if PUSH else '1')
        poll(S, lab, 22, 21, 56)
        if si is not None: stamp(S, si + 1)
    def zero_flags(self):
        S = self.S
        srd_off(S, 56, 8, FL_OFF, FL_SZ)
        S('s_and_b32 s60, s2, 7'); S('s_lshr_b32 s61, s2, 3')
        S('v_mov_b32 v30, 0x40000000'); S('v_mov_b32 v32, 0')
        S('v_and_b32 v31, 15, v0'); S(f'v_mul_u32_u24 v31, {FGRP}, v31')
        def lane(k, sg):
            S(f's_mov_b64 exec, {1 << k}'); S(f'v_mov_b32 v30, s{sg}')
        S('s_and_b32 s62, s60, 1'); S('s_lshl_b32 s62, s62, 3'); S('s_and_b32 s63, s61, 7'); S('s_add_u32 s62, s62, s63')
        S('s_lshr_b32 s63, s60, 1'); S('s_lshl_b32 s63, s63, 2'); S('s_lshr_b32 s52, s61, 3'); S('s_add_u32 s63, s63, s52')
        S(f's_mul_i32 s52, s62, {FGRP}'); S(f's_mul_i32 s53, s63, {FSTR}'); S('s_add_u32 s52, s52, s53')
        S(f's_add_u32 s53, s52, {FLA}'); lane(0, 53)
        S(f's_add_u32 s53, s52, {FLP}'); lane(1, 53)
        S(f's_mul_i32 s52, s62, {FSTR}'); S(f's_add_u32 s52, s52, {FLW}')
        S('s_cmp_eq_u32 s63, 15'); S('s_cselect_b32 exec_lo, 0xffff0000, 0'); S('s_mov_b32 exec_hi, 0')
        S('v_add_u32 v30, s52, v31')
        S('s_lshr_b32 s52, s61, 4'); S('s_lshl_b32 s53, s60, 1'); S('s_add_u32 s52, s52, s53'); S(f's_mul_i32 s52, s52, {FSTR}')
        S('s_and_b32 s53, s61, 15'); S(f's_mul_i32 s53, s53, {FGRP}'); S('s_add_u32 s52, s52, s53'); S(f's_add_u32 s52, s52, {FLO}'); lane(2, 52)
        S('s_and_b32 s62, s60, 3'); S('s_lshl_b32 s62, s62, 3'); S('s_and_b32 s63, s61, 7'); S('s_add_u32 s62, s62, s63')
        S('s_lshr_b32 s63, s60, 2'); S('s_lshl_b32 s63, s63, 2'); S('s_lshr_b32 s52, s61, 3'); S('s_add_u32 s63, s63, s52')
        S('s_and_b32 s52, s62, 1'); S('s_lshl_b32 s52, s52, 3'); S('s_add_u32 s52, s52, s63'); S(f's_mul_i32 s52, s52, {FSTR}')
        S('s_lshr_b32 s53, s62, 1'); S(f's_mul_i32 s53, s53, {FGRP}'); S('s_add_u32 s52, s52, s53')
        if FLH: S(f's_add_u32 s52, s52, {FLH}')
        lane(3, 52)
        S('s_lshr_b32 s53, s62, 1'); S(f's_mul_i32 s53, s53, {FSTR}'); S(f's_add_u32 s53, s53, {FLR}')
        S('s_and_b32 s52, s62, 1'); S('s_or_b32 s52, s52, s63'); S('s_cmp_eq_u32 s52, 0')
        S('s_cselect_b32 exec_hi, 0xffff, 0'); S('s_mov_b32 exec_lo, 0')
        S('v_add_u32 v30, s53, v31')
        S('s_mov_b64 exec, -1')
        S('buffer_store_dword v32, v30, s[56:59], 0 offen sc1')
    def a_help_pre(self):
        S = self.S
        srd_off(S, 56, 8, FL_OFF, FL_SZ); S('s_mov_b32 s54, 1')
        S('v_lshrrev_b32 v70, 4, v0'); S('v_min_u32 v70, 2, v70')
        S('v_bfe_u32 v71, v0, 1, 3'); S('v_min_u32 v71, 2, v71')
        S('v_cmp_eq_u32 vcc, 0, v70'); S('v_cndmask_b32 v71, v71, 0, vcc')
        S('v_sub_u32 v71, s11, v71'); S('v_max_i32 v71, 0, v71')
        S('v_and_b32 v72, 1, v0'); S('s_mul_i32 s52, s12, 5'); S('v_lshl_add_u32 v72, v72, 2, s52'); S('v_lshrrev_b32 v72, 4, v72')
        S('v_mad_u32_u24 v72, v70, 5, v72')
        S(f'v_mul_u32_u24 v71, {FGRP}, v71'); S(f'v_mul_u32_u24 v72, {FSTR}, v72'); S('v_add_u32 v71, v71, v72')
        S(f'v_add_u32 v74, {FLA}, v71')
        S('s_and_b32 s60, s2, 7'); S('s_lshr_b32 s61, s2, 3')
        S('s_and_b32 s62, s60, 1'); S('s_lshl_b32 s62, s62, 3'); S('s_and_b32 s63, s61, 7'); S('s_add_u32 s62, s62, s63')
        S('s_lshr_b32 s63, s60, 1'); S('s_lshl_b32 s63, s63, 2'); S('s_lshr_b32 s52, s61, 3'); S('s_add_u32 s63, s63, s52')
        S(f's_mul_i32 s52, s62, {FGRP}'); S(f's_mul_i32 s53, s63, {FSTR}'); S('s_add_u32 s52, s52, s53'); S(f's_add_u32 s52, s52, {FLA}')
        S('v_mov_b32 v73, s52'); S('s_mov_b32 s82, 1'); S('s_mov_b32 s83, 0')
        S('s_cmp_lg_u32 s63, 15'); S(f's_cbranch_scc1 L_nidle_{self.name}')
        S(f's_mul_i32 s52, s62, {FSTR}'); S(f's_add_u32 s52, s52, {FLW}')
        S('v_and_b32 v73, 15, v0'); S(f'v_mul_u32_u24 v73, {FGRP}, v73'); S('v_add_u32 v73, s52, v73'); S('s_mov_b32 s82, 0xffff')
        S.label(f'L_nidle_{self.name}')
        S(f's_mul_i32 s52, s11, {FGRP}'); S(f's_add_u32 s52, s52, {FLW}')
        S('v_and_b32 v75, 15, v0'); S(f'v_mul_u32_u24 v75, {FSTR}, v75'); S('v_add_u32 v75, s52, v75')
    def a_help_sync(self, n, u):
        S = self.S; nm = self.name
        S('s_barrier')
        if n == 0:
            S('s_cmp_lg_u32 s10, 7'); S(f's_cbranch_scc1 L_nsa_{nm}')
            stamp(S, 5)
            set_flag(S, 73, 76, 56, mask='s[82:83]')
            poll(S, f'L_pa_{nm}', 74, 76, 56)
            stamp(S, 6)
            S.label(f'L_nsa_{nm}')
        S('s_barrier')
    def a_help_post(self, n, u):
        S = self.S; nm = self.name
        if n == 0:
            S('s_cmp_lg_u32 s10, 7'); S(f's_cbranch_scc1 L_nw1_{nm}')
            S('buffer_load_dword v77, v75, s[56:59], 0 offen sc1')
            S('s_waitcnt vmcnt(0)')
            S('v_cmp_ne_u32 vcc, s54, v77')
            S(f's_cbranch_vccz L_nw1_{nm}')
            poll(S, f'L_pw_{nm}', 75, 77, 56)
            S.label(f'L_nw1_{nm}')
            S.vm = []
    def b_pre(self):
        S = self.S
        S.wait(vm=0)
        stamp(S, 5)
        S('s_barrier'); S('s_barrier')
        stamp(S, 10)
    def b_help_pre(self):
        S = self.S
        srd_off(S, 56, 8, FL_OFF, FL_SZ); S('s_mov_b32 s54, 1')
    def b_help_post(self):
        S = self.S
        stamp(S, 1)
        self.rstores = [I_dummy]
        S.vm = [I_dummy]
        S('s_barrier')
    def c_mid(self):
        S = self.S; nm = self.name
        S('s_lshr_b32 s63, s11, 1')
        S('s_lshl_b32 s53, s11, 3'); S('s_add_u32 s53, s53, s12')
        self.sync_addr(61, 62, FLO)
        S(f'v_add_u32 v23, {FLR - FLO}, v22')
        if PUSH:
            S('s_lshl_b32 s52, s63, 2'); S(f's_add_u32 s52, s52, {FLR}')
            S('v_lshlrev_b32 v24, 7, v0'); S('v_add_u32 v24, s52, v24')
        else:
            S(f's_mul_i32 s52, s63, {FSTR}'); S(f's_add_u32 s52, s52, {FLR}')
            S('v_and_b32 v24, 15, v0'); S(f'v_mul_u32_u24 v24, {FGRP}, v24'); S('v_add_u32 v24, s52, v24')
        S.wait(vm=len(S.vm) - 1)
        stamp(S, 2)
        S('s_barrier')
        S('s_cmp_lg_u32 s10, 7'); S(f's_cbranch_scc1 L_nso_{nm}')
        vm = list(S.vm)
        self.sync(f'L_po_{nm}', 3)
        S('s_and_b32 s52, s11, 1'); S('s_or_b32 s52, s52, s12'); S('s_cmp_lg_u32 s52, 0'); S(f's_cbranch_scc1 L_nso_{nm}')
        S('v_mov_b32 v21, s54')
        if PUSH:
            for k in range(4):
                S(f's_mov_b32 s52, {8192*k}')
                S('buffer_store_dword v21, v24, s[56:59], s52 offen sc1')
        else:
            S('s_mov_b64 exec, 0xffff')
            S('buffer_store_dword v21, v24, s[56:59], 0 offen sc1')
            S('s_mov_b64 exec, -1')
        S.label(f'L_nso_{nm}')
        S.vm = vm
        S('s_barrier')
    def c_step(self, t):
        if not self.withB: return
        S = self.S; nm = self.name
        last = CE.CFG['C']['NSTEP'] // CE.CFG['C']['SPS'] - 1
        if t == last - 1:
            S('s_cmp_lg_u32 s10, 7'); S(f's_cbranch_scc1 L_nr1_{nm}')
            vm = list(S.vm)
            S('buffer_load_dword v25, v23, s[56:59], 0 offen sc1')
            S.label(f'L_nr1_{nm}')
            S.vm = vm
        if t == last:
            S('s_cmp_lg_u32 s10, 7'); S(f's_cbranch_scc1 L_nr2_{nm}')
            vm = list(S.vm)
            S('s_waitcnt vmcnt(0)')
            S('v_cmp_ne_u32 vcc, s54, v25')
            S(f's_cbranch_vccz L_nr2_{nm}')
            poll(S, f'L_rf_{nm}', 23, 25, 56)
            S.label(f'L_nr2_{nm}')
            S.vm = vm
    def c_pre(self):
        S = self.S
        if not self.withB: return
        S.wait(vm=0)
        self.stx(2)
        S('s_barrier'); S('s_barrier')
    def d_mid(self, which):
        S = self.S
        if which == 'late':
            S('s_barrier'); S('s_barrier'); return
        S('s_mov_b32 s62, s60'); S('s_mov_b32 s63, s11')
        S('s_lshl_b32 s53, s11, 4'); S('s_add_u32 s53, s53, s55')
        self.sync_addr(61, 62, FLH)
        S('s_barrier')
        self.sync(f'L_ph_{self.name}', 5 if not self.withA else None)
        S('s_barrier')
    def d_tail(self, which):
        S = self.S
        if which == 'early':
            S('s_mov_b32 s62, s11'); CE.tilemap(S); S('s_lshr_b32 s63, s11, 1')
            S('s_lshl_b32 s53, s11, 3'); S('s_add_u32 s53, s53, s12')
            self.sync_addr(55, 62, FLP)
            S('s_barrier')
            self.sync(f'L_pp_{self.name}', 8)
            S('s_barrier')
            stamp_flush(S, 10, 10, 0, kern_idx=self.kidx)
            S('s_endpgm'); return
        CE.tilemap(S); S('s_mov_b32 s44, 0')
        CE.producer(S, 'E', self)
    def e_mid(self):
        self.S('s_barrier'); self.S('s_barrier')
    def d_pre(self):
        S = self.S
        S.wait(vm=0)
        self.stx(5)
        S('s_barrier'); S('s_barrier')
    def e_pre(self):
        S = self.S
        self.stx(8)
        S.wait(vm=0)
        stamp(S, 9)
        S('s_barrier'); S('s_barrier')
        self.stx(10)

from sched import I
I_dummy = I('buffer_store_dword v255, v255, s[56:59], 0 offen')

def ids(S):
    S('s_and_b32 s13, s2, 7'); S('s_lshr_b32 s14, s2, 3')

def gen(A, name='phF_kernel', stamps=False, withB=False, withA=False):
    S = Sched(A); S.name = name; S.stamps = stamps; S.sbase = 64
    F = Fz(S, name, withB, withA)
    kernel_header(A, name)
    S(f's_load_dwordx2 s[8:9], s[0:1], {KA_WS}')
    S(f's_load_dwordx2 s[4:5], s[0:1], {KA_X}')
    S(f's_load_dwordx2 s[6:7], s[0:1], {KA_WQKV if withA else KA_OUT}')
    prologue_guard(S, 256)
    S('v_lshrrev_b32 v1, 6, v0')
    ids(S)
    S('v_readfirstlane_b32 s10, v1')
    S('v_and_b32 v0, 63, v0')
    if withA: PA.tilemap(S)
    elif withB: B.tilemap(S)
    else: CE.tilemap(S); S('s_mov_b32 s44, 0')
    stamp(S, 0)
    if withA:
        S('s_cmp_ge_u32 s12, 15'); S(f's_cbranch_scc1 L_idle_{name}')
    S('s_cmp_ge_u32 s10, 4')
    S(f's_cbranch_scc1 L_prod_{name}')
    if withA:
        PA.consumer(S, name, F)
        S.label(f'L_postA_{name}')
        S(f's_load_dwordx2 s[6:7], s[0:1], {KA_OUT}')
        ids(S); B.tilemap(S)
    if withB:
        B.attention(S, name, F)
        ids(S); CE.tilemap(S); S('s_mov_b32 s44, 0')
    CE.consumer(S, 'C', F)
    D.tilemap(S)
    D.consumer(S, name, F)
    CE.tilemap(S); S('s_mov_b32 s44, 0')
    CE.consumer(S, 'E', F)
    S.label(f'L_prod_{name}')
    S.hist = []; S.lds = []; S.vm = []; S.smem_pending = [('s', i) for i in range(4, 10)]
    if withA:
        PA.producer2(S, name, F)
        S.label(f'L_idle_{name}')
        S.hist = []; S.lds = []; S.vm = []; S.smem_pending = [('s', i) for i in range(4, 10)]
        PA.idle(S, name, F)
        S.label(f'L_help_{name}')
        S.hist = []; S.lds = []; S.vm = []; S.smem_pending = []
        ids(S); B.tilemap(S)
    if withB:
        B.helper(S, name, F)
        F.b_help_post()
        ids(S); B.tilemap(S); S('s_mov_b32 s62, s11'); S('s_mov_b32 s61, s12')
        ids(S); CE.tilemap(S); S('s_mov_b32 s44, 0')
    else:
        S('s_mov_b32 s54, 1')
    CE.producer(S, 'C', F)
    if not withB: srd_off(S, 56, 8, FL_OFF, FL_SZ)
    S('s_lshr_b32 s60, s11, 1')
    S('s_and_b32 s61, s11, 1'); S('s_lshl_b32 s61, s61, 3'); S('s_add_u32 s61, s61, s12')
    D.tilemap(S); S('s_mov_b32 s55, s33')
    D.producer(S, name, F)
    S.label(f'L_exit_{name}')
    S('s_endpgm')
    kernel_desc(A, name, 256, 102)
```

```python
import os
from common import *
import phaseCE1 as CE, phaseD2 as D, phaseB as B, phaseA as PA

LDS_F = D.LDS_D
THREADS_F = 512
NOSYNC = os.environ.get('NOSYNC', '')
CPF = int(os.environ.get('CPF', '0'))
PUSH = int(os.environ.get('PUSH', '0'))

class Fz:
    KEEP = 200
    kidx = 2
    def __init__(self, S, name, withB, withA=False): self.S = S; self.name = name; self.withB = withB; self.withA = withA
    def stx(self, i):
        if not self.withA: stamp(self.S, i)
    def st(self, S, i): stamp(S, i)
    def e_slot(self, sl): return sl*15360 if sl < 5 else 6*D.STG
    def sync_addr(self, own, grp, base):
        S = self.S
        if PUSH:
            S('v_and_b32 v22, 15, v0')
            S(f's_lshl_b32 s52, s53, 7')
            if base: S(f's_add_u32 s52, s52, {base}')
            S('v_lshlrev_b32 v20, 7, v22')
            S('v_lshl_add_u32 v22, v22, 2, s52')
            S(f's_lshl_b32 s52, s{grp}, 11'); S(f's_lshl_b32 s53, s{own}, 2'); S('s_add_u32 s52, s52, s53')
            if base: S(f's_add_u32 s52, s52, {base}')
            S('v_add_u32 v20, s52, v20')
            return
        S(f's_mul_i32 s52, s{grp}, {FGRP}'); S(f's_mul_i32 s53, s{own}, {FSTR}'); S('s_add_u32 s52, s52, s53')
        if base: S(f's_add_u32 s52, s52, {base}')
        S('v_mov_b32 v20, s52')
        S(f's_mul_i32 s52, s{grp+1}, {FGRP}')
        if base: S(f's_add_u32 s52, s52, {base}')
        S('v_and_b32 v22, 15, v0'); S(f'v_mul_u32_u24 v22, {FSTR}, v22'); S('v_add_u32 v22, s52, v22')
    def sync(self, lab, si):
        S = self.S
        if si is not None: stamp(S, si)
        set_flag(S, 20, 21, 56, mask='0xffff' if PUSH else '1')
        poll(S, lab, 22, 21, 56)
        if si is not None: stamp(S, si + 1)
    def zero_flags(self):
        S = self.S
        srd_off(S, 56, 8, FL_OFF, FL_SZ)
        S('s_and_b32 s60, s2, 7'); S('s_lshr_b32 s61, s2, 3')
        S('v_mov_b32 v30, 0x40000000'); S('v_mov_b32 v32, 0')
        S('v_and_b32 v31, 15, v0'); S(f'v_mul_u32_u24 v31, {FGRP}, v31')
        def lane(k, sg):
            S(f's_mov_b64 exec, {1 << k}'); S(f'v_mov_b32 v30, s{sg}')
        S('s_and_b32 s62, s60, 1'); S('s_lshl_b32 s62, s62, 3'); S('s_and_b32 s63, s61, 7'); S('s_add_u32 s62, s62, s63')
        S('s_lshr_b32 s63, s60, 1'); S('s_lshl_b32 s63, s63, 2'); S('s_lshr_b32 s52, s61, 3'); S('s_add_u32 s63, s63, s52')
        S(f's_mul_i32 s52, s62, {FGRP}'); S(f's_mul_i32 s53, s63, {FSTR}'); S('s_add_u32 s52, s52, s53')
        S(f's_add_u32 s53, s52, {FLA}'); lane(0, 53)
        S(f's_add_u32 s53, s52, {FLP}'); lane(1, 53)
        S(f's_mul_i32 s52, s62, {FSTR}'); S(f's_add_u32 s52, s52, {FLW}')
        S('s_cmp_eq_u32 s63, 15'); S('s_cselect_b32 exec_lo, 0xffff0000, 0'); S('s_mov_b32 exec_hi, 0')
        S('v_add_u32 v30, s52, v31')
        S('s_lshr_b32 s52, s61, 4'); S('s_lshl_b32 s53, s60, 1'); S('s_add_u32 s52, s52, s53'); S(f's_mul_i32 s52, s52, {FSTR}')
        S('s_and_b32 s53, s61, 15'); S(f's_mul_i32 s53, s53, {FGRP}'); S('s_add_u32 s52, s52, s53'); S(f's_add_u32 s52, s52, {FLO}'); lane(2, 52)
        S('s_and_b32 s62, s60, 3'); S('s_lshl_b32 s62, s62, 3'); S('s_and_b32 s63, s61, 7'); S('s_add_u32 s62, s62, s63')
        S('s_lshr_b32 s63, s60, 2'); S('s_lshl_b32 s63, s63, 2'); S('s_lshr_b32 s52, s61, 3'); S('s_add_u32 s63, s63, s52')
        S('s_and_b32 s52, s62, 1'); S('s_lshl_b32 s52, s52, 3'); S('s_add_u32 s52, s52, s63'); S(f's_mul_i32 s52, s52, {FSTR}')
        S('s_lshr_b32 s53, s62, 1'); S(f's_mul_i32 s53, s53, {FGRP}'); S('s_add_u32 s52, s52, s53')
        if FLH: S(f's_add_u32 s52, s52, {FLH}')
        lane(3, 52)
        S('s_lshr_b32 s53, s62, 1'); S(f's_mul_i32 s53, s53, {FSTR}'); S(f's_add_u32 s53, s53, {FLR}')
        S('s_and_b32 s52, s62, 1'); S('s_or_b32 s52, s52, s63'); S('s_cmp_eq_u32 s52, 0')
        S('s_cselect_b32 exec_hi, 0xffff, 0'); S('s_mov_b32 exec_lo, 0')
        S('v_add_u32 v30, s53, v31')
        S('s_mov_b64 exec, -1')
        S('buffer_store_dword v32, v30, s[56:59], 0 offen sc1')
    def a_help_pre(self):
        S = self.S
        srd_off(S, 56, 8, FL_OFF, FL_SZ); S('s_mov_b32 s54, 1')
        S('v_lshrrev_b32 v70, 4, v0'); S('v_min_u32 v70, 2, v70')
        S('v_bfe_u32 v71, v0, 1, 3'); S('v_min_u32 v71, 2, v71')
        S('v_cmp_eq_u32 vcc, 0, v70'); S('v_cndmask_b32 v71, v71, 0, vcc')
        S('v_sub_u32 v71, s11, v71'); S('v_max_i32 v71, 0, v71')
        S('v_and_b32 v72, 1, v0'); S('s_mul_i32 s52, s12, 5'); S('v_lshl_add_u32 v72, v72, 2, s52'); S('v_lshrrev_b32 v72, 4, v72')
        S('v_mad_u32_u24 v72, v70, 5, v72')
        S(f'v_mul_u32_u24 v71, {FGRP}, v71'); S(f'v_mul_u32_u24 v72, {FSTR}, v72'); S('v_add_u32 v71, v71, v72')
        S(f'v_add_u32 v74, {FLA}, v71')
        S('s_and_b32 s60, s2, 7'); S('s_lshr_b32 s61, s2, 3')
        S('s_and_b32 s62, s60, 1'); S('s_lshl_b32 s62, s62, 3'); S('s_and_b32 s63, s61, 7'); S('s_add_u32 s62, s62, s63')
        S('s_lshr_b32 s63, s60, 1'); S('s_lshl_b32 s63, s63, 2'); S('s_lshr_b32 s52, s61, 3'); S('s_add_u32 s63, s63, s52')
        S(f's_mul_i32 s52, s62, {FGRP}'); S(f's_mul_i32 s53, s63, {FSTR}'); S('s_add_u32 s52, s52, s53'); S(f's_add_u32 s52, s52, {FLA}')
        S('v_mov_b32 v73, s52'); S('s_mov_b32 s82, 1'); S('s_mov_b32 s83, 0')
        S('s_cmp_lg_u32 s63, 15'); S(f's_cbranch_scc1 L_nidle_{self.name}')
        S(f's_mul_i32 s52, s62, {FSTR}'); S(f's_add_u32 s52, s52, {FLW}')
        S('v_and_b32 v73, 15, v0'); S(f'v_mul_u32_u24 v73, {FGRP}, v73'); S('v_add_u32 v73, s52, v73'); S('s_mov_b32 s82, 0xffff')
        S.label(f'L_nidle_{self.name}')
        S(f's_mul_i32 s52, s11, {FGRP}'); S(f's_add_u32 s52, s52, {FLW}')
        S('v_and_b32 v75, 15, v0'); S(f'v_mul_u32_u24 v75, {FSTR}, v75'); S('v_add_u32 v75, s52, v75')
    def a_help_sync(self, n, u):
        S = self.S; nm = self.name
        S('s_barrier')
        if n == 0:
            S('s_cmp_lg_u32 s10, 7'); S(f's_cbranch_scc1 L_nsa_{nm}')
            stamp(S, 5)
            set_flag(S, 73, 76, 56, mask='s[82:83]')
            poll(S, f'L_pa_{nm}', 74, 76, 56)
            stamp(S, 6)
            S.label(f'L_nsa_{nm}')
        S('s_barrier')
    def a_help_post(self, n, u):
        S = self.S; nm = self.name
        if n == 0:
            S('s_cmp_lg_u32 s10, 7'); S(f's_cbranch_scc1 L_nw1_{nm}')
            S('buffer_load_dword v77, v75, s[56:59], 0 offen sc1')
            S('s_waitcnt vmcnt(0)')
            S('v_cmp_ne_u32 vcc, s54, v77')
            S(f's_cbranch_vccz L_nw1_{nm}')
            poll(S, f'L_pw_{nm}', 75, 77, 56)
            S.label(f'L_nw1_{nm}')
            S.vm = []
    def b_pre(self):
        S = self.S
        S.wait(vm=0)
        stamp(S, 5)
        S('s_barrier'); S('s_barrier')
        stamp(S, 10)
    def b_help_pre(self):
        S = self.S
        srd_off(S, 56, 8, FL_OFF, FL_SZ); S('s_mov_b32 s54, 1')
    def b_help_post(self):
        S = self.S
        stamp(S, 1)
        self.rstores = [I_dummy]
        S.vm = [I_dummy]
        S('s_barrier')
    def c_mid(self):
        S = self.S; nm = self.name
        S('s_lshr_b32 s63, s11, 1')
        S('s_lshl_b32 s53, s11, 3'); S('s_add_u32 s53, s53, s12')
        self.sync_addr(61, 62, FLO)
        S(f'v_add_u32 v23, {FLR - FLO}, v22')
        if PUSH:
            S('s_lshl_b32 s52, s63, 2'); S(f's_add_u32 s52, s52, {FLR}')
            S('v_lshlrev_b32 v24, 7, v0'); S('v_add_u32 v24, s52, v24')
        else:
            S(f's_mul_i32 s52, s63, {FSTR}'); S(f's_add_u32 s52, s52, {FLR}')
            S('v_and_b32 v24, 15, v0'); S(f'v_mul_u32_u24 v24, {FGRP}, v24'); S('v_add_u32 v24, s52, v24')
        S.wait(vm=len(S.vm) - 1)
        stamp(S, 2)
        S('s_barrier')
        S('s_cmp_lg_u32 s10, 7'); S(f's_cbranch_scc1 L_nso_{nm}')
        vm = list(S.vm)
        self.sync(f'L_po_{nm}', 3)
        S('s_and_b32 s52, s11, 1'); S('s_or_b32 s52, s52, s12'); S('s_cmp_lg_u32 s52, 0'); S(f's_cbranch_scc1 L_nso_{nm}')
        S('v_mov_b32 v21, s54')
        if PUSH:
            for k in range(4):
                S(f's_mov_b32 s52, {8192*k}')
                S('buffer_store_dword v21, v24, s[56:59], s52 offen sc1')
        else:
            S('s_mov_b64 exec, 0xffff')
            S('buffer_store_dword v21, v24, s[56:59], 0 offen sc1')
            S('s_mov_b64 exec, -1')
        S.label(f'L_nso_{nm}')
        S.vm = vm
        S('s_barrier')
    def c_step(self, t):
        if not self.withB: return
        S = self.S; nm = self.name
        last = CE.CFG['C']['NSTEP'] // CE.CFG['C']['SPS'] - 1
        if t == last - 1:
            S('s_cmp_lg_u32 s10, 7'); S(f's_cbranch_scc1 L_nr1_{nm}')
            vm = list(S.vm)
            S('buffer_load_dword v25, v23, s[56:59], 0 offen sc1')
            S.label(f'L_nr1_{nm}')
            S.vm = vm
        if t == last:
            S('s_cmp_lg_u32 s10, 7'); S(f's_cbranch_scc1 L_nr2_{nm}')
            vm = list(S.vm)
            S('s_waitcnt vmcnt(0)')
            S('v_cmp_ne_u32 vcc, s54, v25')
            S(f's_cbranch_vccz L_nr2_{nm}')
            poll(S, f'L_rf_{nm}', 23, 25, 56)
            S.label(f'L_nr2_{nm}')
            S.vm = vm
    def c_pre(self):
        S = self.S
        if not self.withB: return
        S.wait(vm=0)
        self.stx(2)
        S('s_barrier'); S('s_barrier')
    def d_mid(self, which):
        S = self.S
        if which == 'late':
            S('s_barrier'); S('s_barrier'); return
        S('s_mov_b32 s62, s60'); S('s_mov_b32 s63, s11')
        S('s_lshl_b32 s53, s11, 4'); S('s_add_u32 s53, s53, s55')
        self.sync_addr(61, 62, FLH)
        S('s_barrier')
        self.sync(f'L_ph_{self.name}', 5 if not self.withA else None)
        S('s_barrier')
    def d_tail(self, which):
        S = self.S
        if which == 'early':
            S('s_mov_b32 s62, s11'); CE.tilemap(S); S('s_lshr_b32 s63, s11, 1')
            S('s_lshl_b32 s53, s11, 3'); S('s_add_u32 s53, s53, s12')
            self.sync_addr(55, 62, FLP)
            S('s_barrier')
            self.sync(f'L_pp_{self.name}', 8)
            S('s_barrier')
            stamp_flush(S, 10, 10, 0, kern_idx=self.kidx)
            S('s_endpgm'); return
        CE.tilemap(S); S('s_mov_b32 s44, 0')
        CE.producer(S, 'E', self)
    def e_mid(self):
        self.S('s_barrier'); self.S('s_barrier')
    def d_pre(self):
        S = self.S
        S.wait(vm=0)
        self.stx(5)
        S('s_barrier'); S('s_barrier')
    def e_pre(self):
        S = self.S
        self.stx(8)
        S.wait(vm=0)
        stamp(S, 9)
        S('s_barrier'); S('s_barrier')
        self.stx(10)

from sched import I
I_dummy = I('buffer_store_dword v255, v255, s[56:59], 0 offen')

def ids(S):
    S('s_and_b32 s13, s2, 7'); S('s_lshr_b32 s14, s2, 3')

def gen(A, name='phF_kernel', stamps=False, withB=False, withA=False):
    S = Sched(A); S.name = name; S.stamps = stamps; S.sbase = 64
    F = Fz(S, name, withB, withA)
    kernel_header(A, name)
    S(f's_load_dwordx2 s[8:9], s[0:1], {KA_WS}')
    S(f's_load_dwordx2 s[4:5], s[0:1], {KA_X}')
    S(f's_load_dwordx2 s[6:7], s[0:1], {KA_WQKV if withA else KA_OUT}')
    prologue_guard(S, 256)
    S('v_lshrrev_b32 v1, 6, v0')
    ids(S)
    S('v_readfirstlane_b32 s10, v1')
    S('v_and_b32 v0, 63, v0')
    if withA: PA.tilemap(S)
    elif withB: B.tilemap(S)
    else: CE.tilemap(S); S('s_mov_b32 s44, 0')
    stamp(S, 0)
    if withA:
        S('s_cmp_ge_u32 s12, 15'); S(f's_cbranch_scc1 L_idle_{name}')
    S('s_cmp_ge_u32 s10, 4')
    S(f's_cbranch_scc1 L_prod_{name}')
    if withA and CPF:
        S('s_cmp_lg_u32 s10, 0'); S(f's_cbranch_scc1 L_ncpf_{name}')
        S('s_getpc_b64 s[60:61]')
        S.label(f'L_pc_{name}')
        S('s_mul_i32 s62, s14, %d' % CPF); S('v_add_u32 v250, s62, v0'); S('v_lshlrev_b32 v250, 7, v250')
        S(f's_mov_b32 s62, L_exit_{name}-L_pc_{name}'); S('v_min_u32 v250, s62, v250')
        S('v_mov_b32 v251, s61'); S('v_add_co_u32 v250, vcc, s60, v250'); S('v_addc_co_u32 v251, vcc, 0, v251, vcc')
        S('s_mov_b64 exec, %d' % ((1 << CPF) - 1) if CPF < 7 else 's_mov_b32 exec_lo, 0x%x' % ((1 << CPF) - 1)); S('s_mov_b32 exec_hi, 0')
        S('global_load_dword v252, v[250:251], off')
        S('s_mov_b64 exec, -1')
        S.label(f'L_ncpf_{name}')
    if withA:
        PA.consumer(S, name, F)
        S.label(f'L_postA_{name}')
        S(f's_load_dwordx2 s[6:7], s[0:1], {KA_OUT}')
        ids(S); B.tilemap(S)
    if withB:
        B.attention(S, name, F)
        ids(S); CE.tilemap(S); S('s_mov_b32 s44, 0')
    CE.consumer(S, 'C', F)
    D.tilemap(S)
    D.consumer(S, name, F)
    CE.tilemap(S); S('s_mov_b32 s44, 0')
    CE.consumer(S, 'E', F)
    S.label(f'L_prod_{name}')
    S.hist = []; S.lds = []; S.vm = []; S.smem_pending = [('s', i) for i in range(4, 10)]
    if withA:
        PA.producer2(S, name, F)
        S.label(f'L_idle_{name}')
        S.hist = []; S.lds = []; S.vm = []; S.smem_pending = [('s', i) for i in range(4, 10)]
        PA.idle(S, name, F)
        S.label(f'L_help_{name}')
        S.hist = []; S.lds = []; S.vm = []; S.smem_pending = []
        ids(S); B.tilemap(S)
    if withB:
        B.helper(S, name, F)
        F.b_help_post()
        ids(S); B.tilemap(S); S('s_mov_b32 s62, s11'); S('s_mov_b32 s61, s12')
        ids(S); CE.tilemap(S); S('s_mov_b32 s44, 0')
    else:
        S('s_mov_b32 s54, 1')
    CE.producer(S, 'C', F)
    if not withB: srd_off(S, 56, 8, FL_OFF, FL_SZ)
    S('s_lshr_b32 s60, s11, 1')
    S('s_and_b32 s61, s11, 1'); S('s_lshl_b32 s61, s61, 3'); S('s_add_u32 s61, s61, s12')
    D.tilemap(S); S('s_mov_b32 s55, s33')
    D.producer(S, name, F)
    S.label(f'L_exit_{name}')
    S('s_endpgm')
    kernel_desc(A, name, 256, 102)
```

```python
import os
from common import *
import phaseCE1 as CE, phaseD2 as D, phaseB as B, phaseA as PA

LDS_F = D.LDS_D
THREADS_F = 512
NOSYNC = os.environ.get('NOSYNC', '')
CPF = int(os.environ.get('CPF', '15'))
PUSH = int(os.environ.get('PUSH', '0'))

class Fz:
    KEEP = 200
    kidx = 2
    def __init__(self, S, name, withB, withA=False): self.S = S; self.name = name; self.withB = withB; self.withA = withA
    def stx(self, i):
        if not self.withA: stamp(self.S, i)
    def st(self, S, i): stamp(S, i)
    def e_slot(self, sl): return sl*15360 if sl < 5 else 6*D.STG
    def sync_addr(self, own, grp, base):
        S = self.S
        if PUSH:
            S('v_and_b32 v22, 15, v0')
            S(f's_lshl_b32 s52, s53, 7')
            if base: S(f's_add_u32 s52, s52, {base}')
            S('v_lshlrev_b32 v20, 7, v22')
            S('v_lshl_add_u32 v22, v22, 2, s52')
            S(f's_lshl_b32 s52, s{grp}, 11'); S(f's_lshl_b32 s53, s{own}, 2'); S('s_add_u32 s52, s52, s53')
            if base: S(f's_add_u32 s52, s52, {base}')
            S('v_add_u32 v20, s52, v20')
            return
        S(f's_mul_i32 s52, s{grp}, {FGRP}'); S(f's_mul_i32 s53, s{own}, {FSTR}'); S('s_add_u32 s52, s52, s53')
        if base: S(f's_add_u32 s52, s52, {base}')
        S('v_mov_b32 v20, s52')
        S(f's_mul_i32 s52, s{grp+1}, {FGRP}')
        if base: S(f's_add_u32 s52, s52, {base}')
        S('v_and_b32 v22, 15, v0'); S(f'v_mul_u32_u24 v22, {FSTR}, v22'); S('v_add_u32 v22, s52, v22')
    def sync(self, lab, si):
        S = self.S
        if si is not None: stamp(S, si)
        set_flag(S, 20, 21, 56, mask='0xffff' if PUSH else '1')
        poll(S, lab, 22, 21, 56)
        if si is not None: stamp(S, si + 1)
    def zero_flags(self):
        S = self.S
        srd_off(S, 56, 8, FL_OFF, FL_SZ)
        S('s_and_b32 s60, s2, 7'); S('s_lshr_b32 s61, s2, 3')
        S('v_mov_b32 v30, 0x40000000'); S('v_mov_b32 v32, 0')
        S('v_and_b32 v31, 15, v0'); S(f'v_mul_u32_u24 v31, {FGRP}, v31')
        def lane(k, sg):
            S(f's_mov_b64 exec, {1 << k}'); S(f'v_mov_b32 v30, s{sg}')
        S('s_and_b32 s62, s60, 1'); S('s_lshl_b32 s62, s62, 3'); S('s_and_b32 s63, s61, 7'); S('s_add_u32 s62, s62, s63')
        S('s_lshr_b32 s63, s60, 1'); S('s_lshl_b32 s63, s63, 2'); S('s_lshr_b32 s52, s61, 3'); S('s_add_u32 s63, s63, s52')
        S(f's_mul_i32 s52, s62, {FGRP}'); S(f's_mul_i32 s53, s63, {FSTR}'); S('s_add_u32 s52, s52, s53')
        S(f's_add_u32 s53, s52, {FLA}'); lane(0, 53)
        S(f's_add_u32 s53, s52, {FLP}'); lane(1, 53)
        S(f's_mul_i32 s52, s62, {FSTR}'); S(f's_add_u32 s52, s52, {FLW}')
        S('s_cmp_eq_u32 s63, 15'); S('s_cselect_b32 exec_lo, 0xffff0000, 0'); S('s_mov_b32 exec_hi, 0')
        S('v_add_u32 v30, s52, v31')
        S('s_lshr_b32 s52, s61, 4'); S('s_lshl_b32 s53, s60, 1'); S('s_add_u32 s52, s52, s53'); S(f's_mul_i32 s52, s52, {FSTR}')
        S('s_and_b32 s53, s61, 15'); S(f's_mul_i32 s53, s53, {FGRP}'); S('s_add_u32 s52, s52, s53'); S(f's_add_u32 s52, s52, {FLO}'); lane(2, 52)
        S('s_and_b32 s62, s60, 3'); S('s_lshl_b32 s62, s62, 3'); S('s_and_b32 s63, s61, 7'); S('s_add_u32 s62, s62, s63')
        S('s_lshr_b32 s63, s60, 2'); S('s_lshl_b32 s63, s63, 2'); S('s_lshr_b32 s52, s61, 3'); S('s_add_u32 s63, s63, s52')
        S('s_and_b32 s52, s62, 1'); S('s_lshl_b32 s52, s52, 3'); S('s_add_u32 s52, s52, s63'); S(f's_mul_i32 s52, s52, {FSTR}')
        S('s_lshr_b32 s53, s62, 1'); S(f's_mul_i32 s53, s53, {FGRP}'); S('s_add_u32 s52, s52, s53')
        if FLH: S(f's_add_u32 s52, s52, {FLH}')
        lane(3, 52)
        S('s_lshr_b32 s53, s62, 1'); S(f's_mul_i32 s53, s53, {FSTR}'); S(f's_add_u32 s53, s53, {FLR}')
        S('s_and_b32 s52, s62, 1'); S('s_or_b32 s52, s52, s63'); S('s_cmp_eq_u32 s52, 0')
        S('s_cselect_b32 exec_hi, 0xffff, 0'); S('s_mov_b32 exec_lo, 0')
        S('v_add_u32 v30, s53, v31')
        S('s_mov_b64 exec, -1')
        S('buffer_store_dword v32, v30, s[56:59], 0 offen sc1')
    def a_help_pre(self):
        S = self.S
        srd_off(S, 56, 8, FL_OFF, FL_SZ); S('s_mov_b32 s54, 1')
        S('v_lshrrev_b32 v70, 4, v0'); S('v_min_u32 v70, 2, v70')
        S('v_bfe_u32 v71, v0, 1, 3'); S('v_min_u32 v71, 2, v71')
        S('v_cmp_eq_u32 vcc, 0, v70'); S('v_cndmask_b32 v71, v71, 0, vcc')
        S('v_sub_u32 v71, s11, v71'); S('v_max_i32 v71, 0, v71')
        S('v_and_b32 v72, 1, v0'); S('s_mul_i32 s52, s12, 5'); S('v_lshl_add_u32 v72, v72, 2, s52'); S('v_lshrrev_b32 v72, 4, v72')
        S('v_mad_u32_u24 v72, v70, 5, v72')
        S(f'v_mul_u32_u24 v71, {FGRP}, v71'); S(f'v_mul_u32_u24 v72, {FSTR}, v72'); S('v_add_u32 v71, v71, v72')
        S(f'v_add_u32 v74, {FLA}, v71')
        S('s_and_b32 s60, s2, 7'); S('s_lshr_b32 s61, s2, 3')
        S('s_and_b32 s62, s60, 1'); S('s_lshl_b32 s62, s62, 3'); S('s_and_b32 s63, s61, 7'); S('s_add_u32 s62, s62, s63')
        S('s_lshr_b32 s63, s60, 1'); S('s_lshl_b32 s63, s63, 2'); S('s_lshr_b32 s52, s61, 3'); S('s_add_u32 s63, s63, s52')
        S(f's_mul_i32 s52, s62, {FGRP}'); S(f's_mul_i32 s53, s63, {FSTR}'); S('s_add_u32 s52, s52, s53'); S(f's_add_u32 s52, s52, {FLA}')
        S('v_mov_b32 v73, s52'); S('s_mov_b32 s82, 1'); S('s_mov_b32 s83, 0')
        S('s_cmp_lg_u32 s63, 15'); S(f's_cbranch_scc1 L_nidle_{self.name}')
        S(f's_mul_i32 s52, s62, {FSTR}'); S(f's_add_u32 s52, s52, {FLW}')
        S('v_and_b32 v73, 15, v0'); S(f'v_mul_u32_u24 v73, {FGRP}, v73'); S('v_add_u32 v73, s52, v73'); S('s_mov_b32 s82, 0xffff')
        S.label(f'L_nidle_{self.name}')
        S(f's_mul_i32 s52, s11, {FGRP}'); S(f's_add_u32 s52, s52, {FLW}')
        S('v_and_b32 v75, 15, v0'); S(f'v_mul_u32_u24 v75, {FSTR}, v75'); S('v_add_u32 v75, s52, v75')
    def a_help_sync(self, n, u):
        S = self.S; nm = self.name
        S('s_barrier')
        if n == 0:
            S('s_cmp_lg_u32 s10, 7'); S(f's_cbranch_scc1 L_nsa_{nm}')
            stamp(S, 5)
            set_flag(S, 73, 76, 56, mask='s[82:83]')
            poll(S, f'L_pa_{nm}', 74, 76, 56)
            stamp(S, 6)
            S.label(f'L_nsa_{nm}')
        S('s_barrier')
    def a_help_post(self, n, u):
        S = self.S; nm = self.name
        if n == 0:
            S('s_cmp_lg_u32 s10, 7'); S(f's_cbranch_scc1 L_nw1_{nm}')
            S('buffer_load_dword v77, v75, s[56:59], 0 offen sc1')
            S('s_waitcnt vmcnt(0)')
            S('v_cmp_ne_u32 vcc, s54, v77')
            S(f's_cbranch_vccz L_nw1_{nm}')
            poll(S, f'L_pw_{nm}', 75, 77, 56)
            S.label(f'L_nw1_{nm}')
            S.vm = []
    def b_pre(self):
        S = self.S
        S.wait(vm=0)
        stamp(S, 5)
        S('s_barrier'); S('s_barrier')
        stamp(S, 10)
    def b_help_pre(self):
        S = self.S
        srd_off(S, 56, 8, FL_OFF, FL_SZ); S('s_mov_b32 s54, 1')
    def b_help_post(self):
        S = self.S
        stamp(S, 1)
        self.rstores = [I_dummy]
        S.vm = [I_dummy]
        S('s_barrier')
    def c_mid(self):
        S = self.S; nm = self.name
        S('s_lshr_b32 s63, s11, 1')
        S('s_lshl_b32 s53, s11, 3'); S('s_add_u32 s53, s53, s12')
        self.sync_addr(61, 62, FLO)
        S(f'v_add_u32 v23, {FLR - FLO}, v22')
        if PUSH:
            S('s_lshl_b32 s52, s63, 2'); S(f's_add_u32 s52, s52, {FLR}')
            S('v_lshlrev_b32 v24, 7, v0'); S('v_add_u32 v24, s52, v24')
        else:
            S(f's_mul_i32 s52, s63, {FSTR}'); S(f's_add_u32 s52, s52, {FLR}')
            S('v_and_b32 v24, 15, v0'); S(f'v_mul_u32_u24 v24, {FGRP}, v24'); S('v_add_u32 v24, s52, v24')
        S.wait(vm=len(S.vm) - 1)
        stamp(S, 2)
        S('s_barrier')
        S('s_cmp_lg_u32 s10, 7'); S(f's_cbranch_scc1 L_nso_{nm}')
        vm = list(S.vm)
        self.sync(f'L_po_{nm}', 3)
        S('s_and_b32 s52, s11, 1'); S('s_or_b32 s52, s52, s12'); S('s_cmp_lg_u32 s52, 0'); S(f's_cbranch_scc1 L_nso_{nm}')
        S('v_mov_b32 v21, s54')
        if PUSH:
            for k in range(4):
                S(f's_mov_b32 s52, {8192*k}')
                S('buffer_store_dword v21, v24, s[56:59], s52 offen sc1')
        else:
            S('s_mov_b64 exec, 0xffff')
            S('buffer_store_dword v21, v24, s[56:59], 0 offen sc1')
            S('s_mov_b64 exec, -1')
        S.label(f'L_nso_{nm}')
        S.vm = vm
        S('s_barrier')
    def c_step(self, t):
        if not self.withB: return
        S = self.S; nm = self.name
        last = CE.CFG['C']['NSTEP'] // CE.CFG['C']['SPS'] - 1
        if t == last - 1:
            S('s_cmp_lg_u32 s10, 7'); S(f's_cbranch_scc1 L_nr1_{nm}')
            vm = list(S.vm)
            S('buffer_load_dword v25, v23, s[56:59], 0 offen sc1')
            S.label(f'L_nr1_{nm}')
            S.vm = vm
        if t == last:
            S('s_cmp_lg_u32 s10, 7'); S(f's_cbranch_scc1 L_nr2_{nm}')
            vm = list(S.vm)
            S('s_waitcnt vmcnt(0)')
            S('v_cmp_ne_u32 vcc, s54, v25')
            S(f's_cbranch_vccz L_nr2_{nm}')
            poll(S, f'L_rf_{nm}', 23, 25, 56)
            S.label(f'L_nr2_{nm}')
            S.vm = vm
    def c_pre(self):
        S = self.S
        if not self.withB: return
        S.wait(vm=0)
        self.stx(2)
        S('s_barrier'); S('s_barrier')
    def d_mid(self, which):
        S = self.S
        if which == 'late':
            S('s_barrier'); S('s_barrier'); return
        S('s_mov_b32 s62, s60'); S('s_mov_b32 s63, s11')
        S('s_lshl_b32 s53, s11, 4'); S('s_add_u32 s53, s53, s55')
        self.sync_addr(61, 62, FLH)
        S('s_barrier')
        self.sync(f'L_ph_{self.name}', 5 if not self.withA else None)
        S('s_barrier')
    def d_tail(self, which):
        S = self.S
        if which == 'early':
            S('s_mov_b32 s62, s11'); CE.tilemap(S); S('s_lshr_b32 s63, s11, 1')
            S('s_lshl_b32 s53, s11, 3'); S('s_add_u32 s53, s53, s12')
            self.sync_addr(55, 62, FLP)
            S('s_barrier')
            self.sync(f'L_pp_{self.name}', 8)
            S('s_barrier')
            stamp_flush(S, 10, 10, 0, kern_idx=self.kidx)
            S('s_endpgm'); return
        CE.tilemap(S); S('s_mov_b32 s44, 0')
        CE.producer(S, 'E', self)
    def e_mid(self):
        self.S('s_barrier'); self.S('s_barrier')
    def d_pre(self):
        S = self.S
        S.wait(vm=0)
        self.stx(5)
        S('s_barrier'); S('s_barrier')
    def e_pre(self):
        S = self.S
        self.stx(8)
        S.wait(vm=0)
        stamp(S, 9)
        S('s_barrier'); S('s_barrier')
        self.stx(10)

from sched import I
I_dummy = I('buffer_store_dword v255, v255, s[56:59], 0 offen')

def ids(S):
    S('s_and_b32 s13, s2, 7'); S('s_lshr_b32 s14, s2, 3')

def gen(A, name='phF_kernel', stamps=False, withB=False, withA=False):
    S = Sched(A); S.name = name; S.stamps = stamps; S.sbase = 64
    F = Fz(S, name, withB, withA)
    kernel_header(A, name)
    S(f's_load_dwordx2 s[8:9], s[0:1], {KA_WS}')
    S(f's_load_dwordx2 s[4:5], s[0:1], {KA_X}')
    S(f's_load_dwordx2 s[6:7], s[0:1], {KA_WQKV if withA else KA_OUT}')
    prologue_guard(S, 256)
    if withA and CPF >= 100:
        S(f's_cmp_ge_u32 s2, {8*(CPF - 100)}'); S(f's_cbranch_scc1 L_ncpf_{name}')
        S('s_getpc_b64 s[60:61]')
        S.label(f'L_pc_{name}')
        S('v_lshlrev_b32 v254, 7, v0')
        S(f's_mov_b32 s62, L_exit_{name}-L_pc_{name}'); S('v_min_u32 v254, s62, v254')
        S('v_mov_b32 v255, s61'); S('v_add_co_u32 v254, vcc, s60, v254'); S('v_addc_co_u32 v255, vcc, 0, v255, vcc')
        S('global_load_dword v253, v[254:255], off')
        S.label(f'L_ncpf_{name}')
    S('v_lshrrev_b32 v1, 6, v0')
    ids(S)
    S('v_readfirstlane_b32 s10, v1')
    S('v_and_b32 v0, 63, v0')
    if withA: PA.tilemap(S)
    elif withB: B.tilemap(S)
    else: CE.tilemap(S); S('s_mov_b32 s44, 0')
    stamp(S, 0)
    if withA:
        S('s_cmp_ge_u32 s12, 15'); S(f's_cbranch_scc1 L_idle_{name}')
    S('s_cmp_ge_u32 s10, 4')
    S(f's_cbranch_scc1 L_prod_{name}')
    if withA and CPF and CPF < 100:
        S('s_cmp_lg_u32 s10, 0'); S(f's_cbranch_scc1 L_ncpf_{name}')
        S('s_getpc_b64 s[60:61]')
        S.label(f'L_pc_{name}')
        S('s_mul_i32 s62, s14, %d' % CPF); S('v_add_u32 v250, s62, v0'); S('v_lshlrev_b32 v250, 7, v250')
        S(f's_mov_b32 s62, L_exit_{name}-L_pc_{name}'); S('v_min_u32 v250, s62, v250')
        S('v_mov_b32 v251, s61'); S('v_add_co_u32 v250, vcc, s60, v250'); S('v_addc_co_u32 v251, vcc, 0, v251, vcc')
        S('s_mov_b64 exec, %d' % ((1 << CPF) - 1) if CPF < 7 else 's_mov_b32 exec_lo, 0x%x' % ((1 << CPF) - 1)); S('s_mov_b32 exec_hi, 0')
        S('global_load_dword v252, v[250:251], off')
        S('s_mov_b64 exec, -1')
        S.label(f'L_ncpf_{name}')
    if withA:
        PA.consumer(S, name, F)
        S.label(f'L_postA_{name}')
        S(f's_load_dwordx2 s[6:7], s[0:1], {KA_OUT}')
        ids(S); B.tilemap(S)
    if withB:
        B.attention(S, name, F)
        ids(S); CE.tilemap(S); S('s_mov_b32 s44, 0')
    CE.consumer(S, 'C', F)
    D.tilemap(S)
    D.consumer(S, name, F)
    CE.tilemap(S); S('s_mov_b32 s44, 0')
    CE.consumer(S, 'E', F)
    S.label(f'L_prod_{name}')
    S.hist = []; S.lds = []; S.vm = []; S.smem_pending = [('s', i) for i in range(4, 10)]
    if withA:
        PA.producer2(S, name, F)
        S.label(f'L_idle_{name}')
        S.hist = []; S.lds = []; S.vm = []; S.smem_pending = [('s', i) for i in range(4, 10)]
        PA.idle(S, name, F)
        S.label(f'L_help_{name}')
        S.hist = []; S.lds = []; S.vm = []; S.smem_pending = []
        ids(S); B.tilemap(S)
    if withB:
        B.helper(S, name, F)
        F.b_help_post()
        ids(S); B.tilemap(S); S('s_mov_b32 s62, s11'); S('s_mov_b32 s61, s12')
        ids(S); CE.tilemap(S); S('s_mov_b32 s44, 0')
    else:
        S('s_mov_b32 s54, 1')
    CE.producer(S, 'C', F)
    if not withB: srd_off(S, 56, 8, FL_OFF, FL_SZ)
    S('s_lshr_b32 s60, s11, 1')
    S('s_and_b32 s61, s11, 1'); S('s_lshl_b32 s61, s61, 3'); S('s_add_u32 s61, s61, s12')
    D.tilemap(S); S('s_mov_b32 s55, s33')
    D.producer(S, name, F)
    S.label(f'L_exit_{name}')
    S('s_endpgm')
    kernel_desc(A, name, 256, 102)
```

```python
import os
ESM = os.environ.get('ESM', '')
from common import *

CFG = {'C': dict(NSTEP=20, SPS=4, NS=5, DB=int(os.environ.get('DBC', '8'))),
       'E': dict(NSTEP=54, SPS=3, NS=int(os.environ.get('NSE', '10')), DB=int(os.environ.get('DBE', '6')))}
def lds_bytes(mode): c = CFG[mode]; return c['NS']*c['SPS']*5120
def threads(mode): return 256 + 64*CFG[mode]['SPS']

def gen(A, name='phC_kernel', mode='C', stamps=False, rot=int(os.environ.get('ROT','0'))):
    S = Sched(A); S.name = name; S.stamps = stamps
    kernel_header(A, name)
    S(f's_load_dwordx2 s[8:9], s[0:1], {KA_WS}')
    if mode == 'C': S(f's_load_dwordx2 s[4:5], s[0:1], {KA_X}')
    else: S(f's_load_dwordx2 s[4:5], s[0:1], {KA_OUT}')
    prologue_guard(S, 256)
    S('v_lshrrev_b32 v1, 6, v0')
    S('s_and_b32 s13, s2, 7'); S('s_lshr_b32 s14, s2, 3')
    S('v_readfirstlane_b32 s10, v1')
    S('v_and_b32 v0, 63, v0')
    tilemap(S)
    c = CFG[mode]; NST = c['NSTEP'] // c['SPS']
    if rot:
        S('s_and_b32 s16, s12, 3'); S('s_lshl_b32 s16, s16, 1'); S('s_add_u32 s16, s16, s11'); S('s_and_b32 s16, s16, 7')
        S(f's_mul_i32 s16, s16, {NST}'); S('s_lshr_b32 s44, s16, 3')
    else: S('s_mov_b32 s44, 0')
    stamp(S, 0)
    S('s_cmp_ge_u32 s10, 4')
    S(f's_cbranch_scc1 L_prod_{name}')
    consumer(S, mode)
    S.label(f'L_prod_{name}')
    S.hist = []; S.lds = []; S.vm = []; S.smem_pending = [('s', 8), ('s', 9), ('s', 4), ('s', 5)]
    producer(S, mode)
    S.label(f'L_exit_{name}')
    S('s_endpgm')
    kernel_desc(A, name, 128, 102)

def tilemap(S):
    S('s_and_b32 s11, s13, 3'); S('s_lshl_b32 s11, s11, 3'); S('s_and_b32 s15, s14, 7'); S('s_add_u32 s11, s11, s15')
    S('s_lshr_b32 s12, s13, 2'); S('s_lshl_b32 s12, s12, 2'); S('s_lshr_b32 s15, s14, 3'); S('s_add_u32 s12, s12, s15')

def producer(S, mode, F=None):
    c = CFG[mode]; NSTEP, SPS, NS = c['NSTEP'], c['SPS'], c['NS']; NST = NSTEP // SPS
    STG = SPS*5120
    S('s_sub_u32 s19, s10, 4')
    S('v_lshlrev_b32 v2, 4, v0')
    S(f's_mul_i32 s16, s12, {NSTEP}'); S('s_add_u32 s16, s16, s19'); S('s_mul_i32 s16, s16, 5120')
    S(f's_mul_i32 s17, s44, {STG}'); S('s_add_u32 s17, s17, s16')
    S(f's_add_u32 s26, s16, {NST*STG}')
    S(f's_mul_i32 s28, s19, 5120')
    so = F.e_slot if (F and mode == 'E') else (lambda sl: sl*STG)
    S('s_waitcnt lgkmcnt(0)')
    if mode == 'C': srd_off(S, 20, 8, WOF_OFF, WOF_SZ)
    else: srd_off(S, 20, 8, WDF_OFF, WDF_SZ)
    def issue(t):
        slot = t % NS
        S(f's_add_u32 m0, s28, {so(slot)}', tag=t)
        for f in range(4):
            S(f'buffer_load_dwordx4 v2, s[20:23], s17 offen' + (f' offset:{f*1024}' if f else '') + ' lds', tag=t)
        S(f's_add_u32 m0, s28, {so(slot) + 4096}'); S('s_add_u32 s18, s17, 4096')
        S(f'buffer_load_dwordx4 v2, s[20:23], s18 offen lds', tag=t)
        S(f's_add_u32 s17, s17, {STG}'); S('s_cmp_eq_u32 s17, s26'); S('s_cselect_b32 s17, s16, s17')
    npre = min(NS, NST)
    if F and (mode == 'E' or F.withB):
        n0 = int(os.environ.get('PRE' + mode, '6' if mode == 'E' else '2'))
        for t in range(n0): issue(t)
        n1 = min(npre, n0 + int(os.environ.get('MID' + mode, '4' if mode == 'E' else '0')))
        def mid():
            for t in range(n0, n1): issue(t)
        if mode == 'E': F.e_mid(mid)
        else: F.c_mid(mid)
        S.wait_tag(0)
        S('s_barrier')
        for t in range(n1, npre): issue(t)
    else:
        issue(0); issue(1)
        S.wait_tag(0)
        S('s_barrier')
        for t in range(2, npre): issue(t)
    for t in range(NST):
        if t + 1 < NST: S.wait_tag(t + 1)
        if F and mode == 'C': F.c_step(t)
        S('s_barrier')
        if t + NS < NST: issue(t + NS)
    if F and mode == 'C': return
    if not F: stamp(S, 1)
    if F: stamp_flush(S, 10, 10, 0, kern_idx=F.kidx)
    else: stamp_flush(S, 2, 10, 0, kern_idx=2 if mode == 'C' else 4)
    S('s_endpgm')

def consumer(S, mode, F=None):
    C_ = mode == 'C'
    c = CFG[mode]; NSTEP, SPS, NS, DB = c['NSTEP'], c['SPS'], c['NS'], c['DB']; NST = NSTEP // SPS
    STG = SPS*5120
    aW, vB, vRes, vHF, vSt = 1, 2, 3, 4, 5
    vH4 = 26; XS = 72
    T = 6
    RESR = 16
    ACC = 28
    OPA = 48
    RING = 88
    so = F.e_slot if (F and mode == 'E') else (lambda sl: sl*STG)
    if F and mode == 'E': RESR = F.KEEP
    acc = lambda nb: ACC + nb*4
    opa = lambda b, nb: OPA + b*20 + nb*4
    opb = lambda sg: RING + (sg % DB)*4
    S(f'v_lshlrev_b32 v{aW}, 4, v0')
    XE = int(os.environ.get('XE', '0'))
    if XE and not C_:
        S(f's_and_b32 s16, s11, {XE}'); S('s_lshl_b32 s16, s16, 2')
    else: S('s_lshl_b32 s16, s11, 2')
    S('s_add_u32 s16, s16, s10'); S(f's_mul_i32 s16, s16, {NSTEP*1024}')
    S(f'v_add_u32 v{vB}, s16, v{aW}')
    S(f's_mul_i32 s17, s44, {SPS*1024}')
    S('s_waitcnt lgkmcnt(0)')
    if C_: srd_off(S, 24, 8, OF_OFF, OF_SZ)
    else: srd_off(S, 24, 8, HP_OFF, HP_SZ)
    def bload(sg):
        kk = sg % SPS
        S(f'buffer_load_dwordx4 {v(opb(sg),4)}, v{vB}, s[24:27], s17 offen' + (f' offset:{kk*1024}' if kk else ''))
        if kk == SPS - 1:
            S(f's_add_u32 s17, s17, {SPS*1024}'); S(f's_cmp_eq_u32 s17, {NSTEP*1024}'); S('s_cselect_b32 s17, 0, s17')
    if F and mode == 'E': F.e_pre()
    if F and mode == 'C': F.c_pre()
    for sg in range(min(DB, NSTEP)): bload(sg)
    S(f'v_and_b32 v{T+1}, 15, v0')
    S(f'v_lshrrev_b32 v{T+2}, 4, v0')
    S('s_lshl_b32 s16, s11, 6'); S('s_lshl_b32 s18, s10, 4'); S('s_add_u32 s16, s16, s18')
    S(f'v_add_u32 v{T+3}, s16, v{T+1}')
    S(f'v_mul_u32_u24 v{vRes}, 1280, v{T+3}'); S('s_mul_i32 s18, s12, 160')
    S(f'v_lshl_add_u32 v{vRes}, v{T+2}, 3, v{vRes}'); S(f'v_add_u32 v{vRes}, s18, v{vRes}')
    S(f'v_lshrrev_b32 v{T+4}, 5, v{T+3}'); S(f'v_mul_u32_u24 v{T+4}, {40*1024}, v{T+4}')
    S(f'v_and_b32 v{T+5}, 31, v{T+3}'); S(f'v_lshl_add_u32 v{T+4}, v{T+5}, 4, v{T+4}')
    S(f'v_lshrrev_b32 v{T+5}, 1, v{T+2}'); S(f'v_lshl_add_u32 v{T+4}, v{T+5}, 9, v{T+4}')
    S(f'v_and_b32 v{T+5}, 1, v{T+2}'); S(f'v_lshl_add_u32 v{T+4}, v{T+5}, {10 if C_ else 3}, v{T+4}')
    S(f's_mul_i32 s18, s12, {5*1024}'); S(f'v_add_u32 v{vHF}, s18, v{T+4}')
    if C_:
        S(f'v_mov_b32 v{T+4}, 0x40000000'); S(f'v_cmp_eq_u32 vcc, 0, v{T+5}'); S(f'v_cndmask_b32 v{vH4}, v{T+4}, v{vHF}, vcc')
        S('s_lshl_b32 s18, s11, 2'); S('s_add_u32 s18, s18, s10'); S('s_lshl_b32 s18, s18, 3'); S('s_add_u32 s18, s18, s12'); S('s_lshl_b32 s18, s18, 7')
        S(f'v_lshl_add_u32 v{vSt}, v{T+1}, 3, s18')
        S(f'v_cmp_eq_u32 vcc, 0, v{T+2}'); S(f'v_cndmask_b32 v{vSt}, v{T+4}, v{vSt}, vcc')
        srd(S, 32, 4, 2048*1280)
        srd_off(S, 40, 8, ST_OFF, ST_SZ)
    else:
        srd(S, 32, 6 if F else 4, 2048*1280)
    if C_ or not F: srd_off(S, 36, 8, HF_OFF, HF_SZ)
    def areads(sg):
        t, kk = divmod(sg, SPS)
        off = so(t % NS) + kk*5120
        return [f'ds_read_b128 {v(opa(sg&1,nb),4)}, v{[aW, T+9, T+8][(off + nb*1024) >> 16]} offset:{(off + nb*1024) & 0xffff}' for nb in range(5)]
    S(f'v_add_u32 v{T+9}, 65536, v{aW}')
    if F and mode == 'E': S(f'v_add_u32 v{T+8}, 131072, v{aW}')
    if not F: stamp(S, 1)
    S('s_barrier')
    if F: F.st(S, 3 if C_ else 11)
    else: stamp(S, 2)
    for x in areads(0): S(x)
    for sg in range(NSTEP):
        if sg % SPS == SPS - 1:
            S.wait(lgkm=0)
            S('s_barrier')
        fl = areads(sg + 1) if sg + 1 < NSTEP else []
        for nb in range(5):
            S(f'v_mfma_f32_16x16x32_bf16 {v(acc(nb),4)}, {v(opa(sg&1,nb),4)}, {v(opb(sg),4)}, {v(acc(nb),4) if sg else "0"}')
            if fl: S(fl[nb])
        if sg + DB < NSTEP: bload(sg + DB)
        if sg == NSTEP - 4:
            for nb in range(5):
                if C_: S(f'buffer_load_dwordx2 {v(RESR+2*nb,2)}, v{vRes}, s[32:35], 0 offen offset:{32*nb}')
                elif not F:
                    S(f's_mov_b32 s30, {1024*nb}')
                    S(f'buffer_load_dwordx2 {v(RESR+2*nb,2)}, v{vHF}, s[36:39], s30 offen')
    if F: F.st(S, 4 if C_ else 12)
    else: stamp(S, 3)
    U = OPA
    PK = OPA + 12
    if F and C_: PK = F.KEEP
    sm = ' sc1' if (F and C_) else ''
    sum_, ssq = U + 8, U + 9
    for nb in range(5):
        a_ = acc(nb)
        S(f'v_cvt_pk_bf16_f32 v{U}, v{a_}, v{a_+1}'); S(f'v_cvt_pk_bf16_f32 v{U+1}, v{a_+2}, v{a_+3}')
        for k in range(2):
            S(f'v_lshlrev_b32 v{a_+2*k}, 16, v{U+k}'); S(f'v_and_b32 v{a_+2*k+1}, 0xffff0000, v{U+k}')
            S(f'v_lshlrev_b32 v{U+2+2*k}, 16, v{RESR+2*nb+k}'); S(f'v_and_b32 v{U+3+2*k}, 0xffff0000, v{RESR+2*nb+k}')
        for h in range(2):
            S(f'v_pk_add_f32 {v(a_+2*h,2)}, {v(a_+2*h,2)}, {v(U+2+2*h,2)}')
        S(f'v_cvt_pk_bf16_f32 v{PK+2*nb}, v{a_}, v{a_+1}'); S(f'v_cvt_pk_bf16_f32 v{PK+2*nb+1}, v{a_+2}, v{a_+3}')
        if C_:
            if nb in (1, 3, 4):
                X = XS + 4*(nb >> 1); a0 = PK + 2*(nb - 1 if nb < 4 else nb); b0 = PK + 2*nb
                for k in range(2): S(f'v_mov_b32 v{X+k}, v{a0+k}'); S(f'v_mov_b32 v{X+2+k}, v{b0+k}')
                for k in range(2): S(f'v_permlane16_swap_b32 v{X+k}, v{X+2+k}')
                S(f's_mov_b32 s30, {1024*(nb & ~1)}')
                S(f'buffer_store_dwordx4 {v(X,4)}, v{vHF if nb < 4 else vH4}, s[36:39], s30 offen' + sm)
            for k in range(2):
                S(f'v_lshlrev_b32 v{a_+2*k}, 16, v{PK+2*nb+k}'); S(f'v_and_b32 v{a_+2*k+1}, 0xffff0000, v{PK+2*nb+k}')
            for k in range(4):
                if nb == 0 and k == 0:
                    S(f'v_mov_b32 v{sum_}, v{a_}'); S(f'v_mul_f32 v{ssq}, v{a_}, v{a_}')
                else:
                    S(f'v_add_f32 v{sum_}, v{sum_}, v{a_+k}'); S(f'v_fmac_f32 v{ssq}, v{a_+k}, v{a_+k}')
        else:
            S(f'buffer_store_dwordx2 {v(PK+2*nb,2)}, v{vRes}, s[32:35], 0 offen offset:{32*nb}' + ESM)
    if C_:
        for x in (sum_, ssq):
            S(f'v_mov_b32 v{U}, v{x}'); S(f'v_permlane32_swap_b32 v{x}, v{U}'); S(f'v_add_f32 v{x}, v{x}, v{U}')
            S(f'v_mov_b32 v{U}, v{x}'); S(f'v_permlane16_swap_b32 v{x}, v{U}'); S(f'v_add_f32 v{x}, v{x}, v{U}')
        S(f'buffer_store_dwordx2 {v(sum_,2)}, v{vSt}, s[40:43], 0 offen' + sm)
    if F and C_: return
    if F:
        stamp_flush(S, 13, 10, 0, kern_idx=F.kidx); S('s_endpgm'); return
    stamp(S, 4)
    stamp_flush(S, 5, 10, 0, vtmp=(1, 2), kern_idx=2 if C_ else 4)
    S('s_endpgm')

if __name__ == '__main__':
    for mode in 'CE':
        A = Asm()
        A.raw(f'; @launch kernel=ph{mode}_kernel grid=(256,1,1) block=({threads(mode)},1,1) lds={lds_bytes(mode)}')
        A.raw('.amdgcn_target "amdgcn-amd-amdhsa--gfx950"')
        gen(A, name=f'ph{mode}_kernel', mode=mode)
        open(f't/{mode}.s','w').write(A.text())
```

```python
import os
from common import *
import phaseCE1 as CE, phaseD2 as D, phaseB as B, phaseA as PA

LDS_F = D.LDS_D
THREADS_F = 512
NOSYNC = os.environ.get('NOSYNC', '')
CPF = int(os.environ.get('CPF', '15'))
PUSH = int(os.environ.get('PUSH', '0'))

class Fz:
    KEEP = 200
    kidx = 2
    def __init__(self, S, name, withB, withA=False): self.S = S; self.name = name; self.withB = withB; self.withA = withA
    def stx(self, i):
        if not self.withA: stamp(self.S, i)
    def st(self, S, i): stamp(S, i)
    def e_slot(self, sl):
        if CE.CFG['E']['NS'] == 6: return sl*15360 if sl < 5 else 6*D.STG
        return sl*15360 if sl < 5 else (9*15360 if sl == 5 else (sl - 1)*15360)
    def sync_addr(self, own, grp, base):
        S = self.S
        if PUSH:
            S('v_and_b32 v22, 15, v0')
            S(f's_lshl_b32 s52, s53, 7')
            if base: S(f's_add_u32 s52, s52, {base}')
            S('v_lshlrev_b32 v20, 7, v22')
            S('v_lshl_add_u32 v22, v22, 2, s52')
            S(f's_lshl_b32 s52, s{grp}, 11'); S(f's_lshl_b32 s53, s{own}, 2'); S('s_add_u32 s52, s52, s53')
            if base: S(f's_add_u32 s52, s52, {base}')
            S('v_add_u32 v20, s52, v20')
            return
        S(f's_mul_i32 s52, s{grp}, {FGRP}'); S(f's_mul_i32 s53, s{own}, {FSTR}'); S('s_add_u32 s52, s52, s53')
        if base: S(f's_add_u32 s52, s52, {base}')
        S('v_mov_b32 v20, s52')
        S(f's_mul_i32 s52, s{grp+1}, {FGRP}')
        if base: S(f's_add_u32 s52, s52, {base}')
        S('v_and_b32 v22, 15, v0'); S(f'v_mul_u32_u24 v22, {FSTR}, v22'); S('v_add_u32 v22, s52, v22')
    def sync(self, lab, si):
        S = self.S
        if si is not None: stamp(S, si)
        set_flag(S, 20, 21, 56, mask='0xffff' if PUSH else '1')
        poll(S, lab, 22, 21, 56)
        if si is not None: stamp(S, si + 1)
    def zero_flags(self):
        S = self.S
        srd_off(S, 56, 8, FL_OFF, FL_SZ)
        S('s_and_b32 s60, s2, 7'); S('s_lshr_b32 s61, s2, 3')
        S('v_mov_b32 v30, 0x40000000'); S('v_mov_b32 v32, 0')
        S('v_and_b32 v31, 15, v0'); S(f'v_mul_u32_u24 v31, {FGRP}, v31')
        def lane(k, sg):
            S(f's_mov_b64 exec, {1 << k}'); S(f'v_mov_b32 v30, s{sg}')
        S('s_and_b32 s62, s60, 1'); S('s_lshl_b32 s62, s62, 3'); S('s_and_b32 s63, s61, 7'); S('s_add_u32 s62, s62, s63')
        S('s_lshr_b32 s63, s60, 1'); S('s_lshl_b32 s63, s63, 2'); S('s_lshr_b32 s52, s61, 3'); S('s_add_u32 s63, s63, s52')
        S(f's_mul_i32 s52, s62, {FGRP}'); S(f's_mul_i32 s53, s63, {FSTR}'); S('s_add_u32 s52, s52, s53')
        S(f's_add_u32 s53, s52, {FLA}'); lane(0, 53)
        S(f's_add_u32 s53, s52, {FLP}'); lane(1, 53)
        S(f's_mul_i32 s52, s62, {FSTR}'); S(f's_add_u32 s52, s52, {FLW}')
        S('s_cmp_eq_u32 s63, 15'); S('s_cselect_b32 exec_lo, 0xffff0000, 0'); S('s_mov_b32 exec_hi, 0')
        S('v_add_u32 v30, s52, v31')
        S('s_lshr_b32 s52, s61, 4'); S('s_lshl_b32 s53, s60, 1'); S('s_add_u32 s52, s52, s53'); S(f's_mul_i32 s52, s52, {FSTR}')
        S('s_and_b32 s53, s61, 15'); S(f's_mul_i32 s53, s53, {FGRP}'); S('s_add_u32 s52, s52, s53'); S(f's_add_u32 s52, s52, {FLO}'); lane(2, 52)
        S('s_and_b32 s62, s60, 3'); S('s_lshl_b32 s62, s62, 3'); S('s_and_b32 s63, s61, 7'); S('s_add_u32 s62, s62, s63')
        S('s_lshr_b32 s63, s60, 2'); S('s_lshl_b32 s63, s63, 2'); S('s_lshr_b32 s52, s61, 3'); S('s_add_u32 s63, s63, s52')
        S('s_and_b32 s52, s62, 1'); S('s_lshl_b32 s52, s52, 3'); S('s_add_u32 s52, s52, s63'); S(f's_mul_i32 s52, s52, {FSTR}')
        S('s_lshr_b32 s53, s62, 1'); S(f's_mul_i32 s53, s53, {FGRP}'); S('s_add_u32 s52, s52, s53')
        if FLH: S(f's_add_u32 s52, s52, {FLH}')
        lane(3, 52)
        S('s_lshr_b32 s53, s62, 1'); S(f's_mul_i32 s53, s53, {FSTR}'); S(f's_add_u32 s53, s53, {FLR}')
        S('s_and_b32 s52, s62, 1'); S('s_or_b32 s52, s52, s63'); S('s_cmp_eq_u32 s52, 0')
        S('s_cselect_b32 exec_hi, 0xffff, 0'); S('s_mov_b32 exec_lo, 0')
        S('v_add_u32 v30, s53, v31')
        S('s_mov_b64 exec, -1')
        S('buffer_store_dword v32, v30, s[56:59], 0 offen sc1')
    def a_help_pre(self):
        S = self.S
        srd_off(S, 56, 8, FL_OFF, FL_SZ); S('s_mov_b32 s54, 1')
        S('v_lshrrev_b32 v70, 4, v0'); S('v_min_u32 v70, 2, v70')
        S('v_bfe_u32 v71, v0, 1, 3'); S('v_min_u32 v71, 2, v71')
        S('v_cmp_eq_u32 vcc, 0, v70'); S('v_cndmask_b32 v71, v71, 0, vcc')
        S('v_sub_u32 v71, s11, v71'); S('v_max_i32 v71, 0, v71')
        S('v_and_b32 v72, 1, v0'); S('s_mul_i32 s52, s12, 5'); S('v_lshl_add_u32 v72, v72, 2, s52'); S('v_lshrrev_b32 v72, 4, v72')
        S('v_mad_u32_u24 v72, v70, 5, v72')
        S(f'v_mul_u32_u24 v71, {FGRP}, v71'); S(f'v_mul_u32_u24 v72, {FSTR}, v72'); S('v_add_u32 v71, v71, v72')
        S(f'v_add_u32 v74, {FLA}, v71')
        S('s_and_b32 s60, s2, 7'); S('s_lshr_b32 s61, s2, 3')
        S('s_and_b32 s62, s60, 1'); S('s_lshl_b32 s62, s62, 3'); S('s_and_b32 s63, s61, 7'); S('s_add_u32 s62, s62, s63')
        S('s_lshr_b32 s63, s60, 1'); S('s_lshl_b32 s63, s63, 2'); S('s_lshr_b32 s52, s61, 3'); S('s_add_u32 s63, s63, s52')
        S(f's_mul_i32 s52, s62, {FGRP}'); S(f's_mul_i32 s53, s63, {FSTR}'); S('s_add_u32 s52, s52, s53'); S(f's_add_u32 s52, s52, {FLA}')
        S('v_mov_b32 v73, s52'); S('s_mov_b32 s82, 1'); S('s_mov_b32 s83, 0')
        S('s_cmp_lg_u32 s63, 15'); S(f's_cbranch_scc1 L_nidle_{self.name}')
        S(f's_mul_i32 s52, s62, {FSTR}'); S(f's_add_u32 s52, s52, {FLW}')
        S('v_and_b32 v73, 15, v0'); S(f'v_mul_u32_u24 v73, {FGRP}, v73'); S('v_add_u32 v73, s52, v73'); S('s_mov_b32 s82, 0xffff')
        S.label(f'L_nidle_{self.name}')
        S(f's_mul_i32 s52, s11, {FGRP}'); S(f's_add_u32 s52, s52, {FLW}')
        S('v_and_b32 v75, 15, v0'); S(f'v_mul_u32_u24 v75, {FSTR}, v75'); S('v_add_u32 v75, s52, v75')
    def a_help_sync(self, n, u):
        S = self.S; nm = self.name
        S('s_barrier')
        if n == 0:
            S('s_cmp_lg_u32 s10, 7'); S(f's_cbranch_scc1 L_nsa_{nm}')
            stamp(S, 5)
            set_flag(S, 73, 76, 56, mask='s[82:83]')
            poll(S, f'L_pa_{nm}', 74, 76, 56)
            stamp(S, 6)
            S.label(f'L_nsa_{nm}')
        S('s_barrier')
    def a_help_post(self, n, u):
        S = self.S; nm = self.name
        if n == 0:
            S('s_cmp_lg_u32 s10, 7'); S(f's_cbranch_scc1 L_nw1_{nm}')
            S('buffer_load_dword v77, v75, s[56:59], 0 offen sc1')
            S('s_waitcnt vmcnt(0)')
            S('v_cmp_ne_u32 vcc, s54, v77')
            S(f's_cbranch_vccz L_nw1_{nm}')
            poll(S, f'L_pw_{nm}', 75, 77, 56)
            S.label(f'L_nw1_{nm}')
            S.vm = []
    def b_pre(self):
        S = self.S
        S.wait(vm=0)
        stamp(S, 5)
        S('s_barrier'); S('s_barrier')
        stamp(S, 10)
    def b_help_pre(self):
        S = self.S
        srd_off(S, 56, 8, FL_OFF, FL_SZ); S('s_mov_b32 s54, 1')
    def b_help_post(self):
        S = self.S
        stamp(S, 1)
        self.rstores = [I_dummy]
        S.vm = [I_dummy]
        S('s_barrier')
    def c_mid(self, mid):
        S = self.S; nm = self.name
        S('s_lshr_b32 s63, s11, 1')
        S('s_lshl_b32 s53, s11, 3'); S('s_add_u32 s53, s53, s12')
        self.sync_addr(61, 62, FLO)
        S(f'v_add_u32 v23, {FLR - FLO}, v22')
        if PUSH:
            S('s_lshl_b32 s52, s63, 2'); S(f's_add_u32 s52, s52, {FLR}')
            S('v_lshlrev_b32 v24, 7, v0'); S('v_add_u32 v24, s52, v24')
        else:
            S(f's_mul_i32 s52, s63, {FSTR}'); S(f's_add_u32 s52, s52, {FLR}')
            S('v_and_b32 v24, 15, v0'); S(f'v_mul_u32_u24 v24, {FGRP}, v24'); S('v_add_u32 v24, s52, v24')
        S.wait(vm=len(S.vm) - 1)
        stamp(S, 2)
        S('s_barrier')
        vm = list(S.vm)
        S('s_cmp_eq_u32 s10, 7'); S(f's_cbranch_scc1 L_w7o_{nm}')
        mid()
        vm2 = list(S.vm)
        S(f's_branch L_nso_{nm}')
        S.label(f'L_w7o_{nm}')
        S.vm = list(vm)
        self.sync(f'L_po_{nm}', 3)
        S('s_and_b32 s52, s11, 1'); S('s_or_b32 s52, s52, s12'); S('s_cmp_lg_u32 s52, 0'); S(f's_cbranch_scc1 L_nld_{nm}')
        S('v_mov_b32 v21, s54')
        if PUSH:
            for k in range(4):
                S(f's_mov_b32 s52, {8192*k}')
                S('buffer_store_dword v21, v24, s[56:59], s52 offen sc1')
        else:
            S('s_mov_b64 exec, 0xffff')
            S('buffer_store_dword v21, v24, s[56:59], 0 offen sc1')
            S('s_mov_b64 exec, -1')
        S.label(f'L_nld_{nm}')
        S.vm = list(vm)
        mid()
        S.label(f'L_nso_{nm}')
        S.vm = vm2
        S('s_barrier')
    def c_step(self, t):
        if not self.withB: return
        S = self.S; nm = self.name
        last = CE.CFG['C']['NSTEP'] // CE.CFG['C']['SPS'] - 1
        if t == last - 1:
            S('s_cmp_lg_u32 s10, 7'); S(f's_cbranch_scc1 L_nr1_{nm}')
            vm = list(S.vm)
            S('buffer_load_dword v25, v23, s[56:59], 0 offen sc1')
            S.label(f'L_nr1_{nm}')
            S.vm = vm
        if t == last:
            S('s_cmp_lg_u32 s10, 7'); S(f's_cbranch_scc1 L_nr2_{nm}')
            vm = list(S.vm)
            S('s_waitcnt vmcnt(0)')
            S('v_cmp_ne_u32 vcc, s54, v25')
            S(f's_cbranch_vccz L_nr2_{nm}')
            poll(S, f'L_rf_{nm}', 23, 25, 56)
            S.label(f'L_nr2_{nm}')
            S.vm = vm
    def c_pre(self):
        S = self.S
        if not self.withB: return
        S.wait(vm=0)
        self.stx(2)
        S('s_barrier'); S('s_barrier')
    def d_mid(self, which):
        S = self.S
        if which == 'late':
            S('s_barrier'); S('s_barrier'); return
        S('s_mov_b32 s62, s60'); S('s_mov_b32 s63, s11')
        S('s_lshl_b32 s53, s11, 4'); S('s_add_u32 s53, s53, s55')
        self.sync_addr(61, 62, FLH)
        S('s_barrier')
        self.sync(f'L_ph_{self.name}', 5 if not self.withA else None)
        S('s_barrier')
    def d_tail(self, which):
        S = self.S
        if which == 'early':
            S('s_mov_b32 s62, s11'); CE.tilemap(S); S('s_lshr_b32 s63, s11, 1')
            S('s_lshl_b32 s53, s11, 3'); S('s_add_u32 s53, s53, s12')
            self.sync_addr(55, 62, FLP)
            S('s_barrier')
            self.sync(f'L_pp_{self.name}', 8)
            S('s_barrier')
            stamp_flush(S, 10, 10, 0, kern_idx=self.kidx)
            S('s_endpgm'); return
        CE.tilemap(S); S('s_mov_b32 s44, 0')
        CE.producer(S, 'E', self)
    def e_mid(self, mid):
        self.S('s_barrier'); mid(); self.S('s_barrier')
    def d_pre(self):
        S = self.S
        S.wait(vm=0)
        self.stx(5)
        S('s_barrier'); S('s_barrier')
    def e_pre(self):
        S = self.S
        self.stx(8)
        S.wait(vm=0)
        stamp(S, 9)
        S('s_barrier'); S('s_barrier')
        self.stx(10)

from sched import I
I_dummy = I('buffer_store_dword v255, v255, s[56:59], 0 offen')

def ids(S):
    S('s_and_b32 s13, s2, 7'); S('s_lshr_b32 s14, s2, 3')

def gen(A, name='phF_kernel', stamps=False, withB=False, withA=False):
    S = Sched(A); S.name = name; S.stamps = stamps; S.sbase = 64
    F = Fz(S, name, withB, withA)
    kernel_header(A, name)
    S(f's_load_dwordx2 s[8:9], s[0:1], {KA_WS}')
    S(f's_load_dwordx2 s[4:5], s[0:1], {KA_X}')
    S(f's_load_dwordx2 s[6:7], s[0:1], {KA_WQKV if withA else KA_OUT}')
    prologue_guard(S, 256)
    if withA and CPF >= 100:
        S(f's_cmp_ge_u32 s2, {8*(CPF - 100)}'); S(f's_cbranch_scc1 L_ncpf_{name}')
        S('s_getpc_b64 s[60:61]')
        S.label(f'L_pc_{name}')
        S('v_lshlrev_b32 v254, 7, v0')
        S(f's_mov_b32 s62, L_exit_{name}-L_pc_{name}'); S('v_min_u32 v254, s62, v254')
        S('v_mov_b32 v255, s61'); S('v_add_co_u32 v254, vcc, s60, v254'); S('v_addc_co_u32 v255, vcc, 0, v255, vcc')
        S('global_load_dword v253, v[254:255], off')
        S.label(f'L_ncpf_{name}')
    S('v_lshrrev_b32 v1, 6, v0')
    ids(S)
    S('v_readfirstlane_b32 s10, v1')
    S('v_and_b32 v0, 63, v0')
    if withA: PA.tilemap(S)
    elif withB: B.tilemap(S)
    else: CE.tilemap(S); S('s_mov_b32 s44, 0')
    stamp(S, 0)
    if withA:
        S('s_cmp_ge_u32 s12, 15'); S(f's_cbranch_scc1 L_idle_{name}')
    S('s_cmp_ge_u32 s10, 4')
    S(f's_cbranch_scc1 L_prod_{name}')
    if withA and CPF and CPF < 100:
        S('s_cmp_lg_u32 s10, 0'); S(f's_cbranch_scc1 L_ncpf_{name}')
        S('s_getpc_b64 s[60:61]')
        S.label(f'L_pc_{name}')
        S('s_mul_i32 s62, s14, %d' % CPF); S('v_add_u32 v250, s62, v0'); S('v_lshlrev_b32 v250, 7, v250')
        S(f's_mov_b32 s62, L_exit_{name}-L_pc_{name}'); S('v_min_u32 v250, s62, v250')
        S('v_mov_b32 v251, s61'); S('v_add_co_u32 v250, vcc, s60, v250'); S('v_addc_co_u32 v251, vcc, 0, v251, vcc')
        S('s_mov_b64 exec, %d' % ((1 << CPF) - 1) if CPF < 7 else 's_mov_b32 exec_lo, 0x%x' % ((1 << CPF) - 1)); S('s_mov_b32 exec_hi, 0')
        S('global_load_dword v252, v[250:251], off')
        S('s_mov_b64 exec, -1')
        S.label(f'L_ncpf_{name}')
    if withA:
        PA.consumer(S, name, F)
        S.label(f'L_postA_{name}')
        S(f's_load_dwordx2 s[6:7], s[0:1], {KA_OUT}')
        ids(S); B.tilemap(S)
    if withB:
        B.attention(S, name, F)
        ids(S); CE.tilemap(S); S('s_mov_b32 s44, 0')
    CE.consumer(S, 'C', F)
    D.tilemap(S)
    D.consumer(S, name, F)
    CE.tilemap(S); S('s_mov_b32 s44, 0')
    CE.consumer(S, 'E', F)
    S.label(f'L_prod_{name}')
    S.hist = []; S.lds = []; S.vm = []; S.smem_pending = [('s', i) for i in range(4, 10)]
    if withA:
        PA.producer2(S, name, F)
        S.label(f'L_idle_{name}')
        S.hist = []; S.lds = []; S.vm = []; S.smem_pending = [('s', i) for i in range(4, 10)]
        PA.idle(S, name, F)
        S.label(f'L_help_{name}')
        S.hist = []; S.lds = []; S.vm = []; S.smem_pending = []
        ids(S); B.tilemap(S)
    if withB:
        B.helper(S, name, F)
        F.b_help_post()
        ids(S); B.tilemap(S); S('s_mov_b32 s62, s11'); S('s_mov_b32 s61, s12')
        ids(S); CE.tilemap(S); S('s_mov_b32 s44, 0')
    else:
        S('s_mov_b32 s54, 1')
    CE.producer(S, 'C', F)
    if not withB: srd_off(S, 56, 8, FL_OFF, FL_SZ)
    S('s_lshr_b32 s60, s11, 1')
    S('s_and_b32 s61, s11, 1'); S('s_lshl_b32 s61, s61, 3'); S('s_add_u32 s61, s61, s12')
    D.tilemap(S); S('s_mov_b32 s55, s33')
    D.producer(S, name, F)
    S.label(f'L_exit_{name}')
    S('s_endpgm')
    kernel_desc(A, name, 256, 102)
```

```python
from asmlib import *
from sched import Sched

KN = 'sequential_preLN__sliding_block__glu_gated_bilinear__prompt'
KA_X, KA_WQKV, KA_WO, KA_BX, KA_WG, KA_WU, KA_WD, KA_OUT, KA_DBG, KA_WS = 0, 8, 16, 24, 32, 40, 48, 56, 64, 72
QKV_OFF = 0;          QKV_SZ = 240*2048*16
OF_OFF  = 0x800000;   OF_SZ = 128*20*1024
HF_OFF  = 0xB00000;   HF_SZ = 64*40*1024
ST_OFF  = 0xE00000;   ST_SZ = 2048*8*8
CS_OFF  = 0xE40000;   CS_SZ = 5*3456*4
HP_OFF  = 0x1000000;  HP_SZ = 128*54*1024
WGU_OFF = 0x1800000; WGU_SZ = 108*40*1024
WDF_OFF = 0x1D00000; WDF_SZ = 8*54*5*1024
WOF_OFF = 0x2000000; WOF_SZ = 8*20*5*1024
import os
FSTR = int(os.environ.get('FSTR', '128'))
FGRP = max(128, 16*FSTR)
PAIR = int(os.environ.get('PAIR', '0'))
FL_OFF = 0x2100000; FL_SZ = 6*16*FGRP + 3*16*32768
FLH = 0; FLP = 16*FGRP; FLO = 32*FGRP; FLR = 48*FGRP; FLA = 64*FGRP; FLW = 80*FGRP
if PAIR: FLO = 96*FGRP; FLH = FLO + 16*32768; FLP = FLH + 16*32768
S_, D_, F_ = 2048, 640, 1728

def srd_off(S, d, base, off, nbytes):
    if off:
        S(f's_add_u32 s{d}, s{base}, {off}')
        S(f's_addc_u32 s{d+1}, s{base+1}, 0')
        S(f's_and_b32 s{d+1}, s{d+1}, 0xffff')
    else:
        S(f's_mov_b32 s{d}, s{base}')
        S(f's_and_b32 s{d+1}, s{base+1}, 0xffff')
    S(f's_mov_b32 s{d+2}, {nbytes}')
    S(f's_mov_b32 s{d+3}, 0x00020000')

class LdsAddr:
    def __init__(self, S, regs):
        self.S = S; self.regs = regs
    def finish(self):
        for k in range(1, len(self.regs)):
            self.S(f'v_add_u32 v{self.regs[k]}, {65536*k}, v{self.regs[0]}')
    def at(self, c):
        k = c >> 16
        return f'v{self.regs[k]} offset:{c & 0xffff}' if (c & 0xffff) else f'v{self.regs[k]}'

def bf16_round(S, dst, src):
    S(f'v_cvt_pk_bf16_f32 v{dst}, v{src}, v{src}')
    S(f'v_lshlrev_b32 v{dst}, 16, v{dst}')

def interleave(S, mfmas, fillers, start=0):
    n = len(mfmas); m = len(fillers); k = 0
    for i, mf in enumerate(mfmas):
        S(mf)
        upto = (m * (i + 1) + n - 1) // n
        while k < min(upto, m):
            f = fillers[k]; k += 1
            if callable(f): f()
            elif isinstance(f, tuple): S(f[0], tag=f[1])
            else: S(f)
    while k < m:
        f = fillers[k]; k += 1
        if callable(f): f()
        elif isinstance(f, tuple): S(f[0], tag=f[1])
        else: S(f)


def prologue_guard(S, nwg):
    S(f's_cmp_ge_u32 s2, {nwg}')
    S('s_cbranch_scc1 L_exit_%s' % S.name)

def stamp(S, idx):
    if not getattr(S, 'stamps', False): return
    S('s_memtime s[90:91]')
    if idx == 0: S('s_memrealtime s[88:89]')
    S('s_waitcnt lgkmcnt(0)')
    S(f's_mov_b32 s{getattr(S, "sbase", 92)+idx}, s90')
    if idx == 0: S('s_mov_b32 s99, s88')

def stamp_flush(S, n, wave_sgpr, slot_base, vtmp=(1,2), kern_idx=0):
    if not getattr(S, 'stamps', False): return
    S('s_load_dwordx2 s[84:85], s[0:1], 72')
    S('s_memrealtime s[88:89]')
    S('s_memtime s[90:91]')
    S('s_waitcnt lgkmcnt(0)')
    S('s_mov_b32 s100, s88')
    S('s_mov_b32 s101, s90')
    S(f's_add_u32 s84, s84, {0x8000000 + kern_idx*0x100000}')
    S('s_addc_u32 s85, s85, 0')
    S('s_and_b32 s85, s85, 0xffff')
    S('s_mov_b32 s86, 0x100000')
    S('s_mov_b32 s87, 0x00020000')
    S(f's_lshl_b32 s88, s2, 3')
    S(f's_add_u32 s88, s88, s{wave_sgpr}')
    S(f's_lshl_b32 s88, s88, 6')
    B = 64
    S(f'v_mov_b32 v{B+16}, s88')
    src = {i: getattr(S, 'sbase', 92) + i for i in range(n)}; src.update({13: 99, 14: 100, 15: 101})
    for i in range(16):
        S(f'v_mov_b32 v{B+i}, s{src[i]}' if i in src else f'v_mov_b32 v{B+i}, 0')
    S('s_mov_b64 exec, 1')
    for k in range(4):
        S(f'buffer_store_dwordx4 v[{B+4*k}:{B+4*k+3}], v{B+16}, s[84:87], 0 offen offset:{16*k}')
    S('s_mov_b64 exec, -1')

def poll(S, lab, vaddr, vtmp, srd_, cnt=30):
    S(f's_mov_b32 s{cnt}, 0')
    S.label(lab)
    S(f'buffer_load_dword v{vtmp}, v{vaddr}, s[{srd_}:{srd_+3}], 0 offen sc1')
    S.wait(vm=0)
    S(f'v_cmp_ne_u32 vcc, s54, v{vtmp}')
    S(f's_cbranch_vccz {lab}_ok')
    S(f's_add_u32 s{cnt}, s{cnt}, 1')
    S(f's_cmp_lt_u32 s{cnt}, 0x4000')
    S(f's_cbranch_scc1 {lab}')
    S.label(lab + '_ok')

PSL = int(os.environ.get('PSL', '7'))
def poll2(S, lab, vaddr, va, vb, srd_, cnt=52):
    ld = lambda r: S(f'buffer_load_dword v{r}, v{vaddr}, s[{srd_}:{srd_+3}], 0 offen sc1')
    S(f's_mov_b32 s{cnt}, 0')
    vm = list(S.vm)
    ld(va)
    if PSL: S(f's_sleep {PSL}')
    S.label(lab)
    ld(vb)
    S('s_waitcnt vmcnt(1)')
    S(f'v_cmp_ne_u32 vcc, s54, v{va}')
    S(f's_cbranch_vccz {lab}_ok')
    S.vm = []
    ld(va)
    S('s_waitcnt vmcnt(1)')
    S(f'v_cmp_ne_u32 vcc, s54, v{vb}')
    S(f's_cbranch_vccz {lab}_ok')
    S.vm = []
    S(f's_add_u32 s{cnt}, s{cnt}, 1')
    S(f's_cmp_lt_u32 s{cnt}, 0x2000')
    S(f's_cbranch_scc1 {lab}')
    S.label(lab + '_ok')
    S.vm = []

def set_flag(S, vaddr, vtmp, srd_, mask='1'):
    S(f'v_mov_b32 v{vtmp}, s54')
    S(f's_mov_b64 exec, {mask}')
    S.nosmod = True
    S(f'buffer_store_dword v{vtmp}, v{vaddr}, s[{srd_}:{srd_+3}], 0 offen sc1')
    S('s_mov_b64 exec, -1')
```

```python
import os
from common import *
import phaseR

KP0 = 0; PSTR = 6208
VP0 = 31232
AUX = 62464
LDS_B0 = AUX + 6656
MERGE = int(os.environ.get('MERGE', '1'))
LDS_B = LDS_B0 + (3*16384 if MERGE else 0)
THREADS_B = 512 if MERGE else 256
RSMOD = os.environ.get('RSMOD', '')
WOA = int(os.environ.get('WOA', '1'))
NEG = 0xF149F2CA
TAILX = 155648

QKP = int(os.environ.get('QKP', '0'))
PKS = int(os.environ.get('PKS', '1'))
def gen(A, name='phB_kernel', stamps=False, nthreads=256):
    S = Sched(A); S.name = name; S.stamps = stamps
    kernel_header(A, name)
    S(f's_load_dwordx2 s[8:9], s[0:1], {KA_WS}')
    prologue_guard(S, 256)
    S('v_lshrrev_b32 v1, 6, v0')
    S('s_and_b32 s13, s2, 7'); S('s_lshr_b32 s14, s2, 3')
    S('v_readfirstlane_b32 s10, v1')
    S('v_and_b32 v0, 63, v0')
    tilemap(S)
    stamp(S, 0)
    if MERGE:
        S('s_cmp_ge_u32 s10, 4'); S(f's_cbranch_scc1 L_help_{name}')
    attention(S, name)
    if MERGE:
        S('s_endpgm')
        S.label(f'L_help_{name}')
        S.hist = []; S.lds = []; S.vm = []; S.smem_pending = [('s', 8), ('s', 9)]
        helper(S, name)
    S.label(f'L_exit_{name}')
    S('s_endpgm')
    kernel_desc(A, name, 256, 102)

def tilemap(S):
    S('s_lshr_b32 s12, s14, 4'); S('s_lshl_b32 s13, s13, 1'); S('s_add_u32 s12, s12, s13')
    S('s_and_b32 s11, s14, 15')

def kv_dma(S, ty, tag, sw, T):
    for n in range(8):
        S(f's_lshl_b32 s18, s{sw}, 3'); S(f's_add_u32 s18, s18, {n}'); S('s_min_u32 s18, s18, 29')
        S('s_mul_i32 s19, s18, 43'); S('s_lshr_b32 s19, s19, 8')
        S('s_mul_i32 s26, s19, 6'); S('s_sub_u32 s26, s18, s26')
        S('s_lshl_b32 s26, s26, 10')
        S(f's_mul_i32 s27, s19, {PSTR}'); S('s_add_u32 s27, s27, s26')
        S(f's_add_u32 m0, s27, {KP0 if ty == 1 else VP0}')
        S('s_add_u32 s19, s19, s16'); S(f's_add_u32 s19, s19, {80*ty}'); S('s_lshl_b32 s19, s19, 15')
        S('s_add_u32 s19, s19, s26'); S('s_add_u32 s19, s19, s17')
        S(f'buffer_load_dwordx4 v{T}, s[20:23], s19 offen lds', tag=tag)

def kv_prep(S, ty, sw, regs):
    for n in range(8):
        S(f's_lshl_b32 s18, s{sw}, 3'); S(f's_add_u32 s18, s18, {n}'); S('s_min_u32 s18, s18, 29')
        S('s_mul_i32 s19, s18, 43'); S('s_lshr_b32 s19, s19, 8')
        S('s_mul_i32 s26, s19, 6'); S('s_sub_u32 s26, s18, s26')
        S('s_lshl_b32 s26, s26, 10')
        S(f's_mul_i32 s27, s19, {PSTR}'); S('s_add_u32 s27, s27, s26')
        S(f's_add_u32 s{regs[2*n]}, s27, {KP0 if ty == 1 else VP0}')
        S('s_add_u32 s19, s19, s16'); S(f's_add_u32 s19, s19, {80*ty}'); S('s_lshl_b32 s19, s19, 15')
        S('s_add_u32 s26, s26, s17'); S('s_max_i32 s26, s26, 0'); S(f's_add_u32 s{regs[2*n+1]}, s19, s26')
def kv_fire(S, regs, T, tag):
    for n in range(8):
        S(f's_mov_b32 m0, s{regs[2*n]}')
        S(f'buffer_load_dwordx4 v{T}, s[20:23], s{regs[2*n+1]} offen lds', tag=tag)

def helper(S, name, F=None):
    if F and F.withA:
        S('s_sub_u32 s38, s10, 4')
        S('s_mul_i32 s16, s12, 5')
        S('s_lshl_b32 s17, s11, 7'); S('s_sub_u32 s17, s17, 256'); S('s_lshl_b32 s17, s17, 4')
        VR = list(range(40, 52)) + [78, 79, 80, 81]
        kv_prep(S, 2, 38, VR)
        F.a_help_pre()
        if int(os.environ.get('RLATE', '1')):
            F.a_help_sync(0, 0)
            srd_off(S, 20, 8, QKV_OFF, QKV_SZ)
            S('v_lshlrev_b32 v60, 4, v0')
            if int(os.environ.get('VLATE', '0')):
                S('s_barrier')
                kv_fire(S, VR, 60, 'V')
            else:
                kv_fire(S, VR, 60, 'V')
                S('s_barrier')
            def after_issue(n):
                S.A.raw(f'  s_waitcnt vmcnt({n})')
                S('s_barrier')
                F.a_help_post(n, 0)
            phaseR.repack(S, name, 38, LDS_B0, T=1, after_issue=after_issue, smod=os.environ.get('RS', ' sc1'), njobs=540)
            return
        cnt = [0]
        def after_issue(n):
            cnt[0] += 1
            F.a_help_sync(n, cnt[0])
            srd_off(S, 20, 8, QKV_OFF, QKV_SZ)
            S('v_lshlrev_b32 v60, 4, v0')
            kv_fire(S, VR, 60, 'V')
            S('s_barrier')
            S.A.raw('  s_waitcnt vmcnt(0)'); S.vm = []
            S('s_barrier')
            F.a_help_post(n, cnt[0])
        phaseR.repack(S, name, 38, LDS_B0, T=1, after_issue=after_issue, smod=os.environ.get('RS', ' sc1'), njobs=540)
        return
    S('s_sub_u32 s38, s10, 4')
    S('s_waitcnt lgkmcnt(0)')
    srd_off(S, 20, 8, QKV_OFF, QKV_SZ)
    S('v_lshlrev_b32 v40, 4, v0')
    S('s_mul_i32 s16, s12, 5')
    S('s_lshl_b32 s17, s11, 7'); S('s_sub_u32 s17, s17, 256'); S('s_lshl_b32 s17, s17, 4')
    kv_dma(S, 2, 'V', 38, 40)
    S('s_barrier')
    def after_issue(n):
        S.A.raw(f'  s_waitcnt vmcnt({n})')
        S('s_barrier')
    if F:
        F.b_help_pre()
        phaseR.repack(S, name, 38, LDS_B0, T=1, after_issue=after_issue, smod=os.environ.get('RS', ' sc1'), njobs=540 if WOA else 640)
        return
    phaseR.repack(S, name, 38, LDS_B0, T=1, after_issue=after_issue, smod=RSMOD, njobs=540 if WOA else 640)
    stamp(S, 1)
    stamp_flush(S, 2, 10, 0, kern_idx=1)

def attention(S, name, F=None):
    S('s_and_b32 s14, s10, 1'); S('s_lshr_b32 s15, s10, 1')
    Sb = 0 + 16
    B0 = 160; B8 = 176
    OA = 192
    Q = 208
    KO = 220
    VO = 232
    aKm, aKt, aV = 2, 3, 4
    oM, oT = 5, 6
    T = 7
    vM = 248; vL = 249
    sc = lambda j, r=0: Sb + 16*j + r
    S('s_waitcnt lgkmcnt(0)')
    srd_off(S, 20, 8, QKV_OFF, QKV_SZ)
    S(f'v_lshlrev_b32 v{T}, 4, v0')
    S('s_mul_i32 s16, s12, 5')
    S('s_lshl_b32 s17, s11, 7'); S('s_sub_u32 s17, s17, 256'); S('s_lshl_b32 s17, s17, 4')
    def dma(ty, tag): kv_dma(S, ty, tag, 10, T)
    lateq = F and F.withA
    KR = list(range(40, 56)); vQa, vQb = (250, 251) if lateq else (T+3, T+4)
    if lateq: kv_prep(S, 1, 10, KR)
    else: dma(1, 'K')
    S(f'v_and_b32 v{T+1}, 31, v0')
    S(f'v_lshrrev_b32 v{T+2}, 5, v0')
    S('s_mul_i32 s18, s14, 3'); S('s_add_u32 s18, s18, s16')
    S(f'v_add_u32 v{T+3}, s18, v{T+2}')
    S(f'v_lshlrev_b32 v{T+3}, 15, v{T+3}')
    S('s_lshl_b32 s19, s11, 1'); S('s_add_u32 s19, s19, s15'); S('s_lshl_b32 s19, s19, 10')
    S(f'v_lshl_add_u32 v{T+4}, v{T+1}, 4, s19')
    S(f'v_add_u32 v{vQa}, v{T+3}, v{T+4}')
    def qmain():
        for b in range(2):
            S(f'buffer_load_dwordx4 {v(Q+6*b,4)}, v{vQa}, s[20:23], 0 offen offset:{512*b}', tag='Q')
    if not lateq: qmain()
    S('s_add_u32 s18, s16, 2'); S('s_lshr_b32 s35, s18, 1'); S('s_and_b32 s35, s35, 1'); S('s_xor_b32 s35, s35, s14')
    S('s_lshl_b32 s27, s18, 15'); S('s_lshl_b32 s28, s35, 3'); S('s_add_u32 s27, s27, s28')
    S(f'v_add_u32 v{vQb}, s27, v{T+4}')
    def qtail():
        for b in range(2):
            S(f'buffer_load_dwordx2 {v(Q+6*b+4,2)}, v{vQb}, s[20:23], 0 offen offset:{512*b}', tag='Q')
    if not lateq: qtail()
    if not MERGE: dma(2, 'V')
    S('s_mul_i32 s18, s10, 100')
    S(f'v_add_u32 v{T+5}, s18, v0')
    S('s_lshl_b32 s19, s11, 7'); S('s_sub_u32 s19, 256, s19')
    S(f'v_mov_b32 v{KO}, 0x3f80'); S(f'v_mov_b32 v{KO+1}, 0'); S(f'v_mov_b32 v{KO+3}, 0')
    S(f'v_mov_b32 v{T+3}, 0xf149')
    for k in range(2):
        S(f'v_cmp_gt_i32 vcc, s19, v{T+5}')
        S(f'v_cndmask_b32 v{KO+2}, 0, v{T+3}, vcc')
        S(f'v_lshlrev_b32 v{T+4}, 4, v{T+5}')
        if k == 1:
            S('s_mov_b32 exec_lo, -1'); S('s_mov_b32 exec_hi, 0xf') if False else None
            S('s_mov_b64 exec, 0xfffffffff') if False else None
            S('s_mov_b32 s30, -1'); S('s_mov_b32 s31, 0xf'); S('s_mov_b64 exec, s[30:31]')
        S(f'ds_write_b128 v{T+4}, {v(KO,4)} offset:{AUX}')
        if k == 0: S(f'v_add_u32 v{T+5}, 64, v{T+5}')
    S('s_mov_b64 exec, -1')
    S('s_mul_i32 s18, s14, 3')
    S(f'v_add_u32 v{T+3}, s18, v{T+2}'); S(f'v_mul_u32_u24 v{T+3}, {PSTR}, v{T+3}')
    S('s_lshl_b32 s19, s15, 10')
    S(f'v_lshl_add_u32 v{T+4}, v{T+1}, 4, s19')
    S(f'v_add_u32 v{aKm}, v{T+3}, v{T+4}')
    if KP0: S(f'v_add_u32 v{aKm}, {KP0}, v{aKm}')
    S('s_lshl_b32 s28, s35, 3'); S(f's_add_u32 s28, s28, {KP0 + 2*PSTR}')
    S(f'v_mov_b32 v{T+3}, s28'); S(f'v_mov_b32 v{T+5}, {AUX+8}')
    S(f'v_cmp_eq_u32 vcc, 0, v{T+2}')
    S(f'v_cndmask_b32 v{T+3}, v{T+5}, v{T+3}, vcc')
    S(f'v_add_u32 v{aKt}, v{T+3}, v{T+4}')
    S(f'v_and_b32 v{T+3}, 3, v0')
    S(f'v_lshrrev_b32 v{T+4}, 2, v0'); S(f'v_and_b32 v{T+4}, 3, v{T+4}')
    S(f'v_lshl_add_u32 v{T+4}, v{T+2}, 2, v{T+4}')
    S(f'v_lshlrev_b32 v{T+4}, 4, v{T+4}')
    S(f'v_add_u32 v{T+4}, s19, v{T+4}')
    S(f'v_lshrrev_b32 v{T+5}, 1, v{T+3}'); S('s_mul_i32 s18, s14, 3'); S(f'v_add_u32 v{T+5}, s18, v{T+5}')
    S(f'v_add_u32 v{T+6}, s16, v{T+5}'); S(f'v_lshrrev_b32 v{T+6}, 1, v{T+6}'); S(f'v_xor_b32 v{T+6}, v{T+6}, v{T+3}')
    S(f'v_and_b32 v{T+6}, 1, v{T+6}')
    S(f'v_mul_u32_u24 v{T+5}, {PSTR}, v{T+5}'); S(f'v_lshl_add_u32 v{T+5}, v{T+6}, 3, v{T+5}')
    S(f'v_add_u32 v{T+5}, {VP0}, v{T+5}')
    S(f's_lshl_b32 s28, s35, 3'); S(f's_add_u32 s28, s28, {VP0 + 2*PSTR}')
    S('s_lshl_b32 s29, s14, 7'); S(f's_sub_u32 s29, {AUX+192}, s29')
    S(f'v_mov_b32 v{T+6}, s29'); S(f'v_mov_b32 v{T+7}, s28')
    S(f'v_cmp_eq_u32 vcc, 0, v{T+3}'); S(f'v_cndmask_b32 v{T+6}, v{T+6}, v{T+7}, vcc')
    S(f'v_bfe_u32 v{T+7}, v0, 4, 1'); S(f'v_cmp_eq_u32 vcc, 0, v{T+7}')
    S(f'v_cndmask_b32 v{T+5}, v{T+6}, v{T+5}, vcc')
    S(f'v_add_u32 v{aV}, v{T+5}, v{T+4}')
    S(f'v_lshlrev_b32 v{T+3}, 2, v{T+2}'); S(f'v_sub_u32 v{T+3}, v{T+1}, v{T+3}')
    S(f'v_mov_b32 v{T+4}, 0x{NEG:08x}')
    for r in range(16):
        c_ = (r & 3) + 8*(r >> 2)
        S(f'v_cmp_gt_i32 vcc, {c_}, v{T+3}')
        S(f'v_cndmask_b32 v{B0+r}, v{T+4}, 0, vcc')
        S(f'v_cndmask_b32 v{B8+r}, 0, v{T+4}, vcc')
    srd_off(S, 24, 8, OF_OFF, OF_SZ)
    S('s_lshl_b32 s18, s11, 1'); S('s_add_u32 s18, s18, s15'); S('s_lshl_b32 s18, s18, 2')
    S(f'v_lshrrev_b32 v{T+3}, 4, v{T+1}'); S(f'v_add_u32 v{T+3}, s18, v{T+3}')
    S(f'v_mul_u32_u24 v{T+3}, {20*1024}, v{T+3}')
    S(f'v_and_b32 v{T+4}, 15, v0'); S(f'v_lshl_add_u32 v{T+3}, v{T+4}, 4, v{T+3}')
    S('s_lshl_b32 s18, s12, 10'); S('s_lshl_b32 s19, s14, 9'); S('s_add_u32 s18, s18, s19')
    S(f'v_lshl_add_u32 v{oM}, v{T+2}, 8, v{T+3}'); S(f'v_add_u32 v{oM}, s18, v{oM}')
    S('s_lshr_b32 s18, s12, 2'); S('s_add_u32 s18, s18, 16'); S('s_lshl_b32 s18, s18, 10')
    S('s_and_b32 s19, s12, 3'); S('s_lshl_b32 s19, s19, 8'); S('s_add_u32 s18, s18, s19')
    S('s_lshl_b32 s19, s14, 3'); S('s_add_u32 s18, s18, s19')
    S(f'v_add_u32 v{oT}, s18, v{T+3}')
    S(f'v_mov_b32 v{T+4}, 0x40000000'); S(f'v_cmp_eq_u32 vcc, 0, v{T+2}')
    S(f'v_cndmask_b32 v{oT}, v{T+4}, v{oT}, vcc')
    if F:
        S('s_lshl_b32 s18, s15, 10'); S('s_lshl_b32 s19, s14, 3'); S('s_add_u32 s18, s18, s19'); S(f's_add_u32 s18, s18, {TAILX}')
        S(f'v_lshl_add_u32 v{oT}, v{T+1}, 4, s18')
        S('s_mov_b32 s30, -1'); S('s_mov_b32 s31, 0')
    if lateq:
        S(f'v_lshlrev_b32 v252, 4, v0')
        F.b_pre()
        kv_fire(S, KR, 252, 'K')
        qmain(); qtail()
        S(f'v_cmp_eq_u32 vcc, 0, v{T+2}')
    S.wait_tag('Q')
    S(f'v_mov_b32 v{T+4}, 0x3f80')
    for b in range(2):
        S(f'v_cndmask_b32 v{Q+6*b+4}, v{T+4}, v{Q+6*b+4}, vcc')
        S(f'v_cndmask_b32 v{Q+6*b+5}, 0, v{Q+6*b+5}, vcc')
    S.wait_tag('K')
    S.wait(lgkm=0)
    if not F: stamp(S, 1)
    S('s_barrier')
    if not F: stamp(S, 2)
    elif F.withA: stamp(S, 8)
    kb = (lambda j: KO + 6*(j & 3)) if QKP else (lambda j: KO + 6*(j & 1))
    def kreads(b, j):
        off = (32*b + 32*j)*16
        return [f'ds_read_b128 {v(kb(j),4)}, v{aKm} offset:{off}',
                f'ds_read_b64 {v(kb(j)+4,2)}, v{aKt} offset:{off}']
    def vreads(b, j, sg):
        buf = (2*j + sg) & 3
        off = (32*b + 32*j + 16*sg)*16
        return [f'ds_read_b64_tr_b16 {v(VO+4*buf+2*p,2)}, v{aV} offset:{off + 128*p}' for p in range(2)]
    for b in range(2):
        for x in kreads(b, 0): S(x)
        def maxops(j):
            L = []
            for k in range(8):
                if j == 0 and k == 0:
                    L.append(f'v_max_f32 v{vM}, v{sc(0,0)}, v{sc(0,1)}')
                else:
                    L.append(f'v_max3_f32 v{vM if k%2==0 else vL}, v{sc(j,2*k)}, v{sc(j,2*k+1)}, v{vM if k%2==0 else vL}' if not (j == 0 and k == 1)
                             else f'v_max_f32 v{vL}, v{sc(0,2)}, v{sc(0,3)}')
            return L
        if QKP:
            for jj in (1, 2):
                for x in kreads(b, jj): S(x)
            def M_(j):
                cin = v(B0,16) if j == 0 else (v(B8,16) if j == 8 else '0')
                S(f'v_mfma_f32_32x32x16_bf16 {v(sc(j),16)}, {v(kb(j),4)}, {v(Q+6*b,4)}, {cin}')
            M_(0)
            for j in range(9):
                mo = maxops(j - 2) if j >= 2 else []
                if j + 1 < 9: M_(j + 1)
                nxt = kreads(b, j + 3) if j + 3 < 9 else []
                for x in nxt[:1]: S(x)
                for x in mo[:4]: S(x)
                S(f'v_mfma_f32_32x32x8_bf16 {v(sc(j),16)}, {v(kb(j)+4,2)}, {v(Q+6*b+4,2)}, {v(sc(j),16)}')
                for x in nxt[1:]: S(x)
                for x in mo[4:]: S(x)
        for j in range(0 if QKP else 9):
            buf = j & 1
            cin = v(B0,16) if j == 0 else (v(B8,16) if j == 8 else '0')
            if j + 1 < 9:
                nxt = kreads(b, j + 1)
            else: nxt = []
            S(f'v_mfma_f32_32x32x16_bf16 {v(sc(j),16)}, {v(KO+6*buf,4)}, {v(Q+6*b,4)}, {cin}')
            for x in nxt: S(x)
            mo = maxops(j - 2) if j >= 2 else []
            for x in mo[:4]: S(x)
            S(f'v_mfma_f32_32x32x8_bf16 {v(sc(j),16)}, {v(KO+6*buf+4,2)}, {v(Q+6*b+4,2)}, {v(sc(j),16)}')
            for x in mo[4:]: S(x)
        if b == 0:
            if not MERGE: S.wait_tag('V')
            S('s_barrier')
        for x in vreads(b, 0, 0): S(x)
        for x in vreads(b, 0, 1): S(x)
        for x in maxops(7): S(x)
        for x in maxops(8): S(x)
        S(f'v_max_f32 v{vM}, v{vM}, v{vL}')
        S(f'v_mov_b32 v{vL}, v{vM}')
        S(f'v_permlane32_swap_b32 v{vM}, v{vL}')
        S(f'v_max_f32 v{vM}, v{vM}, v{vL}')
        if b == 0 and not F: stamp(S, 3)
        def subs(hh):
            if hh >= 18: return
            j_, sg_ = divmod(hh, 2)
            if PKS:
                for r in range(8*sg_, 8*sg_ + 8, 2):
                    S(f'v_pk_add_f32 {v(sc(j_,r),2)}, {v(sc(j_,r),2)}, {v(vM,2)} op_sel_hi:[1,0] neg_lo:[0,1] neg_hi:[0,1]')
            else:
                for r in range(8*sg_, 8*sg_ + 8):
                    S(f'v_sub_f32 v{sc(j_,r)}, v{sc(j_,r)}, v{vM}')
        if PKS: subs(0)
        for j in range(9):
            mf = []
            for sg in range(2):
                cin = '0' if (j == 0 and sg == 0) else v(OA,16)
                mf.append(f'v_mfma_f32_32x32x16_bf16 {v(OA,16)}, {v(VO+4*((2*j+sg)&3),4)}, {v(sc(j,4*sg),4)}, {cin}')
            for sg in range(2):
                if not PKS: subs(2*j + sg)
                for r in range(8*sg, 8*sg + 8):
                    S(f'v_exp_f32 v{sc(j,r)}, v{sc(j,r)}')
                for k in range(4):
                    S(f'v_cvt_pk_bf16_f32 v{sc(j,4*sg+k)}, v{sc(j,8*sg+2*k)}, v{sc(j,8*sg+2*k+1)}')
                if PKS: subs(2*j + sg + 1)
                S(mf[sg])
                nj, nsg = (j, sg + 2 - 2) if False else ((2*j + sg + 2) >> 1, (2*j + sg + 2) & 1)
                if nj < 9:
                    for x in vreads(b, nj, nsg): S(x)
        S(f'v_rcp_f32 v{vL}, v{OA+12}')
        for r in range(12):
            S(f'v_mul_f32 v{OA+r}, v{OA+r}, v{vL}')
        for k in range(6):
            S(f'v_cvt_pk_bf16_f32 v{KO+k}, v{OA+2*k}, v{OA+2*k+1}')
        if F:
            if b == 0: S(f's_mov_b32 s34, {2*20*1024}')
            S(f'buffer_store_dwordx4 {v(KO,4)}, v{oM}, s[24:27], {"0" if b == 0 else "s34"} offen sc1')
            S('s_mov_b64 exec, s[30:31]')
            S(f'ds_write_b64 v{oT}, {v(KO+4,2)} offset:{512*b}')
            S('s_mov_b64 exec, -1')
            continue
        S(f'buffer_store_dwordx4 {v(KO,4)}, v{oM}, s[24:27], {"0" if b == 0 else "s34"} offen') if b == 0 else None
        if b == 0:
            S(f'buffer_store_dwordx2 {v(KO+4,2)}, v{oT}, s[24:27], 0 offen')
            S(f's_mov_b32 s34, {2*20*1024}')
            stamp(S, 4)
        else:
            S(f'buffer_store_dwordx4 {v(KO,4)}, v{oM}, s[24:27], s34 offen')
            S(f'buffer_store_dwordx2 {v(KO+4,2)}, v{oT}, s[24:27], s34 offen')
    if F:
        S('s_lshl_b32 s18, s11, 3'); S('s_lshl_b32 s19, s10, 1'); S('s_add_u32 s18, s18, s19')
        S(f'v_bfe_u32 v{T+3}, v0, 4, 1'); S(f'v_add_u32 v{T+3}, s18, v{T+3}'); S(f'v_mul_u32_u24 v{T+3}, {20*1024}, v{T+3}')
        S(f'v_and_b32 v{T+4}, 15, v0'); S(f'v_lshl_add_u32 v{T+3}, v{T+4}, 4, v{T+3}')
        S('s_lshr_b32 s18, s12, 2'); S('s_add_u32 s18, s18, 16'); S('s_lshl_b32 s18, s18, 10')
        S('s_and_b32 s19, s12, 3'); S('s_lshl_b32 s19, s19, 8'); S('s_add_u32 s18, s18, s19')
        S(f'v_add_u32 v{T+3}, s18, v{T+3}')
        S('s_lshl_b32 s19, s10, 9'); S(f's_add_u32 s19, s19, {TAILX}'); S(f'v_lshl_add_u32 v{T+4}, v0, 4, s19')
        S.wait(lgkm=0)
        F.st(S, 1)
        S('s_barrier')
        S('s_mov_b64 exec, s[30:31]')
        S(f'ds_read_b128 {v(KO,4)}, v{T+4}')
        S(f'buffer_store_dwordx4 {v(KO,4)}, v{T+3}, s[24:27], 0 offen sc1')
        S('s_mov_b64 exec, -1')
        return
    stamp(S, 5)
    stamp_flush(S, 6, 10, 0, vtmp=(7, 8), kern_idx=1)

if __name__ == '__main__':
    A = Asm()
    A.raw(f'; @launch kernel=phB_kernel grid=(256,1,1) block=(256,1,1) lds={LDS_B}')
    A.raw('.amdgcn_target "amdgcn-amd-amdhsa--gfx950"')
    gen(A)
    open('b.s','w').write(A.text())
```

```python
import os
from common import *
import phaseCE1 as CE, phaseD2 as D, phaseB as B, phaseA as PA

LDS_F = D.LDS_D
THREADS_F = 512
NOSYNC = os.environ.get('NOSYNC', '')
CPF = int(os.environ.get('CPF', '15'))
PRIO = int(os.environ.get('PRIO', '0'))
PUSH = int(os.environ.get('PUSH', '0'))

class Fz:
    KEEP = 200
    kidx = 2
    def __init__(self, S, name, withB, withA=False): self.S = S; self.name = name; self.withB = withB; self.withA = withA
    def stx(self, i):
        if not self.withA: stamp(self.S, i)
    def st(self, S, i): stamp(S, i)
    def e_slot(self, sl):
        if CE.CFG['E']['NS'] == 6: return sl*15360 if sl < 5 else 6*D.STG
        return sl*15360 if sl < 5 else (9*15360 if sl == 5 else (sl - 1)*15360)
    def sync_addr(self, own, grp, base):
        S = self.S
        if PAIR:
            S('v_and_b32 v22, 15, v0')
            S(f's_lshr_b32 s52, s53, 4'); S('s_lshl_b32 s52, s52, 15'); S('s_and_b32 s53, s53, 15'); S('s_lshl_b32 s53, s53, 7')
            S('s_add_u32 s52, s52, s53'); S(f's_add_u32 s52, s52, {base}')
            S('v_lshlrev_b32 v20, 7, v22')
            S('v_lshl_add_u32 v22, v22, 11, s52')
            S(f's_lshl_b32 s52, s{grp}, 15'); S(f's_lshl_b32 s53, s{own}, 11'); S('s_add_u32 s52, s52, s53'); S(f's_add_u32 s52, s52, {base}')
            S('v_add_u32 v20, s52, v20')
            return
        if PUSH:
            S('v_and_b32 v22, 15, v0')
            S(f's_lshl_b32 s52, s53, 7')
            if base: S(f's_add_u32 s52, s52, {base}')
            S('v_lshlrev_b32 v20, 7, v22')
            S('v_lshl_add_u32 v22, v22, 2, s52')
            S(f's_lshl_b32 s52, s{grp}, 11'); S(f's_lshl_b32 s53, s{own}, 2'); S('s_add_u32 s52, s52, s53')
            if base: S(f's_add_u32 s52, s52, {base}')
            S('v_add_u32 v20, s52, v20')
            return
        S(f's_mul_i32 s52, s{grp}, {FGRP}'); S(f's_mul_i32 s53, s{own}, {FSTR}'); S('s_add_u32 s52, s52, s53')
        if base: S(f's_add_u32 s52, s52, {base}')
        S('v_mov_b32 v20, s52')
        S(f's_mul_i32 s52, s{grp+1}, {FGRP}')
        if base: S(f's_add_u32 s52, s52, {base}')
        S('v_and_b32 v22, 15, v0'); S(f'v_mul_u32_u24 v22, {FSTR}, v22'); S('v_add_u32 v22, s52, v22')
    def sync(self, lab, si):
        S = self.S
        if si is not None: stamp(S, si)
        set_flag(S, 20, 21, 56, mask='0xffff' if (PUSH or PAIR) else '1')
        if PAIR and PSL >= 0: poll2(S, lab, 22, 26, 27, 56)
        else: poll(S, lab, 22, 21, 56)
        if si is not None: stamp(S, si + 1)
    def zero_flags(self):
        S = self.S
        srd_off(S, 56, 8, FL_OFF, FL_SZ)
        S('s_and_b32 s60, s2, 7'); S('s_lshr_b32 s61, s2, 3')
        S('v_mov_b32 v30, 0x40000000'); S('v_mov_b32 v32, 0')
        S('v_and_b32 v31, 15, v0'); S(f'v_mul_u32_u24 v31, {FGRP}, v31')
        def lane(k, sg):
            S(f's_mov_b64 exec, {1 << k}'); S(f'v_mov_b32 v30, s{sg}')
        S('s_and_b32 s62, s60, 1'); S('s_lshl_b32 s62, s62, 3'); S('s_and_b32 s63, s61, 7'); S('s_add_u32 s62, s62, s63')
        S('s_lshr_b32 s63, s60, 1'); S('s_lshl_b32 s63, s63, 2'); S('s_lshr_b32 s52, s61, 3'); S('s_add_u32 s63, s63, s52')
        S(f's_mul_i32 s52, s62, {FGRP}'); S(f's_mul_i32 s53, s63, {FSTR}'); S('s_add_u32 s52, s52, s53')
        S(f's_add_u32 s53, s52, {FLA}'); lane(0, 53)
        if PAIR:
            S('s_lshl_b32 s99, s62, 15'); S('s_lshl_b32 s53, s63, 11'); S('s_add_u32 s99, s99, s53'); S(f's_add_u32 s99, s99, {FLP}')
        else:
            S(f's_add_u32 s53, s52, {FLP}'); lane(1, 53)
        S(f's_mul_i32 s52, s62, {FSTR}'); S(f's_add_u32 s52, s52, {FLW}')
        S('s_cmp_eq_u32 s63, 15'); S('s_cselect_b32 exec_lo, 0xffff0000, 0'); S('s_mov_b32 exec_hi, 0')
        S('v_add_u32 v30, s52, v31')
        S('s_lshr_b32 s52, s61, 4'); S('s_lshl_b32 s53, s60, 1'); S('s_add_u32 s52, s52, s53'); S(f's_mul_i32 s52, s52, {FSTR}')
        if PAIR:
            S('s_lshl_b32 s52, s52, 4')
            S('s_and_b32 s53, s61, 15'); S('s_lshl_b32 s53, s53, 15'); S('s_add_u32 s52, s52, s53'); S(f's_add_u32 s97, s52, {FLO}')
        else:
            S('s_and_b32 s53, s61, 15'); S(f's_mul_i32 s53, s53, {FGRP}'); S('s_add_u32 s52, s52, s53'); S(f's_add_u32 s52, s52, {FLO}'); lane(2, 52)
        S('s_and_b32 s62, s60, 3'); S('s_lshl_b32 s62, s62, 3'); S('s_and_b32 s63, s61, 7'); S('s_add_u32 s62, s62, s63')
        S('s_lshr_b32 s63, s60, 2'); S('s_lshl_b32 s63, s63, 2'); S('s_lshr_b32 s52, s61, 3'); S('s_add_u32 s63, s63, s52')
        S('s_and_b32 s52, s62, 1'); S('s_lshl_b32 s52, s52, 3'); S('s_add_u32 s52, s52, s63'); S(f's_mul_i32 s52, s52, {FSTR}')
        if PAIR:
            S('s_lshl_b32 s52, s52, 4')
            S('s_lshr_b32 s53, s62, 1'); S('s_lshl_b32 s53, s53, 15'); S('s_add_u32 s52, s52, s53'); S(f's_add_u32 s98, s52, {FLH}')
        else:
            S('s_lshr_b32 s53, s62, 1'); S(f's_mul_i32 s53, s53, {FGRP}'); S('s_add_u32 s52, s52, s53')
            if FLH: S(f's_add_u32 s52, s52, {FLH}')
            lane(3, 52)
        S('s_lshr_b32 s53, s62, 1'); S(f's_mul_i32 s53, s53, {FSTR}'); S(f's_add_u32 s53, s53, {FLR}')
        S('s_and_b32 s52, s62, 1'); S('s_or_b32 s52, s52, s63'); S('s_cmp_eq_u32 s52, 0')
        S('s_cselect_b32 exec_hi, 0xffff, 0'); S('s_mov_b32 exec_lo, 0')
        S('v_add_u32 v30, s53, v31')
        S('s_mov_b64 exec, -1')
        S('buffer_store_dword v32, v30, s[56:59], 0 offen sc1')
        if PAIR:
            S('v_mov_b32 v33, 0x40000000'); S('v_and_b32 v34, 15, v0'); S('v_lshlrev_b32 v34, 7, v34')
            S('s_mov_b64 exec, 0xffff'); S('v_add_u32 v33, s97, v34')
            S('s_mov_b32 exec_lo, 0xffff0000'); S('v_add_u32 v33, s98, v34')
            S('s_mov_b32 exec_lo, 0'); S('s_mov_b32 exec_hi, 0xffff'); S('v_add_u32 v33, s99, v34')
            S('s_mov_b64 exec, -1')
            S('buffer_store_dword v32, v33, s[56:59], 0 offen sc1')
    def a_help_pre(self):
        S = self.S
        srd_off(S, 56, 8, FL_OFF, FL_SZ); S('s_mov_b32 s54, 1')
        S('v_lshrrev_b32 v70, 4, v0'); S('v_min_u32 v70, 2, v70')
        S('v_bfe_u32 v71, v0, 1, 3'); S('v_min_u32 v71, 2, v71')
        S('v_cmp_eq_u32 vcc, 0, v70'); S('v_cndmask_b32 v71, v71, 0, vcc')
        S('v_sub_u32 v71, s11, v71'); S('v_max_i32 v71, 0, v71')
        S('v_and_b32 v72, 1, v0'); S('s_mul_i32 s52, s12, 5'); S('v_lshl_add_u32 v72, v72, 2, s52'); S('v_lshrrev_b32 v72, 4, v72')
        S('v_mad_u32_u24 v72, v70, 5, v72')
        S(f'v_mul_u32_u24 v71, {FGRP}, v71'); S(f'v_mul_u32_u24 v72, {FSTR}, v72'); S('v_add_u32 v71, v71, v72')
        S(f'v_add_u32 v74, {FLA}, v71')
        S('s_and_b32 s60, s2, 7'); S('s_lshr_b32 s61, s2, 3')
        S('s_and_b32 s62, s60, 1'); S('s_lshl_b32 s62, s62, 3'); S('s_and_b32 s63, s61, 7'); S('s_add_u32 s62, s62, s63')
        S('s_lshr_b32 s63, s60, 1'); S('s_lshl_b32 s63, s63, 2'); S('s_lshr_b32 s52, s61, 3'); S('s_add_u32 s63, s63, s52')
        S(f's_mul_i32 s52, s62, {FGRP}'); S(f's_mul_i32 s53, s63, {FSTR}'); S('s_add_u32 s52, s52, s53'); S(f's_add_u32 s52, s52, {FLA}')
        S('v_mov_b32 v73, s52'); S('s_mov_b32 s82, 1'); S('s_mov_b32 s83, 0')
        S('s_cmp_lg_u32 s63, 15'); S(f's_cbranch_scc1 L_nidle_{self.name}')
        S(f's_mul_i32 s52, s62, {FSTR}'); S(f's_add_u32 s52, s52, {FLW}')
        S('v_and_b32 v73, 15, v0'); S(f'v_mul_u32_u24 v73, {FGRP}, v73'); S('v_add_u32 v73, s52, v73'); S('s_mov_b32 s82, 0xffff')
        S.label(f'L_nidle_{self.name}')
        S(f's_mul_i32 s52, s11, {FGRP}'); S(f's_add_u32 s52, s52, {FLW}')
        S('v_and_b32 v75, 15, v0'); S(f'v_mul_u32_u24 v75, {FSTR}, v75'); S('v_add_u32 v75, s52, v75')
    def a_help_sync(self, n, u):
        S = self.S; nm = self.name
        S('s_barrier')
        if n == 0:
            S('s_cmp_lg_u32 s10, 7'); S(f's_cbranch_scc1 L_nsa_{nm}')
            stamp(S, 5)
            set_flag(S, 73, 76, 56, mask='s[82:83]')
            poll(S, f'L_pa_{nm}', 74, 76, 56)
            stamp(S, 6)
            S.label(f'L_nsa_{nm}')
        S('s_barrier')
    def a_help_post(self, n, u):
        S = self.S; nm = self.name
        if n == 0:
            S('s_cmp_lg_u32 s10, 7'); S(f's_cbranch_scc1 L_nw1_{nm}')
            S('buffer_load_dword v77, v75, s[56:59], 0 offen sc1')
            S('s_waitcnt vmcnt(0)')
            S('v_cmp_ne_u32 vcc, s54, v77')
            S(f's_cbranch_vccz L_nw1_{nm}')
            poll(S, f'L_pw_{nm}', 75, 77, 56)
            S.label(f'L_nw1_{nm}')
            S.vm = []
    def b_pre(self):
        S = self.S
        S.wait(vm=0)
        stamp(S, 5)
        S('s_barrier'); S('s_barrier')
        stamp(S, 10)
    def b_help_pre(self):
        S = self.S
        srd_off(S, 56, 8, FL_OFF, FL_SZ); S('s_mov_b32 s54, 1')
    def b_help_post(self):
        S = self.S
        stamp(S, 1)
        self.rstores = [I_dummy]
        S.vm = [I_dummy]
        S('s_barrier')
    def c_mid(self, mid):
        S = self.S; nm = self.name
        S('s_lshr_b32 s63, s11, 1')
        S('s_lshl_b32 s53, s11, 3'); S('s_add_u32 s53, s53, s12')
        self.sync_addr(61, 62, FLO)
        if PAIR:
            S(f's_mul_i32 s52, s63, {FGRP}'); S(f's_add_u32 s52, s52, {FLR}')
            S('v_and_b32 v23, 15, v0'); S(f'v_mul_u32_u24 v23, {FSTR}, v23'); S('v_add_u32 v23, s52, v23')
        else: S(f'v_add_u32 v23, {FLR - FLO}, v22')
        if PUSH:
            S('s_lshl_b32 s52, s63, 2'); S(f's_add_u32 s52, s52, {FLR}')
            S('v_lshlrev_b32 v24, 7, v0'); S('v_add_u32 v24, s52, v24')
        else:
            S(f's_mul_i32 s52, s63, {FSTR}'); S(f's_add_u32 s52, s52, {FLR}')
            S('v_and_b32 v24, 15, v0'); S(f'v_mul_u32_u24 v24, {FGRP}, v24'); S('v_add_u32 v24, s52, v24')
        S.wait(vm=len(S.vm) - 1)
        stamp(S, 2)
        S('s_barrier')
        vm = list(S.vm)
        S('s_cmp_eq_u32 s10, 7'); S(f's_cbranch_scc1 L_w7o_{nm}')
        mid()
        vm2 = list(S.vm)
        S(f's_branch L_nso_{nm}')
        S.label(f'L_w7o_{nm}')
        S.vm = list(vm)
        self.sync(f'L_po_{nm}', 3)
        S('s_and_b32 s52, s11, 1'); S('s_or_b32 s52, s52, s12'); S('s_cmp_lg_u32 s52, 0'); S(f's_cbranch_scc1 L_nld_{nm}')
        S('v_mov_b32 v21, s54')
        if PUSH:
            for k in range(4):
                S(f's_mov_b32 s52, {8192*k}')
                S('buffer_store_dword v21, v24, s[56:59], s52 offen sc1')
        else:
            S('s_mov_b64 exec, 0xffff')
            S('buffer_store_dword v21, v24, s[56:59], 0 offen sc1')
            S('s_mov_b64 exec, -1')
        S.label(f'L_nld_{nm}')
        S.vm = list(vm)
        mid()
        S.label(f'L_nso_{nm}')
        S.vm = vm2
        S('s_barrier')
    def c_step(self, t):
        if not self.withB: return
        S = self.S; nm = self.name
        last = CE.CFG['C']['NSTEP'] // CE.CFG['C']['SPS'] - 1
        if t == last - 1:
            S('s_cmp_lg_u32 s10, 7'); S(f's_cbranch_scc1 L_nr1_{nm}')
            vm = list(S.vm)
            S('buffer_load_dword v25, v23, s[56:59], 0 offen sc1')
            S.label(f'L_nr1_{nm}')
            S.vm = vm
        if t == last:
            S('s_cmp_lg_u32 s10, 7'); S(f's_cbranch_scc1 L_nr2_{nm}')
            vm = list(S.vm)
            S('s_waitcnt vmcnt(0)')
            S('v_cmp_ne_u32 vcc, s54, v25')
            S(f's_cbranch_vccz L_nr2_{nm}')
            poll(S, f'L_rf_{nm}', 23, 25, 56)
            S.label(f'L_nr2_{nm}')
            S.vm = vm
    def c_pre(self):
        S = self.S
        if not self.withB: return
        S.wait(vm=0)
        self.stx(2)
        S('s_barrier'); S('s_barrier')
    def d_mid(self, which):
        S = self.S
        if which == 'late':
            S('s_barrier'); S('s_barrier'); return
        S('s_mov_b32 s62, s60'); S('s_mov_b32 s63, s11')
        S('s_lshl_b32 s53, s11, 4'); S('s_add_u32 s53, s53, s55')
        self.sync_addr(61, 62, FLH)
        S('s_barrier')
        self.sync(f'L_ph_{self.name}', 5 if not self.withA else None)
        S('s_barrier')
    def d_tail(self, which):
        S = self.S
        if which == 'early':
            S('s_mov_b32 s62, s11'); CE.tilemap(S); S('s_lshr_b32 s63, s11, 1')
            S('s_lshl_b32 s53, s11, 3'); S('s_add_u32 s53, s53, s12')
            self.sync_addr(55, 62, FLP)
            S('s_barrier')
            self.sync(f'L_pp_{self.name}', 8)
            S('s_barrier')
            if PAIR: S('s_waitcnt vmcnt(0)')
            stamp_flush(S, 10, 10, 0, kern_idx=self.kidx)
            S('s_endpgm'); return
        CE.tilemap(S); S('s_mov_b32 s44, 0')
        CE.producer(S, 'E', self)
    def e_mid(self, mid):
        self.S('s_barrier'); mid(); self.S('s_barrier')
    def d_pre(self):
        S = self.S
        S.wait(vm=0)
        self.stx(5)
        S('s_barrier'); S('s_barrier')
    def e_pre(self):
        S = self.S
        self.stx(8)
        S.wait(vm=0)
        stamp(S, 9)
        S('s_barrier'); S('s_barrier')
        self.stx(10)

from sched import I
I_dummy = I('buffer_store_dword v255, v255, s[56:59], 0 offen')

def ids(S):
    S('s_and_b32 s13, s2, 7'); S('s_lshr_b32 s14, s2, 3')

def gen(A, name='phF_kernel', stamps=False, withB=False, withA=False):
    S = Sched(A); S.name = name; S.stamps = stamps; S.sbase = 64
    F = Fz(S, name, withB, withA)
    kernel_header(A, name)
    S(f's_load_dwordx2 s[8:9], s[0:1], {KA_WS}')
    S(f's_load_dwordx2 s[4:5], s[0:1], {KA_X}')
    S(f's_load_dwordx2 s[6:7], s[0:1], {KA_WQKV if withA else KA_OUT}')
    prologue_guard(S, 256)
    if withA and CPF >= 100:
        S(f's_cmp_ge_u32 s2, {8*(CPF - 100)}'); S(f's_cbranch_scc1 L_ncpf_{name}')
        S('s_getpc_b64 s[60:61]')
        S.label(f'L_pc_{name}')
        S('v_lshlrev_b32 v254, 7, v0')
        S(f's_mov_b32 s62, L_exit_{name}-L_pc_{name}'); S('v_min_u32 v254, s62, v254')
        S('v_mov_b32 v255, s61'); S('v_add_co_u32 v254, vcc, s60, v254'); S('v_addc_co_u32 v255, vcc, 0, v255, vcc')
        S('global_load_dword v253, v[254:255], off')
        S.label(f'L_ncpf_{name}')
    S('v_lshrrev_b32 v1, 6, v0')
    ids(S)
    S('v_readfirstlane_b32 s10, v1')
    S('v_and_b32 v0, 63, v0')
    if withA: PA.tilemap(S)
    elif withB: B.tilemap(S)
    else: CE.tilemap(S); S('s_mov_b32 s44, 0')
    stamp(S, 0)
    if withA:
        S('s_cmp_ge_u32 s12, 15'); S(f's_cbranch_scc1 L_idle_{name}')
    S('s_cmp_ge_u32 s10, 4')
    S(f's_cbranch_scc1 L_prod_{name}')
    if PRIO & 2: S('s_setprio 1')
    if withA and CPF and CPF < 100:
        S('s_cmp_lg_u32 s10, 0'); S(f's_cbranch_scc1 L_ncpf_{name}')
        S('s_getpc_b64 s[60:61]')
        S.label(f'L_pc_{name}')
        S('s_mul_i32 s62, s14, %d' % CPF); S('v_add_u32 v250, s62, v0'); S('v_lshlrev_b32 v250, 7, v250')
        S(f's_mov_b32 s62, L_exit_{name}-L_pc_{name}'); S('v_min_u32 v250, s62, v250')
        S('v_mov_b32 v251, s61'); S('v_add_co_u32 v250, vcc, s60, v250'); S('v_addc_co_u32 v251, vcc, 0, v251, vcc')
        S('s_mov_b64 exec, %d' % ((1 << CPF) - 1) if CPF < 7 else 's_mov_b32 exec_lo, 0x%x' % ((1 << CPF) - 1)); S('s_mov_b32 exec_hi, 0')
        S('global_load_dword v252, v[250:251], off')
        S('s_mov_b64 exec, -1')
        S.label(f'L_ncpf_{name}')
    if withA:
        PA.consumer(S, name, F)
        S.label(f'L_postA_{name}')
        S(f's_load_dwordx2 s[6:7], s[0:1], {KA_OUT}')
        ids(S); B.tilemap(S)
    if withB:
        B.attention(S, name, F)
        ids(S); CE.tilemap(S); S('s_mov_b32 s44, 0')
    CE.consumer(S, 'C', F)
    D.tilemap(S)
    D.consumer(S, name, F)
    CE.tilemap(S); S('s_mov_b32 s44, 0')
    CE.consumer(S, 'E', F)
    S.label(f'L_prod_{name}')
    S.hist = []; S.lds = []; S.vm = []; S.smem_pending = [('s', i) for i in range(4, 10)]
    if withA:
        if PRIO & 1: S('s_setprio 1')
        PA.producer2(S, name, F)
        S.label(f'L_idle_{name}')
        S.hist = []; S.lds = []; S.vm = []; S.smem_pending = [('s', i) for i in range(4, 10)]
        PA.idle(S, name, F)
        S.label(f'L_help_{name}')
        S.hist = []; S.lds = []; S.vm = []; S.smem_pending = []
        ids(S); B.tilemap(S)
    if withB:
        if PRIO & 4: S('s_setprio 0')
        B.helper(S, name, F)
        if PRIO & 4: S('s_setprio 1')
        F.b_help_post()
        ids(S); B.tilemap(S); S('s_mov_b32 s62, s11'); S('s_mov_b32 s61, s12')
        ids(S); CE.tilemap(S); S('s_mov_b32 s44, 0')
    else:
        S('s_mov_b32 s54, 1')
    CE.producer(S, 'C', F)
    if not withB: srd_off(S, 56, 8, FL_OFF, FL_SZ)
    S('s_lshr_b32 s60, s11, 1')
    S('s_and_b32 s61, s11, 1'); S('s_lshl_b32 s61, s61, 3'); S('s_add_u32 s61, s61, s12')
    D.tilemap(S); S('s_mov_b32 s55, s33')
    D.producer(S, name, F)
    S.label(f'L_exit_{name}')
    S('s_endpgm')
    kernel_desc(A, name, 256, 102)
```

```python
from asmlib import *
from sched import Sched

KN = 'sequential_preLN__sliding_block__glu_gated_bilinear__prompt'
KA_X, KA_WQKV, KA_WO, KA_BX, KA_WG, KA_WU, KA_WD, KA_OUT, KA_DBG, KA_WS = 0, 8, 16, 24, 32, 40, 48, 56, 64, 72
QKV_OFF = 0;          QKV_SZ = 240*2048*16
OF_OFF  = 0x800000;   OF_SZ = 128*20*1024
HF_OFF  = 0xB00000;   HF_SZ = 64*40*1024
ST_OFF  = 0xE00000;   ST_SZ = 2048*8*8
CS_OFF  = 0xE40000;   CS_SZ = 5*3456*4
HP_OFF  = 0x1000000;  HP_SZ = 128*54*1024
WGU_OFF = 0x1800000; WGU_SZ = 108*40*1024
WDF_OFF = 0x1D00000; WDF_SZ = 8*54*5*1024
WOF_OFF = 0x2000000; WOF_SZ = 8*20*5*1024
import os
FSTR = int(os.environ.get('FSTR', '128'))
FGRP = max(128, 16*FSTR)
PAIR = int(os.environ.get('PAIR', '0'))
FL_OFF = 0x2100000; FL_SZ = 6*16*FGRP + 3*16*32768
FLH = 0; FLP = 16*FGRP; FLO = 32*FGRP; FLR = 48*FGRP; FLA = 64*FGRP; FLW = 80*FGRP
if PAIR: FLO = 96*FGRP; FLH = FLO + 16*32768; FLP = FLH + 16*32768
HSP = int(os.environ.get('HSP', '4'))
FLP2 = 96*FGRP
assert not (HSP and PAIR)
def e_order():
    early = set()
    for cg in range(16):
        fs = (27*cg) >> 2
        early |= set(range(fs, fs + HSP))
    a = [s for s in range(54) if 2*s in early and 2*s + 1 in early]
    return a + [s for s in range(54) if s not in a], len(a)
S_, D_, F_ = 2048, 640, 1728

def srd_off(S, d, base, off, nbytes):
    if off:
        S(f's_add_u32 s{d}, s{base}, {off}')
        S(f's_addc_u32 s{d+1}, s{base+1}, 0')
        S(f's_and_b32 s{d+1}, s{d+1}, 0xffff')
    else:
        S(f's_mov_b32 s{d}, s{base}')
        S(f's_and_b32 s{d+1}, s{base+1}, 0xffff')
    S(f's_mov_b32 s{d+2}, {nbytes}')
    S(f's_mov_b32 s{d+3}, 0x00020000')

class LdsAddr:
    def __init__(self, S, regs):
        self.S = S; self.regs = regs
    def finish(self):
        for k in range(1, len(self.regs)):
            self.S(f'v_add_u32 v{self.regs[k]}, {65536*k}, v{self.regs[0]}')
    def at(self, c):
        k = c >> 16
        return f'v{self.regs[k]} offset:{c & 0xffff}' if (c & 0xffff) else f'v{self.regs[k]}'

def bf16_round(S, dst, src):
    S(f'v_cvt_pk_bf16_f32 v{dst}, v{src}, v{src}')
    S(f'v_lshlrev_b32 v{dst}, 16, v{dst}')

def interleave(S, mfmas, fillers, start=0):
    n = len(mfmas); m = len(fillers); k = 0
    for i, mf in enumerate(mfmas):
        S(mf)
        upto = (m * (i + 1) + n - 1) // n
        while k < min(upto, m):
            f = fillers[k]; k += 1
            if callable(f): f()
            elif isinstance(f, tuple): S(f[0], tag=f[1])
            else: S(f)
    while k < m:
        f = fillers[k]; k += 1
        if callable(f): f()
        elif isinstance(f, tuple): S(f[0], tag=f[1])
        else: S(f)


def prologue_guard(S, nwg):
    S(f's_cmp_ge_u32 s2, {nwg}')
    S('s_cbranch_scc1 L_exit_%s' % S.name)

def stamp(S, idx):
    if not getattr(S, 'stamps', False): return
    S('s_memtime s[90:91]')
    if idx == 0: S('s_memrealtime s[88:89]')
    S('s_waitcnt lgkmcnt(0)')
    S(f's_mov_b32 s{getattr(S, "sbase", 92)+idx}, s90')
    if idx == 0: S('s_mov_b32 s99, s88')

def stamp_flush(S, n, wave_sgpr, slot_base, vtmp=(1,2), kern_idx=0):
    if not getattr(S, 'stamps', False): return
    S('s_load_dwordx2 s[84:85], s[0:1], 72')
    S('s_memrealtime s[88:89]')
    S('s_memtime s[90:91]')
    S('s_waitcnt lgkmcnt(0)')
    S('s_mov_b32 s100, s88')
    S('s_mov_b32 s101, s90')
    S(f's_add_u32 s84, s84, {0x8000000 + kern_idx*0x100000}')
    S('s_addc_u32 s85, s85, 0')
    S('s_and_b32 s85, s85, 0xffff')
    S('s_mov_b32 s86, 0x100000')
    S('s_mov_b32 s87, 0x00020000')
    S(f's_lshl_b32 s88, s2, 3')
    S(f's_add_u32 s88, s88, s{wave_sgpr}')
    S(f's_lshl_b32 s88, s88, 6')
    B = 64
    S(f'v_mov_b32 v{B+16}, s88')
    src = {i: getattr(S, 'sbase', 92) + i for i in range(n)}; src.update({13: 99, 14: 100, 15: 101})
    for i in range(16):
        S(f'v_mov_b32 v{B+i}, s{src[i]}' if i in src else f'v_mov_b32 v{B+i}, 0')
    S('s_mov_b64 exec, 1')
    for k in range(4):
        S(f'buffer_store_dwordx4 v[{B+4*k}:{B+4*k+3}], v{B+16}, s[84:87], 0 offen offset:{16*k}')
    S('s_mov_b64 exec, -1')

def poll(S, lab, vaddr, vtmp, srd_, cnt=30):
    S(f's_mov_b32 s{cnt}, 0')
    S.label(lab)
    S(f'buffer_load_dword v{vtmp}, v{vaddr}, s[{srd_}:{srd_+3}], 0 offen sc1')
    S.wait(vm=0)
    S(f'v_cmp_ne_u32 vcc, s54, v{vtmp}')
    S(f's_cbranch_vccz {lab}_ok')
    S(f's_add_u32 s{cnt}, s{cnt}, 1')
    S(f's_cmp_lt_u32 s{cnt}, 0x4000')
    S(f's_cbranch_scc1 {lab}')
    S.label(lab + '_ok')

PSL = int(os.environ.get('PSL', '7'))
def poll2(S, lab, vaddr, va, vb, srd_, cnt=52):
    ld = lambda r: S(f'buffer_load_dword v{r}, v{vaddr}, s[{srd_}:{srd_+3}], 0 offen sc1')
    S(f's_mov_b32 s{cnt}, 0')
    vm = list(S.vm)
    ld(va)
    if PSL: S(f's_sleep {PSL}')
    S.label(lab)
    ld(vb)
    S('s_waitcnt vmcnt(1)')
    S(f'v_cmp_ne_u32 vcc, s54, v{va}')
    S(f's_cbranch_vccz {lab}_ok')
    S.vm = []
    ld(va)
    S('s_waitcnt vmcnt(1)')
    S(f'v_cmp_ne_u32 vcc, s54, v{vb}')
    S(f's_cbranch_vccz {lab}_ok')
    S.vm = []
    S(f's_add_u32 s{cnt}, s{cnt}, 1')
    S(f's_cmp_lt_u32 s{cnt}, 0x2000')
    S(f's_cbranch_scc1 {lab}')
    S.label(lab + '_ok')
    S.vm = []

def set_flag(S, vaddr, vtmp, srd_, mask='1'):
    S(f'v_mov_b32 v{vtmp}, s54')
    S(f's_mov_b64 exec, {mask}')
    S.nosmod = True
    S(f'buffer_store_dword v{vtmp}, v{vaddr}, s[{srd_}:{srd_+3}], 0 offen sc1')
    S('s_mov_b64 exec, -1')
```

```python
import os
from common import *
import phaseR

KP0 = 0; PSTR = 6208
VP0 = 31232
AUX = 62464
LDS_B0 = AUX + 6656
MERGE = int(os.environ.get('MERGE', '1'))
LDS_B = LDS_B0 + (3*16384 if MERGE else 0)
THREADS_B = 512 if MERGE else 256
RSMOD = os.environ.get('RSMOD', '')
WOA = int(os.environ.get('WOA', '1'))
NEG = 0xF149F2CA
TAILX = 155648

MRG = int(os.environ.get('MRG', '1'))
EPO = int(os.environ.get('EPO', '1'))
VLATE = int(os.environ.get('VLATE', '0'))
QKP = int(os.environ.get('QKP', '0'))
PKS = int(os.environ.get('PKS', '1'))
def gen(A, name='phB_kernel', stamps=False, nthreads=256):
    S = Sched(A); S.name = name; S.stamps = stamps
    kernel_header(A, name)
    S(f's_load_dwordx2 s[8:9], s[0:1], {KA_WS}')
    prologue_guard(S, 256)
    S('v_lshrrev_b32 v1, 6, v0')
    S('s_and_b32 s13, s2, 7'); S('s_lshr_b32 s14, s2, 3')
    S('v_readfirstlane_b32 s10, v1')
    S('v_and_b32 v0, 63, v0')
    tilemap(S)
    stamp(S, 0)
    if MERGE:
        S('s_cmp_ge_u32 s10, 4'); S(f's_cbranch_scc1 L_help_{name}')
    attention(S, name)
    if MERGE:
        S('s_endpgm')
        S.label(f'L_help_{name}')
        S.hist = []; S.lds = []; S.vm = []; S.smem_pending = [('s', 8), ('s', 9)]
        helper(S, name)
    S.label(f'L_exit_{name}')
    S('s_endpgm')
    kernel_desc(A, name, 256, 102)

def tilemap(S):
    S('s_lshr_b32 s12, s14, 4'); S('s_lshl_b32 s13, s13, 1'); S('s_add_u32 s12, s12, s13')
    S('s_and_b32 s11, s14, 15')

def kv_dma(S, ty, tag, sw, T):
    for n in range(8):
        S(f's_lshl_b32 s18, s{sw}, 3'); S(f's_add_u32 s18, s18, {n}'); S('s_min_u32 s18, s18, 29')
        S('s_mul_i32 s19, s18, 43'); S('s_lshr_b32 s19, s19, 8')
        S('s_mul_i32 s26, s19, 6'); S('s_sub_u32 s26, s18, s26')
        S('s_lshl_b32 s26, s26, 10')
        S(f's_mul_i32 s27, s19, {PSTR}'); S('s_add_u32 s27, s27, s26')
        S(f's_add_u32 m0, s27, {KP0 if ty == 1 else VP0}')
        S('s_add_u32 s19, s19, s16'); S(f's_add_u32 s19, s19, {80*ty}'); S('s_lshl_b32 s19, s19, 15')
        S('s_add_u32 s19, s19, s26'); S('s_add_u32 s19, s19, s17')
        S(f'buffer_load_dwordx4 v{T}, s[20:23], s19 offen lds', tag=tag)

def kv_prep(S, ty, sw, regs):
    for n in range(8):
        S(f's_lshl_b32 s18, s{sw}, 3'); S(f's_add_u32 s18, s18, {n}'); S('s_min_u32 s18, s18, 29')
        S('s_mul_i32 s19, s18, 43'); S('s_lshr_b32 s19, s19, 8')
        S('s_mul_i32 s26, s19, 6'); S('s_sub_u32 s26, s18, s26')
        S('s_lshl_b32 s26, s26, 10')
        S(f's_mul_i32 s27, s19, {PSTR}'); S('s_add_u32 s27, s27, s26')
        S(f's_add_u32 s{regs[2*n]}, s27, {KP0 if ty == 1 else VP0}')
        S('s_add_u32 s19, s19, s16'); S(f's_add_u32 s19, s19, {80*ty}'); S('s_lshl_b32 s19, s19, 15')
        S('s_add_u32 s26, s26, s17'); S('s_max_i32 s26, s26, 0'); S(f's_add_u32 s{regs[2*n+1]}, s19, s26')
def kv_fire(S, regs, T, tag):
    for n in range(8):
        S(f's_mov_b32 m0, s{regs[2*n]}')
        S(f'buffer_load_dwordx4 v{T}, s[20:23], s{regs[2*n+1]} offen lds', tag=tag)

def helper(S, name, F=None):
    if F and F.withA:
        S('s_sub_u32 s38, s10, 4')
        S('s_mul_i32 s16, s12, 5')
        S('s_lshl_b32 s17, s11, 7'); S('s_sub_u32 s17, s17, 256'); S('s_lshl_b32 s17, s17, 4')
        VR = list(range(40, 52)) + [78, 79, 80, 81]
        kv_prep(S, 2, 38, VR)
        F.a_help_pre()
        if int(os.environ.get('RLATE', '1')):
            F.a_help_sync(0, 0)
            srd_off(S, 20, 8, QKV_OFF, QKV_SZ)
            S('v_lshlrev_b32 v60, 4, v0')
            if VLATE == 2:
                S('s_barrier')
                kv_fire(S, VR, 60, 'V')
                S('s_barrier')
            elif VLATE:
                S('s_barrier')
                kv_fire(S, VR, 60, 'V')
            else:
                kv_fire(S, VR, 60, 'V')
                S('s_barrier')
            def after_issue(n):
                S.A.raw(f'  s_waitcnt vmcnt({n})')
                S('s_barrier')
                F.a_help_post(n, 0)
            phaseR.repack(S, name, 38, LDS_B0, T=1, after_issue=after_issue, smod=os.environ.get('RS', ' sc1'), njobs=int(os.environ.get('RJ', '540')))
            return
        cnt = [0]
        def after_issue(n):
            cnt[0] += 1
            F.a_help_sync(n, cnt[0])
            srd_off(S, 20, 8, QKV_OFF, QKV_SZ)
            S('v_lshlrev_b32 v60, 4, v0')
            kv_fire(S, VR, 60, 'V')
            S('s_barrier')
            S.A.raw('  s_waitcnt vmcnt(0)'); S.vm = []
            S('s_barrier')
            F.a_help_post(n, cnt[0])
        phaseR.repack(S, name, 38, LDS_B0, T=1, after_issue=after_issue, smod=os.environ.get('RS', ' sc1'), njobs=540)
        return
    S('s_sub_u32 s38, s10, 4')
    S('s_waitcnt lgkmcnt(0)')
    srd_off(S, 20, 8, QKV_OFF, QKV_SZ)
    S('v_lshlrev_b32 v40, 4, v0')
    S('s_mul_i32 s16, s12, 5')
    S('s_lshl_b32 s17, s11, 7'); S('s_sub_u32 s17, s17, 256'); S('s_lshl_b32 s17, s17, 4')
    kv_dma(S, 2, 'V', 38, 40)
    S('s_barrier')
    def after_issue(n):
        S.A.raw(f'  s_waitcnt vmcnt({n})')
        S('s_barrier')
    if F:
        F.b_help_pre()
        phaseR.repack(S, name, 38, LDS_B0, T=1, after_issue=after_issue, smod=os.environ.get('RS', ' sc1'), njobs=540 if WOA else 640)
        return
    phaseR.repack(S, name, 38, LDS_B0, T=1, after_issue=after_issue, smod=RSMOD, njobs=540 if WOA else 640)
    stamp(S, 1)
    stamp_flush(S, 2, 10, 0, kern_idx=1)

def attention(S, name, F=None):
    S('s_and_b32 s14, s10, 1'); S('s_lshr_b32 s15, s10, 1')
    Sb = 0 + 16
    B0 = 160; B8 = 176
    OA = 192
    Q = 208
    KO = 220
    VO = 232
    aKm, aKt, aV = 2, 3, 4
    oM, oT = 5, 6
    T = 7
    vM = 248; vL = 249
    sc = lambda j, r=0: Sb + 16*j + r
    S('s_waitcnt lgkmcnt(0)')
    srd_off(S, 20, 8, QKV_OFF, QKV_SZ)
    S(f'v_lshlrev_b32 v{T}, 4, v0')
    S('s_mul_i32 s16, s12, 5')
    S('s_lshl_b32 s17, s11, 7'); S('s_sub_u32 s17, s17, 256'); S('s_lshl_b32 s17, s17, 4')
    def dma(ty, tag): kv_dma(S, ty, tag, 10, T)
    lateq = F and F.withA
    KR = list(range(40, 56)); vQa, vQb = (250, 251) if lateq else (T+3, T+4)
    if lateq: kv_prep(S, 1, 10, KR)
    else: dma(1, 'K')
    S(f'v_and_b32 v{T+1}, 31, v0')
    S(f'v_lshrrev_b32 v{T+2}, 5, v0')
    S('s_mul_i32 s18, s14, 3'); S('s_add_u32 s18, s18, s16')
    S(f'v_add_u32 v{T+3}, s18, v{T+2}')
    S(f'v_lshlrev_b32 v{T+3}, 15, v{T+3}')
    S('s_lshl_b32 s19, s11, 1'); S('s_add_u32 s19, s19, s15'); S('s_lshl_b32 s19, s19, 10')
    S(f'v_lshl_add_u32 v{T+4}, v{T+1}, 4, s19')
    S(f'v_add_u32 v{vQa}, v{T+3}, v{T+4}')
    def qmain():
        for b in range(2):
            S(f'buffer_load_dwordx4 {v(Q+6*b,4)}, v{vQa}, s[20:23], 0 offen offset:{512*b}', tag='Q')
    if not lateq: qmain()
    S('s_add_u32 s18, s16, 2'); S('s_lshr_b32 s35, s18, 1'); S('s_and_b32 s35, s35, 1'); S('s_xor_b32 s35, s35, s14')
    S('s_lshl_b32 s27, s18, 15'); S('s_lshl_b32 s28, s35, 3'); S('s_add_u32 s27, s27, s28')
    S(f'v_add_u32 v{vQb}, s27, v{T+4}')
    def qtail():
        for b in range(2):
            S(f'buffer_load_dwordx2 {v(Q+6*b+4,2)}, v{vQb}, s[20:23], 0 offen offset:{512*b}', tag='Q')
    if not lateq: qtail()
    if not MERGE: dma(2, 'V')
    S('s_mul_i32 s18, s10, 100')
    S(f'v_add_u32 v{T+5}, s18, v0')
    S('s_lshl_b32 s19, s11, 7'); S('s_sub_u32 s19, 256, s19')
    S(f'v_mov_b32 v{KO}, 0x3f80'); S(f'v_mov_b32 v{KO+1}, 0'); S(f'v_mov_b32 v{KO+3}, 0')
    S(f'v_mov_b32 v{T+3}, 0xf149')
    for k in range(2):
        S(f'v_cmp_gt_i32 vcc, s19, v{T+5}')
        S(f'v_cndmask_b32 v{KO+2}, 0, v{T+3}, vcc')
        S(f'v_lshlrev_b32 v{T+4}, 4, v{T+5}')
        if k == 1:
            S('s_mov_b32 exec_lo, -1'); S('s_mov_b32 exec_hi, 0xf') if False else None
            S('s_mov_b64 exec, 0xfffffffff') if False else None
            S('s_mov_b32 s30, -1'); S('s_mov_b32 s31, 0xf'); S('s_mov_b64 exec, s[30:31]')
        S(f'ds_write_b128 v{T+4}, {v(KO,4)} offset:{AUX}')
        if k == 0: S(f'v_add_u32 v{T+5}, 64, v{T+5}')
    S('s_mov_b64 exec, -1')
    S('s_mul_i32 s18, s14, 3')
    S(f'v_add_u32 v{T+3}, s18, v{T+2}'); S(f'v_mul_u32_u24 v{T+3}, {PSTR}, v{T+3}')
    S('s_lshl_b32 s19, s15, 10')
    S(f'v_lshl_add_u32 v{T+4}, v{T+1}, 4, s19')
    S(f'v_add_u32 v{aKm}, v{T+3}, v{T+4}')
    if KP0: S(f'v_add_u32 v{aKm}, {KP0}, v{aKm}')
    S('s_lshl_b32 s28, s35, 3'); S(f's_add_u32 s28, s28, {KP0 + 2*PSTR}')
    S(f'v_mov_b32 v{T+3}, s28'); S(f'v_mov_b32 v{T+5}, {AUX+8}')
    S(f'v_cmp_eq_u32 vcc, 0, v{T+2}')
    S(f'v_cndmask_b32 v{T+3}, v{T+5}, v{T+3}, vcc')
    S(f'v_add_u32 v{aKt}, v{T+3}, v{T+4}')
    S(f'v_and_b32 v{T+3}, 3, v0')
    S(f'v_lshrrev_b32 v{T+4}, 2, v0'); S(f'v_and_b32 v{T+4}, 3, v{T+4}')
    S(f'v_lshl_add_u32 v{T+4}, v{T+2}, 2, v{T+4}')
    S(f'v_lshlrev_b32 v{T+4}, 4, v{T+4}')
    S(f'v_add_u32 v{T+4}, s19, v{T+4}')
    S(f'v_lshrrev_b32 v{T+5}, 1, v{T+3}'); S('s_mul_i32 s18, s14, 3'); S(f'v_add_u32 v{T+5}, s18, v{T+5}')
    S(f'v_add_u32 v{T+6}, s16, v{T+5}'); S(f'v_lshrrev_b32 v{T+6}, 1, v{T+6}'); S(f'v_xor_b32 v{T+6}, v{T+6}, v{T+3}')
    S(f'v_and_b32 v{T+6}, 1, v{T+6}')
    S(f'v_mul_u32_u24 v{T+5}, {PSTR}, v{T+5}'); S(f'v_lshl_add_u32 v{T+5}, v{T+6}, 3, v{T+5}')
    S(f'v_add_u32 v{T+5}, {VP0}, v{T+5}')
    S(f's_lshl_b32 s28, s35, 3'); S(f's_add_u32 s28, s28, {VP0 + 2*PSTR}')
    S('s_lshl_b32 s29, s14, 7'); S(f's_sub_u32 s29, {AUX+192}, s29')
    S(f'v_mov_b32 v{T+6}, s29'); S(f'v_mov_b32 v{T+7}, s28')
    S(f'v_cmp_eq_u32 vcc, 0, v{T+3}'); S(f'v_cndmask_b32 v{T+6}, v{T+6}, v{T+7}, vcc')
    S(f'v_bfe_u32 v{T+7}, v0, 4, 1'); S(f'v_cmp_eq_u32 vcc, 0, v{T+7}')
    S(f'v_cndmask_b32 v{T+5}, v{T+6}, v{T+5}, vcc')
    S(f'v_add_u32 v{aV}, v{T+5}, v{T+4}')
    S(f'v_lshlrev_b32 v{T+3}, 2, v{T+2}'); S(f'v_sub_u32 v{T+3}, v{T+1}, v{T+3}')
    S(f'v_mov_b32 v{T+4}, 0x{NEG:08x}')
    for r in range(16):
        c_ = (r & 3) + 8*(r >> 2)
        S(f'v_cmp_gt_i32 vcc, {c_}, v{T+3}')
        if MRG:
            S(f'v_cndmask_b32 v{B0+r}, 0, -1, vcc')
            continue
        S(f'v_cndmask_b32 v{B0+r}, v{T+4}, 0, vcc')
        S(f'v_cndmask_b32 v{B8+r}, 0, v{T+4}, vcc')
    if MRG:
        S('s_mov_b32 s36, 0xffff')
        for k in range(8): S(f'v_bfi_b32 v{B8+k}, s36, v{B0+2*k}, v{B0+2*k+1}')
    srd_off(S, 24, 8, OF_OFF, OF_SZ)
    S('s_lshl_b32 s18, s11, 1'); S('s_add_u32 s18, s18, s15'); S('s_lshl_b32 s18, s18, 2')
    S(f'v_lshrrev_b32 v{T+3}, 4, v{T+1}'); S(f'v_add_u32 v{T+3}, s18, v{T+3}')
    S(f'v_mul_u32_u24 v{T+3}, {20*1024}, v{T+3}')
    S(f'v_and_b32 v{T+4}, 15, v0'); S(f'v_lshl_add_u32 v{T+3}, v{T+4}, 4, v{T+3}')
    S('s_lshl_b32 s18, s12, 10'); S('s_lshl_b32 s19, s14, 9'); S('s_add_u32 s18, s18, s19')
    S(f'v_lshl_add_u32 v{oM}, v{T+2}, 8, v{T+3}'); S(f'v_add_u32 v{oM}, s18, v{oM}')
    S('s_lshr_b32 s18, s12, 2'); S('s_add_u32 s18, s18, 16'); S('s_lshl_b32 s18, s18, 10')
    S('s_and_b32 s19, s12, 3'); S('s_lshl_b32 s19, s19, 8'); S('s_add_u32 s18, s18, s19')
    S('s_lshl_b32 s19, s14, 3'); S('s_add_u32 s18, s18, s19')
    S(f'v_add_u32 v{oT}, s18, v{T+3}')
    S(f'v_mov_b32 v{T+4}, 0x40000000'); S(f'v_cmp_eq_u32 vcc, 0, v{T+2}')
    S(f'v_cndmask_b32 v{oT}, v{T+4}, v{oT}, vcc')
    if F:
        S('s_lshl_b32 s18, s15, 10'); S('s_lshl_b32 s19, s14, 3'); S('s_add_u32 s18, s18, s19'); S(f's_add_u32 s18, s18, {TAILX}')
        S(f'v_lshl_add_u32 v{oT}, v{T+1}, 4, s18')
        S('s_mov_b32 s30, -1'); S('s_mov_b32 s31, 0')
    if lateq:
        S(f'v_lshlrev_b32 v252, 4, v0')
        F.b_pre()
        kv_fire(S, KR, 252, 'K')
        qmain(); qtail()
        if VLATE == 2: S('s_barrier')
        S(f'v_cmp_eq_u32 vcc, 0, v{T+2}')
    S.wait_tag('Q')
    S(f'v_mov_b32 v{T+4}, 0x3f80')
    for b in range(2):
        S(f'v_cndmask_b32 v{Q+6*b+4}, v{T+4}, v{Q+6*b+4}, vcc')
        S(f'v_cndmask_b32 v{Q+6*b+5}, 0, v{Q+6*b+5}, vcc')
    S.wait_tag('K')
    S.wait(lgkm=0)
    if not F: stamp(S, 1)
    S('s_barrier')
    if not F: stamp(S, 2)
    elif F.withA: stamp(S, 8)
    kb = (lambda j: KO + 6*(j & 3)) if QKP else (lambda j: KO + 6*(j & 1))
    def kreads(b, j):
        off = (32*b + 32*j)*16
        return [f'ds_read_b128 {v(kb(j),4)}, v{aKm} offset:{off}',
                f'ds_read_b64 {v(kb(j)+4,2)}, v{aKt} offset:{off}']
    def vreads(b, j, sg):
        buf = (2*j + sg) & 3
        off = (32*b + 32*j + 16*sg)*16
        return [f'ds_read_b64_tr_b16 {v(VO+4*buf+2*p,2)}, v{aV} offset:{off + 128*p}' for p in range(2)]
    pend = []
    for b in range(2):
        for x in kreads(b, 0): S(x)
        def maxops(j):
            L = []
            j1 = 1 if MRG else 0
            if MRG and j == 0: return []
            if MRG and j == 8:
                L = [f'v_bfi_b32 v{sc(0,r)}, v{B0+r}, v{sc(0,r)}, v{sc(8,r)}' for r in range(16)]
                return L + [f'v_max3_f32 v{vM if k%2==0 else vL}, v{sc(0,2*k)}, v{sc(0,2*k+1)}, v{vM if k%2==0 else vL}' for k in range(8)]
            for k in range(8):
                if j == j1 and k == 0:
                    L.append(f'v_max_f32 v{vM}, v{sc(j,0)}, v{sc(j,1)}')
                else:
                    L.append(f'v_max3_f32 v{vM if k%2==0 else vL}, v{sc(j,2*k)}, v{sc(j,2*k+1)}, v{vM if k%2==0 else vL}' if not (j == j1 and k == 1)
                             else f'v_max_f32 v{vL}, v{sc(j,2)}, v{sc(j,3)}')
            return L
        if QKP:
            for jj in (1, 2):
                for x in kreads(b, jj): S(x)
            def M_(j):
                cin = v(B0,16) if j == 0 else (v(B8,16) if j == 8 else '0')
                S(f'v_mfma_f32_32x32x16_bf16 {v(sc(j),16)}, {v(kb(j),4)}, {v(Q+6*b,4)}, {cin}')
            M_(0)
            for j in range(9):
                mo = maxops(j - 2) if j >= 2 else []
                if j + 1 < 9: M_(j + 1)
                nxt = kreads(b, j + 3) if j + 3 < 9 else []
                for x in nxt[:1]: S(x)
                for x in mo[:4]: S(x)
                S(f'v_mfma_f32_32x32x8_bf16 {v(sc(j),16)}, {v(kb(j)+4,2)}, {v(Q+6*b+4,2)}, {v(sc(j),16)}')
                for x in nxt[1:]: S(x)
                for x in mo[4:]: S(x)
        for j in range(0 if QKP else 9):
            buf = j & 1
            cin = v(B0,16) if j == 0 else (v(B8,16) if j == 8 else '0')
            if MRG: cin = '0'
            if j + 1 < 9:
                nxt = kreads(b, j + 1)
            else: nxt = []
            S(f'v_mfma_f32_32x32x16_bf16 {v(sc(j),16)}, {v(KO+6*buf,4)}, {v(Q+6*b,4)}, {cin}')
            for x in nxt: S(x)
            mo = maxops(j - 2) if j >= 2 else []
            for x in mo[:4]: S(x)
            S(f'v_mfma_f32_32x32x8_bf16 {v(sc(j),16)}, {v(KO+6*buf+4,2)}, {v(Q+6*b+4,2)}, {v(sc(j),16)}')
            for x in mo[4:]: S(x)
            if j >= 1 and pend:
                n = len(pend) if j == 8 else (4 if len(pend) > 7 else len(pend))
                for x in pend[:n]: S(x)
                del pend[:n]
        if b == 0:
            if not MERGE: S.wait_tag('V')
            S('s_barrier')
        for x in vreads(b, 0, 0): S(x)
        for x in vreads(b, 0, 1): S(x)
        for x in maxops(7): S(x)
        for x in maxops(8): S(x)
        S(f'v_max_f32 v{vM}, v{vM}, v{vL}')
        S(f'v_mov_b32 v{vL}, v{vM}')
        S(f'v_permlane32_swap_b32 v{vM}, v{vL}')
        S(f'v_max_f32 v{vM}, v{vM}, v{vL}')
        if b == 0 and not F: stamp(S, 3)
        def subs(hh):
            if hh >= (16 if MRG else 18): return
            j_, sg_ = divmod(hh, 2)
            if PKS:
                for r in range(8*sg_, 8*sg_ + 8, 2):
                    S(f'v_pk_add_f32 {v(sc(j_,r),2)}, {v(sc(j_,r),2)}, {v(vM,2)} op_sel_hi:[1,0] neg_lo:[0,1] neg_hi:[0,1]')
            else:
                for r in range(8*sg_, 8*sg_ + 8):
                    S(f'v_sub_f32 v{sc(j_,r)}, v{sc(j_,r)}, v{vM}')
        if PKS: subs(0)
        for j in range(9):
            mf = []
            for sg in range(2):
                cin = '0' if (j == 0 and sg == 0) else v(OA,16)
                mf.append(f'v_mfma_f32_32x32x16_bf16 {v(OA,16)}, {v(VO+4*((2*j+sg)&3),4)}, {v(sc(j,4*sg),4)}, {cin}')
            for sg in range(2):
                if not PKS: subs(2*j + sg)
                for r in range(8*sg, 8*sg + 8):
                    if not (MRG and j == 8): S(f'v_exp_f32 v{sc(j,r)}, v{sc(j,r)}')
                for k in range(4):
                    if not (MRG and j == 8): S(f'v_cvt_pk_bf16_f32 v{sc(j,4*sg+k)}, v{sc(j,8*sg+2*k)}, v{sc(j,8*sg+2*k+1)}')
                if MRG and j == 0:
                    for k in range(4*sg, 4*sg + 4): S(f'v_bfi_b32 v{sc(8,k)}, v{B8+k}, 0, v{sc(0,k)}')
                    for k in range(4*sg, 4*sg + 4): S(f'v_and_b32 v{sc(0,k)}, v{B8+k}, v{sc(0,k)}')
                if PKS: subs(2*j + sg + 1)
                S(mf[sg])
                nj, nsg = (j, sg + 2 - 2) if False else ((2*j + sg + 2) >> 1, (2*j + sg + 2) & 1)
                if nj < 9:
                    for x in vreads(b, nj, nsg): S(x)
        if EPO and F:
            vR = T + 8
            E_ = [f'v_rcp_f32 v{vR}, v{OA+12}'] + [f'v_mul_f32 v{OA+r}, v{OA+r}, v{vR}' for r in range(12)]
            E_ += [f'v_cvt_pk_bf16_f32 v{OA+k}, v{OA+2*k}, v{OA+2*k+1}' for k in range(6)]
            if b == 0: E_.append(f's_mov_b32 s34, {2*20*1024}')
            E_.append(f'buffer_store_dwordx4 {v(OA,4)}, v{oM}, s[24:27], {"0" if b == 0 else "s34"} offen sc1')
            E_ += ['s_mov_b64 exec, s[30:31]', f'ds_write_b64 v{oT}, {v(OA+4,2)} offset:{512*b}', 's_mov_b64 exec, -1']
            if b == 0: pend[:] = E_
            else:
                for x in E_: S(x)
            continue
        S(f'v_rcp_f32 v{vL}, v{OA+12}')
        for r in range(12):
            S(f'v_mul_f32 v{OA+r}, v{OA+r}, v{vL}')
        for k in range(6):
            S(f'v_cvt_pk_bf16_f32 v{KO+k}, v{OA+2*k}, v{OA+2*k+1}')
        if F:
            if b == 0: S(f's_mov_b32 s34, {2*20*1024}')
            S(f'buffer_store_dwordx4 {v(KO,4)}, v{oM}, s[24:27], {"0" if b == 0 else "s34"} offen sc1')
            S('s_mov_b64 exec, s[30:31]')
            S(f'ds_write_b64 v{oT}, {v(KO+4,2)} offset:{512*b}')
            S('s_mov_b64 exec, -1')
            continue
        S(f'buffer_store_dwordx4 {v(KO,4)}, v{oM}, s[24:27], {"0" if b == 0 else "s34"} offen') if b == 0 else None
        if b == 0:
            S(f'buffer_store_dwordx2 {v(KO+4,2)}, v{oT}, s[24:27], 0 offen')
            S(f's_mov_b32 s34, {2*20*1024}')
            stamp(S, 4)
        else:
            S(f'buffer_store_dwordx4 {v(KO,4)}, v{oM}, s[24:27], s34 offen')
            S(f'buffer_store_dwordx2 {v(KO+4,2)}, v{oT}, s[24:27], s34 offen')
    if F:
        S('s_lshl_b32 s18, s11, 3'); S('s_lshl_b32 s19, s10, 1'); S('s_add_u32 s18, s18, s19')
        S(f'v_bfe_u32 v{T+3}, v0, 4, 1'); S(f'v_add_u32 v{T+3}, s18, v{T+3}'); S(f'v_mul_u32_u24 v{T+3}, {20*1024}, v{T+3}')
        S(f'v_and_b32 v{T+4}, 15, v0'); S(f'v_lshl_add_u32 v{T+3}, v{T+4}, 4, v{T+3}')
        S('s_lshr_b32 s18, s12, 2'); S('s_add_u32 s18, s18, 16'); S('s_lshl_b32 s18, s18, 10')
        S('s_and_b32 s19, s12, 3'); S('s_lshl_b32 s19, s19, 8'); S('s_add_u32 s18, s18, s19')
        S(f'v_add_u32 v{T+3}, s18, v{T+3}')
        S('s_lshl_b32 s19, s10, 9'); S(f's_add_u32 s19, s19, {TAILX}'); S(f'v_lshl_add_u32 v{T+4}, v0, 4, s19')
        S.wait(lgkm=0)
        F.st(S, 1)
        S('s_barrier')
        S('s_mov_b64 exec, s[30:31]')
        S(f'ds_read_b128 {v(KO,4)}, v{T+4}')
        S(f'buffer_store_dwordx4 {v(KO,4)}, v{T+3}, s[24:27], 0 offen sc1')
        S('s_mov_b64 exec, -1')
        return
    stamp(S, 5)
    stamp_flush(S, 6, 10, 0, vtmp=(7, 8), kern_idx=1)

if __name__ == '__main__':
    A = Asm()
    A.raw(f'; @launch kernel=phB_kernel grid=(256,1,1) block=(256,1,1) lds={LDS_B}')
    A.raw('.amdgcn_target "amdgcn-amd-amdhsa--gfx950"')
    gen(A)
    open('b.s','w').write(A.text())
```

```python
import os
ESM = os.environ.get('ESM', '')
from common import *

CFG = {'C': dict(NSTEP=20, SPS=4, NS=5, DB=int(os.environ.get('DBC', '8'))),
       'E': dict(NSTEP=54, SPS=3, NS=int(os.environ.get('NSE', '10')), DB=int(os.environ.get('DBE', '6')))}
def lds_bytes(mode): c = CFG[mode]; return c['NS']*c['SPS']*5120
def threads(mode): return 256 + 64*CFG[mode]['SPS']

def gen(A, name='phC_kernel', mode='C', stamps=False, rot=int(os.environ.get('ROT','0'))):
    S = Sched(A); S.name = name; S.stamps = stamps
    kernel_header(A, name)
    S(f's_load_dwordx2 s[8:9], s[0:1], {KA_WS}')
    if mode == 'C': S(f's_load_dwordx2 s[4:5], s[0:1], {KA_X}')
    else: S(f's_load_dwordx2 s[4:5], s[0:1], {KA_OUT}')
    prologue_guard(S, 256)
    S('v_lshrrev_b32 v1, 6, v0')
    S('s_and_b32 s13, s2, 7'); S('s_lshr_b32 s14, s2, 3')
    S('v_readfirstlane_b32 s10, v1')
    S('v_and_b32 v0, 63, v0')
    tilemap(S)
    c = CFG[mode]; NST = c['NSTEP'] // c['SPS']
    if rot:
        S('s_and_b32 s16, s12, 3'); S('s_lshl_b32 s16, s16, 1'); S('s_add_u32 s16, s16, s11'); S('s_and_b32 s16, s16, 7')
        S(f's_mul_i32 s16, s16, {NST}'); S('s_lshr_b32 s44, s16, 3')
    else: S('s_mov_b32 s44, 0')
    stamp(S, 0)
    S('s_cmp_ge_u32 s10, 4')
    S(f's_cbranch_scc1 L_prod_{name}')
    consumer(S, mode)
    S.label(f'L_prod_{name}')
    S.hist = []; S.lds = []; S.vm = []; S.smem_pending = [('s', 8), ('s', 9), ('s', 4), ('s', 5)]
    producer(S, mode)
    S.label(f'L_exit_{name}')
    S('s_endpgm')
    kernel_desc(A, name, 128, 102)

def tilemap(S):
    S('s_and_b32 s11, s13, 3'); S('s_lshl_b32 s11, s11, 3'); S('s_and_b32 s15, s14, 7'); S('s_add_u32 s11, s11, s15')
    S('s_lshr_b32 s12, s13, 2'); S('s_lshl_b32 s12, s12, 2'); S('s_lshr_b32 s15, s14, 3'); S('s_add_u32 s12, s12, s15')

def producer(S, mode, F=None):
    c = CFG[mode]; NSTEP, SPS, NS = c['NSTEP'], c['SPS'], c['NS']; NST = NSTEP // SPS
    STG = SPS*5120
    S('s_sub_u32 s19, s10, 4')
    S('v_lshlrev_b32 v2, 4, v0')
    S(f's_mul_i32 s16, s12, {NSTEP}'); S('s_add_u32 s16, s16, s19'); S('s_mul_i32 s16, s16, 5120')
    S(f's_mul_i32 s17, s44, {STG}'); S('s_add_u32 s17, s17, s16')
    S(f's_add_u32 s26, s16, {NST*STG}')
    S(f's_mul_i32 s28, s19, 5120')
    so = F.e_slot if (F and mode == 'E') else (lambda sl: sl*STG)
    S('s_waitcnt lgkmcnt(0)')
    if mode == 'C': srd_off(S, 20, 8, WOF_OFF, WOF_SZ)
    else: srd_off(S, 20, 8, WDF_OFF, WDF_SZ)
    perm = e_order()[0] if (F and mode == 'E' and HSP) else None
    if perm: S('s_lshl_b32 s19, s19, 3'); S(f's_mul_i32 s16, s12, {NSTEP*5120}')
    def issue(t):
        slot = t % NS
        if perm:
            lit = perm[3*t] | (perm[3*t + 1] << 8) | (perm[3*t + 2] << 16)
            S(f's_lshr_b32 s17, {lit}, s19'); S('s_and_b32 s17, s17, 0xff'); S('s_mul_i32 s17, s17, 5120'); S('s_add_u32 s17, s17, s16')
        S(f's_add_u32 m0, s28, {so(slot)}', tag=t)
        for f in range(4):
            S(f'buffer_load_dwordx4 v2, s[20:23], s17 offen' + (f' offset:{f*1024}' if f else '') + ' lds', tag=t)
        S(f's_add_u32 m0, s28, {so(slot) + 4096}'); S('s_add_u32 s18, s17, 4096')
        S(f'buffer_load_dwordx4 v2, s[20:23], s18 offen lds', tag=t)
        if not perm:
            S(f's_add_u32 s17, s17, {STG}'); S('s_cmp_eq_u32 s17, s26'); S('s_cselect_b32 s17, s16, s17')
    npre = min(NS, NST)
    if F and (mode == 'E' or F.withB):
        n0 = int(os.environ.get('PRE' + mode, '6' if mode == 'E' else '2'))
        for t in range(n0): issue(t)
        n1 = min(npre, n0 + int(os.environ.get('MID' + mode, '4' if mode == 'E' else '0')))
        def mid():
            for t in range(n0, n1): issue(t)
        if mode == 'E': F.e_mid(mid)
        else: F.c_mid(mid)
        S.wait_tag(0)
        S('s_barrier')
        for t in range(n1, npre): issue(t)
    else:
        issue(0); issue(1)
        S.wait_tag(0)
        S('s_barrier')
        for t in range(2, npre): issue(t)
    for t in range(NST):
        if t + 1 < NST: S.wait_tag(t + 1)
        if F and mode == 'C': F.c_step(t)
        S('s_barrier')
        if t + NS < NST: issue(t + NS)
    if F and mode == 'C': return
    if not F: stamp(S, 1)
    if F: stamp_flush(S, 10, 10, 0, kern_idx=F.kidx)
    else: stamp_flush(S, 2, 10, 0, kern_idx=2 if mode == 'C' else 4)
    S('s_endpgm')

def consumer(S, mode, F=None):
    C_ = mode == 'C'
    c = CFG[mode]; NSTEP, SPS, NS, DB = c['NSTEP'], c['SPS'], c['NS'], c['DB']; NST = NSTEP // SPS
    STG = SPS*5120
    aW, vB, vRes, vHF, vSt = 1, 2, 3, 4, 5
    vH4 = 26; XS = 72
    T = 6
    RESR = 16
    ACC = 28
    OPA = 48
    RING = 88
    so = F.e_slot if (F and mode == 'E') else (lambda sl: sl*STG)
    if F and mode == 'E': RESR = F.KEEP
    acc = lambda nb: ACC + nb*4
    opa = lambda b, nb: OPA + b*20 + nb*4
    opb = lambda sg: RING + (sg % DB)*4
    S(f'v_lshlrev_b32 v{aW}, 4, v0')
    XE = int(os.environ.get('XE', '0'))
    if XE and not C_:
        S(f's_and_b32 s16, s11, {XE}'); S('s_lshl_b32 s16, s16, 2')
    else: S('s_lshl_b32 s16, s11, 2')
    S('s_add_u32 s16, s16, s10'); S(f's_mul_i32 s16, s16, {NSTEP*1024}')
    S(f'v_add_u32 v{vB}, s16, v{aW}')
    S(f's_mul_i32 s17, s44, {SPS*1024}')
    S('s_waitcnt lgkmcnt(0)')
    if C_: srd_off(S, 24, 8, OF_OFF, OF_SZ)
    else: srd_off(S, 24, 8, HP_OFF, HP_SZ)
    perm = e_order()[0] if (F and mode == 'E' and HSP) else None
    def bload(sg):
        kk = sg % SPS
        if perm:
            S(f's_mov_b32 s17, {perm[sg]*1024}')
            S(f'buffer_load_dwordx4 {v(opb(sg),4)}, v{vB}, s[24:27], s17 offen')
            return
        S(f'buffer_load_dwordx4 {v(opb(sg),4)}, v{vB}, s[24:27], s17 offen' + (f' offset:{kk*1024}' if kk else ''))
        if kk == SPS - 1:
            S(f's_add_u32 s17, s17, {SPS*1024}'); S(f's_cmp_eq_u32 s17, {NSTEP*1024}'); S('s_cselect_b32 s17, 0, s17')
    if F and mode == 'E': F.e_pre()
    if F and mode == 'C': F.c_pre()
    for sg in range(min(DB, NSTEP)): bload(sg)
    S(f'v_and_b32 v{T+1}, 15, v0')
    S(f'v_lshrrev_b32 v{T+2}, 4, v0')
    S('s_lshl_b32 s16, s11, 6'); S('s_lshl_b32 s18, s10, 4'); S('s_add_u32 s16, s16, s18')
    S(f'v_add_u32 v{T+3}, s16, v{T+1}')
    S(f'v_mul_u32_u24 v{vRes}, 1280, v{T+3}'); S('s_mul_i32 s18, s12, 160')
    S(f'v_lshl_add_u32 v{vRes}, v{T+2}, 3, v{vRes}'); S(f'v_add_u32 v{vRes}, s18, v{vRes}')
    S(f'v_lshrrev_b32 v{T+4}, 5, v{T+3}'); S(f'v_mul_u32_u24 v{T+4}, {40*1024}, v{T+4}')
    S(f'v_and_b32 v{T+5}, 31, v{T+3}'); S(f'v_lshl_add_u32 v{T+4}, v{T+5}, 4, v{T+4}')
    S(f'v_lshrrev_b32 v{T+5}, 1, v{T+2}'); S(f'v_lshl_add_u32 v{T+4}, v{T+5}, 9, v{T+4}')
    S(f'v_and_b32 v{T+5}, 1, v{T+2}'); S(f'v_lshl_add_u32 v{T+4}, v{T+5}, {10 if C_ else 3}, v{T+4}')
    S(f's_mul_i32 s18, s12, {5*1024}'); S(f'v_add_u32 v{vHF}, s18, v{T+4}')
    if C_:
        S(f'v_mov_b32 v{T+4}, 0x40000000'); S(f'v_cmp_eq_u32 vcc, 0, v{T+5}'); S(f'v_cndmask_b32 v{vH4}, v{T+4}, v{vHF}, vcc')
        S('s_lshl_b32 s18, s11, 2'); S('s_add_u32 s18, s18, s10'); S('s_lshl_b32 s18, s18, 3'); S('s_add_u32 s18, s18, s12'); S('s_lshl_b32 s18, s18, 7')
        S(f'v_lshl_add_u32 v{vSt}, v{T+1}, 3, s18')
        S(f'v_cmp_eq_u32 vcc, 0, v{T+2}'); S(f'v_cndmask_b32 v{vSt}, v{T+4}, v{vSt}, vcc')
        srd(S, 32, 4, 2048*1280)
        srd_off(S, 40, 8, ST_OFF, ST_SZ)
    else:
        srd(S, 32, 6 if F else 4, 2048*1280)
    if C_ or not F: srd_off(S, 36, 8, HF_OFF, HF_SZ)
    RES0 = int(os.environ.get('RES0', '0')) if (F and C_) else 0
    if RES0:
        for nb in range(5): S(f'buffer_load_dwordx2 {v(RESR+2*nb,2)}, v{vRes}, s[32:35], 0 offen offset:{32*nb}')
    def areads(sg):
        t, kk = divmod(sg, SPS)
        off = so(t % NS) + kk*5120
        return [f'ds_read_b128 {v(opa(sg&1,nb),4)}, v{[aW, T+9, T+8][(off + nb*1024) >> 16]} offset:{(off + nb*1024) & 0xffff}' for nb in range(5)]
    S(f'v_add_u32 v{T+9}, 65536, v{aW}')
    if F and mode == 'E': S(f'v_add_u32 v{T+8}, 131072, v{aW}')
    if not F: stamp(S, 1)
    S('s_barrier')
    if F: F.st(S, 3 if C_ else 11)
    else: stamp(S, 2)
    for x in areads(0): S(x)
    for sg in range(NSTEP):
        if sg % SPS == SPS - 1:
            S.wait(lgkm=0)
            S('s_barrier')
        fl = areads(sg + 1) if sg + 1 < NSTEP else []
        for nb in range(5):
            S(f'v_mfma_f32_16x16x32_bf16 {v(acc(nb),4)}, {v(opa(sg&1,nb),4)}, {v(opb(sg),4)}, {v(acc(nb),4) if sg else "0"}')
            if fl: S(fl[nb])
        if sg + DB < NSTEP: bload(sg + DB)
        if sg == NSTEP - 4 and not RES0:
            for nb in range(5):
                if C_: S(f'buffer_load_dwordx2 {v(RESR+2*nb,2)}, v{vRes}, s[32:35], 0 offen offset:{32*nb}')
                elif not F:
                    S(f's_mov_b32 s30, {1024*nb}')
                    S(f'buffer_load_dwordx2 {v(RESR+2*nb,2)}, v{vHF}, s[36:39], s30 offen')
    if F: F.st(S, 4 if C_ else 12)
    else: stamp(S, 3)
    U = OPA
    PK = OPA + 12
    if F and C_: PK = F.KEEP
    sm = ' sc1' if (F and C_) else ''
    sum_, ssq = U + 8, U + 9
    for nb in range(5):
        a_ = acc(nb)
        S(f'v_cvt_pk_bf16_f32 v{U}, v{a_}, v{a_+1}'); S(f'v_cvt_pk_bf16_f32 v{U+1}, v{a_+2}, v{a_+3}')
        for k in range(2):
            S(f'v_lshlrev_b32 v{a_+2*k}, 16, v{U+k}'); S(f'v_and_b32 v{a_+2*k+1}, 0xffff0000, v{U+k}')
            S(f'v_lshlrev_b32 v{U+2+2*k}, 16, v{RESR+2*nb+k}'); S(f'v_and_b32 v{U+3+2*k}, 0xffff0000, v{RESR+2*nb+k}')
        for h in range(2):
            S(f'v_pk_add_f32 {v(a_+2*h,2)}, {v(a_+2*h,2)}, {v(U+2+2*h,2)}')
        S(f'v_cvt_pk_bf16_f32 v{PK+2*nb}, v{a_}, v{a_+1}'); S(f'v_cvt_pk_bf16_f32 v{PK+2*nb+1}, v{a_+2}, v{a_+3}')
        if C_:
            if nb in (1, 3, 4):
                X = XS + 4*(nb >> 1); a0 = PK + 2*(nb - 1 if nb < 4 else nb); b0 = PK + 2*nb
                for k in range(2): S(f'v_mov_b32 v{X+k}, v{a0+k}'); S(f'v_mov_b32 v{X+2+k}, v{b0+k}')
                for k in range(2): S(f'v_permlane16_swap_b32 v{X+k}, v{X+2+k}')
                S(f's_mov_b32 s30, {1024*(nb & ~1)}')
                S(f'buffer_store_dwordx4 {v(X,4)}, v{vHF if nb < 4 else vH4}, s[36:39], s30 offen' + sm)
            for k in range(2):
                S(f'v_lshlrev_b32 v{a_+2*k}, 16, v{PK+2*nb+k}'); S(f'v_and_b32 v{a_+2*k+1}, 0xffff0000, v{PK+2*nb+k}')
            for k in range(4):
                if nb == 0 and k == 0:
                    S(f'v_mov_b32 v{sum_}, v{a_}'); S(f'v_mul_f32 v{ssq}, v{a_}, v{a_}')
                else:
                    S(f'v_add_f32 v{sum_}, v{sum_}, v{a_+k}'); S(f'v_fmac_f32 v{ssq}, v{a_+k}, v{a_+k}')
        else:
            S(f'buffer_store_dwordx2 {v(PK+2*nb,2)}, v{vRes}, s[32:35], 0 offen offset:{32*nb}' + ESM)
    if C_:
        for x in (sum_, ssq):
            S(f'v_mov_b32 v{U}, v{x}'); S(f'v_permlane32_swap_b32 v{x}, v{U}'); S(f'v_add_f32 v{x}, v{x}, v{U}')
            S(f'v_mov_b32 v{U}, v{x}'); S(f'v_permlane16_swap_b32 v{x}, v{U}'); S(f'v_add_f32 v{x}, v{x}, v{U}')
        S(f'buffer_store_dwordx2 {v(sum_,2)}, v{vSt}, s[40:43], 0 offen' + sm)
    if F and C_: return
    if F:
        stamp_flush(S, 13, 10, 0, kern_idx=F.kidx); S('s_endpgm'); return
    stamp(S, 4)
    stamp_flush(S, 5, 10, 0, vtmp=(1, 2), kern_idx=2 if C_ else 4)
    S('s_endpgm')

if __name__ == '__main__':
    for mode in 'CE':
        A = Asm()
        A.raw(f'; @launch kernel=ph{mode}_kernel grid=(256,1,1) block=({threads(mode)},1,1) lds={lds_bytes(mode)}')
        A.raw('.amdgcn_target "amdgcn-amd-amdhsa--gfx950"')
        gen(A, name=f'ph{mode}_kernel', mode=mode)
        open(f't/{mode}.s','w').write(A.text())
```

```python
import os
from common import *
import phaseCE1 as CE, phaseD2 as D, phaseB as B, phaseA as PA

LDS_F = D.LDS_D
THREADS_F = 512
NOSYNC = os.environ.get('NOSYNC', '')
CPF = int(os.environ.get('CPF', '15'))
PRIO = int(os.environ.get('PRIO', '0'))
PUSH = int(os.environ.get('PUSH', '0'))

class Fz:
    KEEP = 200
    kidx = 2
    def __init__(self, S, name, withB, withA=False): self.S = S; self.name = name; self.withB = withB; self.withA = withA
    def stx(self, i):
        if not self.withA: stamp(self.S, i)
    def st(self, S, i): stamp(S, i)
    def e_slot(self, sl):
        if CE.CFG['E']['NS'] == 6: return sl*15360 if sl < 5 else 6*D.STG
        return sl*15360 if sl < 5 else (9*15360 if sl == 5 else (sl - 1)*15360)
    def sync_addr(self, own, grp, base):
        S = self.S
        if PAIR:
            S('v_and_b32 v22, 15, v0')
            S(f's_lshr_b32 s52, s53, 4'); S('s_lshl_b32 s52, s52, 15'); S('s_and_b32 s53, s53, 15'); S('s_lshl_b32 s53, s53, 7')
            S('s_add_u32 s52, s52, s53'); S(f's_add_u32 s52, s52, {base}')
            S('v_lshlrev_b32 v20, 7, v22')
            S('v_lshl_add_u32 v22, v22, 11, s52')
            S(f's_lshl_b32 s52, s{grp}, 15'); S(f's_lshl_b32 s53, s{own}, 11'); S('s_add_u32 s52, s52, s53'); S(f's_add_u32 s52, s52, {base}')
            S('v_add_u32 v20, s52, v20')
            return
        if PUSH:
            S('v_and_b32 v22, 15, v0')
            S(f's_lshl_b32 s52, s53, 7')
            if base: S(f's_add_u32 s52, s52, {base}')
            S('v_lshlrev_b32 v20, 7, v22')
            S('v_lshl_add_u32 v22, v22, 2, s52')
            S(f's_lshl_b32 s52, s{grp}, 11'); S(f's_lshl_b32 s53, s{own}, 2'); S('s_add_u32 s52, s52, s53')
            if base: S(f's_add_u32 s52, s52, {base}')
            S('v_add_u32 v20, s52, v20')
            return
        S(f's_mul_i32 s52, s{grp}, {FGRP}'); S(f's_mul_i32 s53, s{own}, {FSTR}'); S('s_add_u32 s52, s52, s53')
        if base: S(f's_add_u32 s52, s52, {base}')
        S('v_mov_b32 v20, s52')
        S(f's_mul_i32 s52, s{grp+1}, {FGRP}')
        if base: S(f's_add_u32 s52, s52, {base}')
        S('v_and_b32 v22, 15, v0'); S(f'v_mul_u32_u24 v22, {FSTR}, v22'); S('v_add_u32 v22, s52, v22')
    def sync(self, lab, si):
        S = self.S
        if si is not None: stamp(S, si)
        set_flag(S, 20, 21, 56, mask='0xffff' if (PUSH or PAIR) else '1')
        if PAIR and PSL >= 0: poll2(S, lab, 22, 26, 27, 56)
        else: poll(S, lab, 22, 21, 56)
        if si is not None: stamp(S, si + 1)
    def zero_flags(self):
        S = self.S
        srd_off(S, 56, 8, FL_OFF, FL_SZ)
        S('s_and_b32 s60, s2, 7'); S('s_lshr_b32 s61, s2, 3')
        S('v_mov_b32 v30, 0x40000000'); S('v_mov_b32 v32, 0')
        S('v_and_b32 v31, 15, v0'); S(f'v_mul_u32_u24 v31, {FGRP}, v31')
        def lane(k, sg):
            S(f's_mov_b64 exec, {1 << k}'); S(f'v_mov_b32 v30, s{sg}')
        S('s_and_b32 s62, s60, 1'); S('s_lshl_b32 s62, s62, 3'); S('s_and_b32 s63, s61, 7'); S('s_add_u32 s62, s62, s63')
        S('s_lshr_b32 s63, s60, 1'); S('s_lshl_b32 s63, s63, 2'); S('s_lshr_b32 s52, s61, 3'); S('s_add_u32 s63, s63, s52')
        S(f's_mul_i32 s52, s62, {FGRP}'); S(f's_mul_i32 s53, s63, {FSTR}'); S('s_add_u32 s52, s52, s53')
        S(f's_add_u32 s53, s52, {FLA}'); lane(0, 53)
        if PAIR:
            S('s_lshl_b32 s99, s62, 15'); S('s_lshl_b32 s53, s63, 11'); S('s_add_u32 s99, s99, s53'); S(f's_add_u32 s99, s99, {FLP}')
        else:
            S(f's_add_u32 s53, s52, {FLP}'); lane(1, 53)
            if HSP:
                for k in range(4): S(f's_add_u32 s53, s52, {FLP2 + 4*k}'); lane(4 + k, 53)
        S(f's_mul_i32 s52, s62, {FSTR}'); S(f's_add_u32 s52, s52, {FLW}')
        S('s_cmp_eq_u32 s63, 15'); S('s_cselect_b32 exec_lo, 0xffff0000, 0'); S('s_mov_b32 exec_hi, 0')
        S('v_add_u32 v30, s52, v31')
        S('s_lshr_b32 s52, s61, 4'); S('s_lshl_b32 s53, s60, 1'); S('s_add_u32 s52, s52, s53'); S(f's_mul_i32 s52, s52, {FSTR}')
        if PAIR:
            S('s_lshl_b32 s52, s52, 4')
            S('s_and_b32 s53, s61, 15'); S('s_lshl_b32 s53, s53, 15'); S('s_add_u32 s52, s52, s53'); S(f's_add_u32 s97, s52, {FLO}')
        else:
            S('s_and_b32 s53, s61, 15'); S(f's_mul_i32 s53, s53, {FGRP}'); S('s_add_u32 s52, s52, s53'); S(f's_add_u32 s52, s52, {FLO}'); lane(2, 52)
        S('s_and_b32 s62, s60, 3'); S('s_lshl_b32 s62, s62, 3'); S('s_and_b32 s63, s61, 7'); S('s_add_u32 s62, s62, s63')
        S('s_lshr_b32 s63, s60, 2'); S('s_lshl_b32 s63, s63, 2'); S('s_lshr_b32 s52, s61, 3'); S('s_add_u32 s63, s63, s52')
        S('s_and_b32 s52, s62, 1'); S('s_lshl_b32 s52, s52, 3'); S('s_add_u32 s52, s52, s63'); S(f's_mul_i32 s52, s52, {FSTR}')
        if PAIR:
            S('s_lshl_b32 s52, s52, 4')
            S('s_lshr_b32 s53, s62, 1'); S('s_lshl_b32 s53, s53, 15'); S('s_add_u32 s52, s52, s53'); S(f's_add_u32 s98, s52, {FLH}')
        else:
            S('s_lshr_b32 s53, s62, 1'); S(f's_mul_i32 s53, s53, {FGRP}'); S('s_add_u32 s52, s52, s53')
            if FLH: S(f's_add_u32 s52, s52, {FLH}')
            lane(3, 52)
        S('s_lshr_b32 s53, s62, 1'); S(f's_mul_i32 s53, s53, {FSTR}'); S(f's_add_u32 s53, s53, {FLR}')
        S('s_and_b32 s52, s62, 1'); S('s_or_b32 s52, s52, s63'); S('s_cmp_eq_u32 s52, 0')
        S('s_cselect_b32 exec_hi, 0xffff, 0'); S('s_mov_b32 exec_lo, 0')
        S('v_add_u32 v30, s53, v31')
        S('s_mov_b64 exec, -1')
        S('buffer_store_dword v32, v30, s[56:59], 0 offen sc1')
        if PAIR:
            S('v_mov_b32 v33, 0x40000000'); S('v_and_b32 v34, 15, v0'); S('v_lshlrev_b32 v34, 7, v34')
            S('s_mov_b64 exec, 0xffff'); S('v_add_u32 v33, s97, v34')
            S('s_mov_b32 exec_lo, 0xffff0000'); S('v_add_u32 v33, s98, v34')
            S('s_mov_b32 exec_lo, 0'); S('s_mov_b32 exec_hi, 0xffff'); S('v_add_u32 v33, s99, v34')
            S('s_mov_b64 exec, -1')
            S('buffer_store_dword v32, v33, s[56:59], 0 offen sc1')
    def a_help_pre(self):
        S = self.S
        srd_off(S, 56, 8, FL_OFF, FL_SZ); S('s_mov_b32 s54, 1')
        S('v_lshrrev_b32 v70, 4, v0'); S('v_min_u32 v70, 2, v70')
        S('v_bfe_u32 v71, v0, 1, 3'); S('v_min_u32 v71, 2, v71')
        S('v_cmp_eq_u32 vcc, 0, v70'); S('v_cndmask_b32 v71, v71, 0, vcc')
        S('v_sub_u32 v71, s11, v71'); S('v_max_i32 v71, 0, v71')
        S('v_and_b32 v72, 1, v0'); S('s_mul_i32 s52, s12, 5'); S('v_lshl_add_u32 v72, v72, 2, s52'); S('v_lshrrev_b32 v72, 4, v72')
        S('v_mad_u32_u24 v72, v70, 5, v72')
        S(f'v_mul_u32_u24 v71, {FGRP}, v71'); S(f'v_mul_u32_u24 v72, {FSTR}, v72'); S('v_add_u32 v71, v71, v72')
        S(f'v_add_u32 v74, {FLA}, v71')
        S('s_and_b32 s60, s2, 7'); S('s_lshr_b32 s61, s2, 3')
        S('s_and_b32 s62, s60, 1'); S('s_lshl_b32 s62, s62, 3'); S('s_and_b32 s63, s61, 7'); S('s_add_u32 s62, s62, s63')
        S('s_lshr_b32 s63, s60, 1'); S('s_lshl_b32 s63, s63, 2'); S('s_lshr_b32 s52, s61, 3'); S('s_add_u32 s63, s63, s52')
        S(f's_mul_i32 s52, s62, {FGRP}'); S(f's_mul_i32 s53, s63, {FSTR}'); S('s_add_u32 s52, s52, s53'); S(f's_add_u32 s52, s52, {FLA}')
        S('v_mov_b32 v73, s52'); S('s_mov_b32 s82, 1'); S('s_mov_b32 s83, 0')
        S('s_cmp_lg_u32 s63, 15'); S(f's_cbranch_scc1 L_nidle_{self.name}')
        S(f's_mul_i32 s52, s62, {FSTR}'); S(f's_add_u32 s52, s52, {FLW}')
        S('v_and_b32 v73, 15, v0'); S(f'v_mul_u32_u24 v73, {FGRP}, v73'); S('v_add_u32 v73, s52, v73'); S('s_mov_b32 s82, 0xffff')
        S.label(f'L_nidle_{self.name}')
        S(f's_mul_i32 s52, s11, {FGRP}'); S(f's_add_u32 s52, s52, {FLW}')
        S('v_and_b32 v75, 15, v0'); S(f'v_mul_u32_u24 v75, {FSTR}, v75'); S('v_add_u32 v75, s52, v75')
    def a_help_sync(self, n, u):
        S = self.S; nm = self.name
        S('s_barrier')
        if n == 0:
            S('s_cmp_lg_u32 s10, 7'); S(f's_cbranch_scc1 L_nsa_{nm}')
            stamp(S, 5)
            set_flag(S, 73, 76, 56, mask='s[82:83]')
            poll(S, f'L_pa_{nm}', 74, 76, 56)
            stamp(S, 6)
            S.label(f'L_nsa_{nm}')
        S('s_barrier')
    def a_help_post(self, n, u):
        S = self.S; nm = self.name
        if n == 0:
            S('s_cmp_lg_u32 s10, 7'); S(f's_cbranch_scc1 L_nw1_{nm}')
            S('buffer_load_dword v77, v75, s[56:59], 0 offen sc1')
            S('s_waitcnt vmcnt(0)')
            S('v_cmp_ne_u32 vcc, s54, v77')
            S(f's_cbranch_vccz L_nw1_{nm}')
            poll(S, f'L_pw_{nm}', 75, 77, 56)
            S.label(f'L_nw1_{nm}')
            S.vm = []
    def b_pre(self):
        S = self.S
        S.wait(vm=0)
        stamp(S, 5)
        S('s_barrier'); S('s_barrier')
        stamp(S, 10)
    def b_help_pre(self):
        S = self.S
        srd_off(S, 56, 8, FL_OFF, FL_SZ); S('s_mov_b32 s54, 1')
    def b_help_post(self):
        S = self.S
        stamp(S, 1)
        self.rstores = [I_dummy]
        S.vm = [I_dummy]
        S('s_barrier')
    def c_mid(self, mid):
        S = self.S; nm = self.name
        S('s_lshr_b32 s63, s11, 1')
        S('s_lshl_b32 s53, s11, 3'); S('s_add_u32 s53, s53, s12')
        self.sync_addr(61, 62, FLO)
        if PAIR:
            S(f's_mul_i32 s52, s63, {FGRP}'); S(f's_add_u32 s52, s52, {FLR}')
            S('v_and_b32 v23, 15, v0'); S(f'v_mul_u32_u24 v23, {FSTR}, v23'); S('v_add_u32 v23, s52, v23')
        else: S(f'v_add_u32 v23, {FLR - FLO}, v22')
        if PUSH:
            S('s_lshl_b32 s52, s63, 2'); S(f's_add_u32 s52, s52, {FLR}')
            S('v_lshlrev_b32 v24, 7, v0'); S('v_add_u32 v24, s52, v24')
        else:
            S(f's_mul_i32 s52, s63, {FSTR}'); S(f's_add_u32 s52, s52, {FLR}')
            S('v_and_b32 v24, 15, v0'); S(f'v_mul_u32_u24 v24, {FGRP}, v24'); S('v_add_u32 v24, s52, v24')
        S.wait(vm=len(S.vm) - 1)
        stamp(S, 2)
        S('s_barrier')
        vm = list(S.vm)
        S('s_cmp_eq_u32 s10, 7'); S(f's_cbranch_scc1 L_w7o_{nm}')
        mid()
        vm2 = list(S.vm)
        S(f's_branch L_nso_{nm}')
        S.label(f'L_w7o_{nm}')
        S.vm = list(vm)
        self.sync(f'L_po_{nm}', 3)
        S('s_and_b32 s52, s11, 1'); S('s_or_b32 s52, s52, s12'); S('s_cmp_lg_u32 s52, 0'); S(f's_cbranch_scc1 L_nld_{nm}')
        S('v_mov_b32 v21, s54')
        if PUSH:
            for k in range(4):
                S(f's_mov_b32 s52, {8192*k}')
                S('buffer_store_dword v21, v24, s[56:59], s52 offen sc1')
        else:
            S('s_mov_b64 exec, 0xffff')
            S('buffer_store_dword v21, v24, s[56:59], 0 offen sc1')
            S('s_mov_b64 exec, -1')
        S.label(f'L_nld_{nm}')
        S.vm = list(vm)
        mid()
        S.label(f'L_nso_{nm}')
        S.vm = vm2
        S('s_barrier')
    def c_step(self, t):
        if not self.withB: return
        S = self.S; nm = self.name
        last = CE.CFG['C']['NSTEP'] // CE.CFG['C']['SPS'] - 1
        if t == last - 1:
            S('s_cmp_lg_u32 s10, 7'); S(f's_cbranch_scc1 L_nr1_{nm}')
            vm = list(S.vm)
            S('buffer_load_dword v25, v23, s[56:59], 0 offen sc1')
            S.label(f'L_nr1_{nm}')
            S.vm = vm
        if t == last:
            S('s_cmp_lg_u32 s10, 7'); S(f's_cbranch_scc1 L_nr2_{nm}')
            vm = list(S.vm)
            S('s_waitcnt vmcnt(0)')
            S('v_cmp_ne_u32 vcc, s54, v25')
            S(f's_cbranch_vccz L_nr2_{nm}')
            poll(S, f'L_rf_{nm}', 23, 25, 56)
            S.label(f'L_nr2_{nm}')
            S.vm = vm
    def c_pre(self):
        S = self.S
        if not self.withB: return
        S.wait(vm=0)
        self.stx(2)
        S('s_barrier'); S('s_barrier')
    def d_mid(self, which):
        S = self.S
        if which == 'late':
            S('s_barrier'); S('s_barrier'); return
        S('s_mov_b32 s62, s60'); S('s_mov_b32 s63, s11')
        S('s_lshl_b32 s53, s11, 4'); S('s_add_u32 s53, s53, s55')
        self.sync_addr(61, 62, FLH)
        S('s_barrier')
        self.sync(f'L_ph_{self.name}', 5 if not self.withA else None)
        S('s_barrier')
    def d_tail(self, which):
        S = self.S
        if which == 'early':
            S('s_mov_b32 s62, s11'); CE.tilemap(S); S('s_lshr_b32 s63, s11, 1')
            S('s_lshl_b32 s53, s11, 3'); S('s_add_u32 s53, s53, s12')
            self.sync_addr(55, 62, FLP)
            S('s_barrier')
            self.sync(f'L_pp_{self.name}', 8)
            S('s_barrier')
            if PAIR: S('s_waitcnt vmcnt(0)')
            if HSP:
                c = CE.CFG['E']; last = (e_order()[1] - c['DB'])//c['SPS'] - 1
                assert last >= 2 and last - int(os.environ.get('HS2', '3')) >= 1
                S(f's_mul_i32 s52, s63, {FGRP}'); S(f's_add_u32 s52, s52, {FLP2}')
                S('v_lshrrev_b32 v22, 2, v0'); S(f'v_mul_u32_u24 v22, {FSTR}, v22'); S('v_and_b32 v23, 3, v0')
                S('v_lshl_add_u32 v22, v23, 2, v22'); S('v_add_u32 v22, s52, v22')
                S('s_barrier')
                S('s_barrier')
                for t in range(1, last + 1):
                    if t == last:
                        S('s_waitcnt vmcnt(0)')
                        S('v_cmp_ne_u32 vcc, s54, v23')
                        S(f's_cbranch_vccz L_p2_{self.name}_done')
                        poll(S, f'L_p2_{self.name}', 22, 23, 56)
                        S.label(f'L_p2_{self.name}_done')
                    S('s_barrier')
                    if t == last - int(os.environ.get('HS2', '3')): S('buffer_load_dword v23, v22, s[56:59], 0 offen sc1')
                S.vm = []
            stamp_flush(S, 10, 10, 0, kern_idx=self.kidx)
            S('s_endpgm'); return
        CE.tilemap(S); S('s_mov_b32 s44, 0')
        CE.producer(S, 'E', self)
    def e_mid(self, mid):
        self.S('s_barrier'); mid(); self.S('s_barrier')
    def d_pre(self):
        S = self.S
        S.wait(vm=0)
        self.stx(5)
        S('s_barrier'); S('s_barrier')
    def e_pre(self):
        S = self.S
        self.stx(8)
        S.wait(vm=7 - HSP if HSP else 0)
        stamp(S, 9)
        S('s_barrier')
        if HSP:
            S.wait(vm=0)
            S('v_mov_b32 v211, 1'); S('s_mov_b64 exec, 1')
            S('buffer_store_dword v211, v210, s[56:59], 0 offen sc1')
            S('s_mov_b64 exec, -1')
        S('s_barrier')
        self.stx(10)

from sched import I
I_dummy = I('buffer_store_dword v255, v255, s[56:59], 0 offen')

def ids(S):
    S('s_and_b32 s13, s2, 7'); S('s_lshr_b32 s14, s2, 3')

def gen(A, name='phF_kernel', stamps=False, withB=False, withA=False):
    S = Sched(A); S.name = name; S.stamps = stamps; S.sbase = 64
    F = Fz(S, name, withB, withA)
    kernel_header(A, name)
    S(f's_load_dwordx2 s[8:9], s[0:1], {KA_WS}')
    S(f's_load_dwordx2 s[4:5], s[0:1], {KA_X}')
    S(f's_load_dwordx2 s[6:7], s[0:1], {KA_WQKV if withA else KA_OUT}')
    prologue_guard(S, 256)
    if withA and CPF >= 100:
        S(f's_cmp_ge_u32 s2, {8*(CPF - 100)}'); S(f's_cbranch_scc1 L_ncpf_{name}')
        S('s_getpc_b64 s[60:61]')
        S.label(f'L_pc_{name}')
        S('v_lshlrev_b32 v254, 7, v0')
        S(f's_mov_b32 s62, L_exit_{name}-L_pc_{name}'); S('v_min_u32 v254, s62, v254')
        S('v_mov_b32 v255, s61'); S('v_add_co_u32 v254, vcc, s60, v254'); S('v_addc_co_u32 v255, vcc, 0, v255, vcc')
        S('global_load_dword v253, v[254:255], off')
        S.label(f'L_ncpf_{name}')
    S('v_lshrrev_b32 v1, 6, v0')
    ids(S)
    S('v_readfirstlane_b32 s10, v1')
    S('v_and_b32 v0, 63, v0')
    if withA: PA.tilemap(S)
    elif withB: B.tilemap(S)
    else: CE.tilemap(S); S('s_mov_b32 s44, 0')
    stamp(S, 0)
    if withA:
        S('s_cmp_ge_u32 s12, 15'); S(f's_cbranch_scc1 L_idle_{name}')
    S('s_cmp_ge_u32 s10, 4')
    S(f's_cbranch_scc1 L_prod_{name}')
    if PRIO & 2: S('s_setprio 1')
    if withA and CPF and CPF < 100:
        S('s_cmp_lg_u32 s10, 0'); S(f's_cbranch_scc1 L_ncpf_{name}')
        S('s_getpc_b64 s[60:61]')
        S.label(f'L_pc_{name}')
        S('s_mul_i32 s62, s14, %d' % CPF); S('v_add_u32 v250, s62, v0'); S('v_lshlrev_b32 v250, 7, v250')
        S(f's_mov_b32 s62, L_exit_{name}-L_pc_{name}'); S('v_min_u32 v250, s62, v250')
        S('v_mov_b32 v251, s61'); S('v_add_co_u32 v250, vcc, s60, v250'); S('v_addc_co_u32 v251, vcc, 0, v251, vcc')
        S('s_mov_b64 exec, %d' % ((1 << CPF) - 1) if CPF < 7 else 's_mov_b32 exec_lo, 0x%x' % ((1 << CPF) - 1)); S('s_mov_b32 exec_hi, 0')
        S('global_load_dword v252, v[250:251], off')
        S('s_mov_b64 exec, -1')
        S.label(f'L_ncpf_{name}')
    if withA:
        PA.consumer(S, name, F)
        S.label(f'L_postA_{name}')
        S(f's_load_dwordx2 s[6:7], s[0:1], {KA_OUT}')
        ids(S); B.tilemap(S)
    if withB:
        B.attention(S, name, F)
        ids(S); CE.tilemap(S); S('s_mov_b32 s44, 0')
    CE.consumer(S, 'C', F)
    D.tilemap(S)
    D.consumer(S, name, F)
    if HSP:
        srd_off(S, 56, 8, FL_OFF, FL_SZ)
        S(f's_mul_i32 s52, s11, {FGRP}'); S(f's_mul_i32 s53, s33, {FSTR}'); S('s_add_u32 s52, s52, s53')
        S('s_lshl_b32 s53, s10, 2'); S('s_add_u32 s52, s52, s53'); S(f's_add_u32 s52, s52, {FLP2}'); S('v_mov_b32 v210, s52')
    CE.tilemap(S); S('s_mov_b32 s44, 0')
    CE.consumer(S, 'E', F)
    S.label(f'L_prod_{name}')
    S.hist = []; S.lds = []; S.vm = []; S.smem_pending = [('s', i) for i in range(4, 10)]
    if withA:
        if PRIO & 1: S('s_setprio 1')
        PA.producer2(S, name, F)
        S.label(f'L_idle_{name}')
        S.hist = []; S.lds = []; S.vm = []; S.smem_pending = [('s', i) for i in range(4, 10)]
        PA.idle(S, name, F)
        S.label(f'L_help_{name}')
        S.hist = []; S.lds = []; S.vm = []; S.smem_pending = []
        ids(S); B.tilemap(S)
    if withB:
        if PRIO & 4: S('s_setprio 0')
        B.helper(S, name, F)
        if PRIO & 4: S('s_setprio 1')
        F.b_help_post()
        ids(S); B.tilemap(S); S('s_mov_b32 s62, s11'); S('s_mov_b32 s61, s12')
        ids(S); CE.tilemap(S); S('s_mov_b32 s44, 0')
    else:
        S('s_mov_b32 s54, 1')
    CE.producer(S, 'C', F)
    if not withB: srd_off(S, 56, 8, FL_OFF, FL_SZ)
    S('s_lshr_b32 s60, s11, 1')
    S('s_and_b32 s61, s11, 1'); S('s_lshl_b32 s61, s61, 3'); S('s_add_u32 s61, s61, s12')
    D.tilemap(S); S('s_mov_b32 s55, s33')
    D.producer(S, name, F)
    S.label(f'L_exit_{name}')
    S('s_endpgm')
    kernel_desc(A, name, 256, 102)
```

```python
import sys
sys.path.insert(0, 'gen')
from common import *
import os
import phaseA, phaseB, phaseR
import importlib
phaseCE = importlib.import_module('phaseCE' + os.environ.get('CVER', '1'))
phaseD = importlib.import_module('phaseD' + os.environ.get('DVER', '2'))
def build(path, parts, std=False):
    ref = open(f'cdna_kernels/{KN}.s.ref').read().split('\n')
    hdr = []
    for l in ref:
        if l.startswith('; Override launch'): break
        hdr.append(l)
    A = Asm()
    for l in hdr: A.raw(l)
    for (mod, nm, grid, blk, lds, kw) in parts:
        A.raw(f'; @launch kernel={nm} grid=({grid},1,1) block=({blk},1,1) lds={lds}')
    A.raw('.amdgcn_target "amdgcn-amd-amdhsa--gfx950"')
    done = set()
    for (mod, nm, grid, blk, lds, kw) in parts:
        if nm in done: continue
        done.add(nm); mod.gen(A, name=nm, **kw)
    txt = A.text()
    if std and len(parts) == 1:
        import re
        nm = parts[0][1]
        txt = txt.replace(f'; @launch kernel={nm} grid', '; @launch grid')
        txt = re.sub(r'\b' + nm + r'\b', KN + '_kernel', txt)
    open(path, 'w').write(txt)
PARTS = [
    (phaseA, 'phA_kernel', 256, 512, phaseA.LDS_A, {}),
    (phaseB, 'phB_kernel', 256, phaseB.THREADS_B, phaseB.LDS_B, {}),
    (phaseCE, 'phC_kernel', 256, phaseCE.threads('C'), phaseCE.lds_bytes('C'), dict(mode='C')),
    (phaseD, 'phD_kernel', 256, 512, phaseD.LDS_D, {}),
    (phaseCE, 'phE_kernel', 256, phaseCE.threads('E'), phaseCE.lds_bytes('E'), dict(mode='E')),
]
FUSE = os.environ.get('FUSE', '3')
if FUSE == '1':
    import phaseF
    PARTS = PARTS[:2] + [(phaseF, 'phF_kernel', 256, phaseF.THREADS_F, phaseF.LDS_F, {})]
if FUSE == '2':
    import phaseF
    PARTS = PARTS[:1] + [(phaseF, 'phF_kernel', 256, phaseF.THREADS_F, phaseF.LDS_F, dict(withB=True))]
if FUSE == '3':
    import phaseF
    PARTS = [(phaseF, 'phF_kernel', 256, phaseF.THREADS_F, phaseF.LDS_F, dict(withB=True, withA=True))]
if not phaseB.MERGE: PARTS.insert(1, (phaseR, 'phR_kernel', 256, 256, phaseR.LDS_R, {}))
if __name__ == '__main__':
    build(f'cdna_kernels/{KN}.s', PARTS, std=True)
```
